```python
import torch

def _softmax(x, axis=-1):
    return torch.softmax(x, dim=axis)
def _gelu(x):
    return torch.nn.functional.gelu(x, approximate="tanh")
def _silu(x):
    return torch.nn.functional.silu(x)
def _sigmoid(x):
    return torch.sigmoid(x)
def _layernorm(x, axis=-1, eps=1e-5):
    m = x.mean(dim=axis, keepdim=True)
    v = x.var(dim=axis, keepdim=True, unbiased=False)
    return (x - m) / torch.sqrt(v + eps)
def _scatter_add(tgt, idx, src, axis=0):
    return tgt.clone().index_add_(axis, idx, src)
def _segment_sum(src, seg, n):
    out = torch.zeros((n,) + src.shape[1:], dtype=src.dtype)
    return out.index_add_(0, seg, src)
def _pad(x, pw):
    flat = tuple(v for pair in reversed(pw) for v in pair)
    return torch.nn.functional.pad(x, flat)

kernel_name = 'gated_mix__spectral_gfnet__glu_gated_geglu__prompt'

def setup_inputs():

    _w = (lambda a: (lambda t: t.to(torch.bfloat16) if t.is_floating_point() else t)(torch.as_tensor(a)))
    def _A_setup():
        B, S, D = 1, 2048, 512
        Df = D // 2 + 1
        return {
            "x": _w((lambda *s: torch.randn(*s, dtype=torch.bfloat16) * 0.05)(B, S, D)),
            "w_r": _w((lambda *s: torch.randn(*s, dtype=torch.bfloat16) * 0.05)(S, Df) * 0.02),
            "w_i": _w((lambda *s: torch.randn(*s, dtype=torch.bfloat16) * 0.05)(S, Df) * 0.02),
        }
    _A_in = _A_setup()

    def _B_setup():
        B, S, Dm, Df = 1, 2048, 512, 1792
        return {
            "x": _w((lambda *s: torch.randn(*s, dtype=torch.bfloat16) * 0.05)(B, S, Dm)),
            "w_gate": _w((lambda *s: torch.randn(*s, dtype=torch.bfloat16) * 0.2)(Dm, Df) * (Dm ** -0.5)),
            "w_up": _w((lambda *s: torch.randn(*s, dtype=torch.bfloat16) * 0.2)(Dm, Df) * (Dm ** -0.5)),
            "w_down": _w((lambda *s: torch.randn(*s, dtype=torch.bfloat16) * 0.2)(Df, Dm) * (Df ** -0.5)),
        }
    _B_in = _B_setup()

    return {
        "A_x": _A_in["x"],
        "A_w_r": _A_in["w_r"],
        "A_w_i": _A_in["w_i"],
        "B_x": _B_in["x"],
        "B_w_gate": _B_in["w_gate"],
        "B_w_up": _B_in["w_up"],
        "B_w_down": _B_in["w_down"],
        "gate_w": _w((lambda *s: torch.randn(*s, dtype=torch.bfloat16) * 0.05)(512) * 16.0),
    }

def reference(A_x, A_w_r, A_w_i, B_x, B_w_gate, B_w_up, B_w_down, gate_w):
    def _A_ref(x, w_r, w_i):
        B, S, D = x.shape
        X = (lambda x, axes=(-2,-1): torch.fft.rfft2(x.float(), dim=axes))(x, axes=(-2, -1))
        W = w_r + 1j * w_i
        X = X * W
        y = (lambda x, s, axes=(-2,-1): torch.fft.irfft2(x, s=s, dim=axes).to(torch.bfloat16))(X, (S, D), axes=(-2, -1))
        return y

    def _B_ref(x, w_gate, w_up, w_down):
        g = torch.einsum("bsd,df->bsf", x, w_gate)
        u = torch.einsum("bsd,df->bsf", x, w_up)
        h = _gelu(g) * u
        return torch.einsum("bsf,fd->bsd", h, w_down)

    x = A_x
    g = _sigmoid((x * gate_w).sum(-1, keepdims=True))
    a = _A_ref(x, A_w_r, A_w_i)
    b = _B_ref(x, B_w_gate, B_w_up, B_w_down)
    return g * a + (1 - g) * b
```

```python
import re
TRANS = ("v_exp_f32","v_log_f32","v_rcp_f32","v_rsq_f32","v_sqrt_f32","v_sin_f32","v_cos_f32","v_rcp_iflag_f32")
_reg = re.compile(r"^(-|\|)?([vas])(\d+|\[(\d+):(\d+)\])\|?$")
def regs_of(op):
    op = op.strip()
    if op.startswith("abs(") : op = op[4:-1]
    if op in ("vcc",): return {"s106","s107"}
    if op == "vcc_lo": return {"s106"}
    if op == "vcc_hi": return {"s107"}
    if op == "exec": return {"exec"}
    if op == "m0": return {"m0"}
    m = _reg.match(op)
    if not m: return set()
    k = m.group(2)
    if m.group(4) is not None:
        return {f"{k}{i}" for i in range(int(m.group(4)), int(m.group(5))+1)}
    return {f"{k}{m.group(3)}"}

class I:
    def __init__(self, text, tag=None):
        self.text = text.strip(); self.tag = tag
        t = self.text.split(";")[0].strip()
        self.mn = t.split()[0] if t else ""
        rest = t[len(self.mn):].strip()
        ops = [o.strip() for o in rest.split(",")] if rest else []
        self.mods = ""
        if ops:
            p = ops[-1].split(None, 1)
            ops[-1] = p[0]
            if len(p) > 1: self.mods = p[1]
        self.ops = ops
        mn = self.mn
        self.kind = "other"
        self.rd = set(); self.wr = set(); self.srcC = set(); self.srcAB=set(); self.passes = 0
        self.data=set()
        if mn.endswith(":") or mn.startswith(".") or mn == "":
            self.kind = "label"
        elif mn in ("WAITVM","WAITLG"):
            self.kind = "symwait"
        elif mn.startswith("v_mfma"):
            self.kind = "mfma"
            self.wr = regs_of(ops[0]); self.srcAB = regs_of(ops[1]) | regs_of(ops[2]); self.srcC = regs_of(ops[3])
            self.rd = self.srcAB | self.srcC
            self.passes = 8 if "32x32x16" in mn else 4
        elif mn == "v_nop":
            self.kind = "valu"
        elif mn.startswith("v_"):
            self.kind = "trans" if mn.replace("_e32","").replace("_e64","") in TRANS else "valu"
            self.wr = regs_of(ops[0])
            for o in ops[1:]: self.rd |= regs_of(o)
            if mn.startswith(("v_fmac","v_pk_fmac","v_dot2c")): self.rd |= self.wr
            if mn.startswith(("v_add_co","v_sub_co","v_addc_co","v_subb_co")):
                self.wr |= regs_of(ops[1])
            if mn.startswith("v_permlane") and "swap" in mn:
                self.wr |= regs_of(ops[1]); self.rd |= regs_of(ops[0])
            if mn.startswith("v_writelane"): self.rd |= self.wr
        elif mn.startswith("ds_"):
            self.kind = "ds"
            if mn.startswith("ds_read") or mn.startswith("ds_bpermute") or mn.startswith("ds_swizzle"):
                self.wr = regs_of(ops[0])
                for o in ops[1:]: self.rd |= regs_of(o)
            else:
                for o in ops: self.rd |= regs_of(o)
        elif mn.startswith(("buffer_","global_")):
            self.kind = "vmem"
            lds = "lds" in self.mods.split() or "_lds_" in mn
            self.lds = lds
            if "load" in mn and not lds:
                self.wr = regs_of(ops[0])
                for o in ops[1:]: self.rd |= regs_of(o)
                if "d16" in mn: self.rd |= self.wr
            else:
                for o in ops: self.rd |= regs_of(o)
                if "store" in mn:
                    self.data = regs_of(ops[0]) if mn.startswith("buffer_") else regs_of(ops[1])
            if lds: self.rd |= {"m0"}
        elif mn.startswith(("s_load","s_buffer_load","s_memtime","s_memrealtime")):
            self.kind = "smem"
            self.wr = regs_of(ops[0])
            for o in ops[1:]: self.rd |= regs_of(o)
        elif mn.startswith("s_"):
            self.kind = "salu"
            if mn.startswith(("s_cmp","s_cbranch","s_branch","s_waitcnt","s_barrier","s_nop","s_sleep","s_endpgm","s_setprio","s_bitcmp")):
                for o in ops: self.rd |= regs_of(o)
            else:
                if ops: self.wr = regs_of(ops[0])
                for o in ops[1:]: self.rd |= regs_of(o)
                if "saveexec" in mn: self.wr |= {"exec"}
    def states(self):
        if self.kind == "label": return 0
        if self.mn == "s_nop": return int(self.ops[0], 0) + 1
        return 1
    def isvalu(self): return self.kind in ("valu","trans")
    def __repr__(self): return self.text

def mk(x):
    out = []
    if isinstance(x, I): return [x]
    if isinstance(x, str):
        for ln in x.split("\n"):
            if ln.strip():
                tag=None
                m = re.search(r";@(\S+)", ln)
                if m: tag = m.group(1)
                out.append(I(ln, tag))
        return out
    for y in x: out += mk(y)
    return out

def resolve_waits(code):
    vm = []; lg = []; out = []
    for ins in code:
        if ins.tag == "skip":
            out.append(ins); continue
        if ins.kind == "symwait":
            q = vm if ins.mn == "WAITVM" else lg
            tags = ins.ops
            if tags == ["all"]: n = 0
            else:
                idx = -1
                for i, t in enumerate(q):
                    if t in tags: idx = i
                if idx < 0:
                    continue
                n = len(q) - 1 - idx
            lim = 63 if ins.mn == "WAITVM" else 15
            n = min(n, lim)
            if ins.mn == "WAITLG" and "SMEM" in q and n != 0:
                raise Exception("counted lgkm wait with SMEM outstanding")
            del q[:len(q)-n]
            out.append(I(f"s_waitcnt {'vmcnt' if ins.mn=='WAITVM' else 'lgkmcnt'}({n})"))
            continue
        if ins.kind == "vmem": vm.append(ins.tag or "?")
        elif ins.kind == "ds": lg.append(ins.tag or "?")
        elif ins.kind == "smem": lg.append("SMEM")
        elif ins.mn == "s_waitcnt":
            m = re.search(r"vmcnt\((\d+)\)", ins.text)
            if m:
                n = int(m.group(1));
                if len(vm) > n: del vm[:len(vm)-n]
            m = re.search(r"lgkmcnt\((\d+)\)", ins.text)
            if m:
                n = int(m.group(1))
                if len(lg) > n: del lg[:len(lg)-n]
        out.append(ins)
    return out

def merge_waits(code):
    out=[]
    for ins in code:
        if ins.mn=="s_waitcnt" and out and out[-1].mn=="s_waitcnt" and ins.tag!="skip" and out[-1].tag!="skip":
            def g(t,k):
                m=re.search(k+r"\((\d+)\)",t.split(";")[0]); return int(m.group(1)) if m else None
            a,b=out[-1].text,ins.text
            parts=[]
            for k in ("vmcnt","lgkmcnt"):
                v=[x for x in (g(a,k),g(b,k)) if x is not None]
                if v: parts.append(f"{k}({min(v)})")
            out[-1]=I("s_waitcnt "+" ".join(parts))
        else: out.append(ins)
    return out

def check_loads(code):
    vm=[]; lg=[]
    for n,ins in enumerate(code):
        if ins.kind=="label" or ins.tag=="skip": continue
        if ins.mn=="s_waitcnt":
            t=ins.text.split(";")[0]
            m=re.search(r"vmcnt\((\d+)\)",t)
            if m and len(vm)>int(m.group(1)): del vm[:len(vm)-int(m.group(1))]
            m=re.search(r"lgkmcnt\((\d+)\)",t)
            if m and len(lg)>int(m.group(1)): del lg[:len(lg)-int(m.group(1))]
            continue
        touched = ins.rd|ins.wr
        for q in (vm,lg):
            for p in q:
                hit = p.wr & touched
                if hit and not ("d16" in ins.mn and "d16" in p.mn):
                    raise Exception(f"load-use violation at #{n}: '{ins.text}' touches {sorted(hit)} pending from '{p.text}'")
        if ins.kind=="vmem": vm.append(ins)
        elif ins.kind in ("ds","smem"): lg.append(ins)

def need(prod, cons):
    n = 0
    pv = prod.isvalu()
    if pv:
        vw = {r for r in prod.wr if r[0] in "va"}
        sw = {r for r in prod.wr if r[0] == "s"}
        if cons.kind == "mfma" and vw & cons.rd: n = max(n, 2)
        if prod.kind == "trans" and cons.kind == "valu" and vw & cons.rd: n = max(n, 1)
        if prod.kind == "trans" and cons.kind in("ds","vmem") and vw & cons.rd: n = max(n, 1)
        if cons.mn.startswith(("v_readfirstlane","v_readlane")) and vw & cons.rd: n = max(n, 1)
        if cons.isvalu() and ("dpp" in cons.mn or "quad_perm" in cons.mods or "row_" in cons.mods or cons.mn.startswith("v_permlane")) and vw & cons.rd: n = max(n, 2)
        if sw:
            if cons.isvalu() and sw & cons.rd:
                n = max(n, 4 if cons.mn.startswith(("v_readlane","v_writelane")) else 2)
            if cons.kind == "vmem" and sw & cons.rd: n = max(n, 5)
            if cons.kind in("salu","smem") and sw & cons.rd: n = max(n, 1)
    if prod.kind == "mfma":
        big = prod.passes == 8
        if cons.kind == "mfma":
            if prod.wr & cons.srcAB: n = max(n, 12 if big else 8)
            if prod.wr & cons.srcC and not (prod.wr == cons.srcC and prod.passes == cons.passes): n = max(n, 10 if big else 6)
            if prod.wr & cons.wr and not (prod.wr & cons.srcC): n = max(n, 12 if big else 8)
        elif cons.isvalu() or cons.kind in ("ds","vmem"):
            if prod.wr & (cons.rd | cons.wr): n = max(n, 12 if big else 8)
            if cons.isvalu() and prod.srcC & cons.wr: n = max(n, 7 if big else 3)
    if prod.kind == "salu" and "m0" in prod.wr and cons.kind == "vmem" and "m0" in cons.rd: n = max(n, 1)
    if prod.kind == "vmem" and len(prod.data) >= 3 and prod.data & cons.wr: n = max(n, 2)
    return n

def pad_hazards(code, verbose=False):
    out = []; added = 0
    for ins in code:
        if ins.kind != "label":
            dist = 0; worst = 0
            for p in reversed(out):
                if dist >= 13: break
                r = need(p, ins)
                if r > dist: worst = max(worst, r - dist)
                dist += p.states()
            if worst:
                if verbose: print("pad", worst, "before", ins.text)
                out.append(I(f"s_nop {worst-1}")); added += worst
        out.append(ins)
    return out, added

def finalize(code, verbose=False):
    code = mk(code)
    code = resolve_waits(code)
    code = merge_waits(code)
    check_loads(code)
    code, added = pad_hazards(code, verbose)
    return code, added

def spread(gaps, items, lo, hi):
    n = len(items); m = hi - lo
    for i, it in enumerate(items):
        gaps[lo + (i * m) // n] += mk(it)

def weave(mf, gaps, pre=None):
    out = []
    for i, m in enumerate(mf):
        if pre and pre.get(i): out += mk(pre[i])
        out += mk(m); out += mk(gaps[i])
    return out
```

```python
import sys, struct, math
from asmlib import *

KNAME = "gated_mix__spectral_gfnet__glu_gated_geglu__prompt_kernel"
def f2u(x): return "0x%08x" % struct.unpack("<I", struct.pack("<f", x))[0]

WS_E   = 0x0
WS_FR  = 0x1000
WS_FP  = 0x4000
WS_FH  = 0x8000
WS_R   = 0x100000
WS_RP  = 0x300000
WS_H   = 0x500000
WS_DBG = 0xD00000
WS_SIZE = 0x10000000
XA, XB, C0, C1 = 0, 65536, 131072, 147456
L_GW, L_G, L_RB = C1, C1+1024, C1+2048
SX,SWG,SWU,SWD,SWS,SOUT,SGW,SWR,SWI = [f"s[{i}:{i+3}]" for i in (4,8,12,16,20,24,28,32,36)]
sNON="s[40:41]"
sW,sB,sCG,sRES,sRB4,sFB,sP,sQ = "s42","s43","s44","s45","s46","s47","s48","s49"
sXS,sWS0,sM4K,sHS,sFHS,sWDS,sM16K = "s50","s51","s52","s53","s54","s55","s56"
sT0,sT1,sT2,sT3 = "s58","s59","s60","s61"
sGC0,sGC1="s62","s63"
sPM="s[64:65]"; sPT="s[66:67]"; sCNT="s68"
vL, vL16, vFO = "v0","v1","v2"
vG = ["v3","v4"]; vOMG=["v28","v29"]
vNON="v[6:7]"
vXO=[f"v{8+i}" for i in range(4)]
vXR=[f"v{12+i}" for i in range(8)]
vWO=[f"v{20+i}" for i in range(4)]
vWT=[f"v{24+i}" for i in range(4)]
vPOLL="v[30:31]"; vPA="v5"
def vr(a,n): return f"v[{a}:{a+n-1}]"
def ar(a,n): return f"a[{a}:{a+n-1}]"
ACC=32; XR=96; ET=128; HP=152

class Opt:
    stamps=False
    ldx=""
    ldw=""
    ldd=""
    stop=99
opt=Opt()
nstamp=[0]
def stamp():
    if not opt.stamps: return []
    i=nstamp[0]; nstamp[0]+=1
    assert i<16
    return [f"s_memtime s[{70+2*i}:{71+2*i}]","s_waitcnt lgkmcnt(0)"]

def MF32(d,a,b,c): return f"v_mfma_f32_32x32x16_bf16 {d}, {a}, {b}, {c}"
def MF16(d,a,b,c): return f"v_mfma_f32_16x16x32_bf16 {d}, {a}, {b}, {c}"

def dma_x(slot, kq, rnd, tag):
    g=[[f"s_add_u32 m0, {sM4K}, {slot+kq*16384}", f"s_add_u32 {sT0}, {sXS}, {kq*256}",
        f"buffer_load_dwordx4 {vXO[0]}, {SX}, {sT0} offen {opt.ldx} lds ;@{tag}"]]
    for j in range(1,4):
        g.append([f"buffer_load_dwordx4 {vXO[j]}, {SX}, {sT0} offen offset:{j*1024} {opt.ldx} lds ;@{tag}"])
    return g
def set_xs(rnd):
    return [f"s_add_u32 {sT1}, {sRES}, {rnd}", f"s_and_b32 {sT1}, {sT1}, 3", f"s_add_u32 {sT1}, {sT1}, {sRB4}",
            f"s_lshl_b32 {sT1}, {sT1}, 10", f"s_lshl_b32 {sXS}, {sW}, 19", f"s_add_u32 {sXS}, {sXS}, {sT1}"]
RING=[XB, XB+16384, XB+32768, XB+49152, C0]
def wslot(n): return RING[(n+2)%5]
def dma_w(i):
    tag=f"W{i}"
    g=[[f"s_add_u32 m0, {sM4K}, {wslot(i)}", f"s_add_u32 {sT0}, {sWS0}, {64*i*3584}",
        f"buffer_load_dwordx4 {vWO[0]}, {SWG}, {sT0} offen {opt.ldw} lds ;@{tag}"],
       [f"buffer_load_dwordx4 {vWO[1]}, {SWU}, {sT0} offen offset:1024 {opt.ldw} lds ;@{tag}"],
       [f"buffer_load_dwordx4 {vWO[2]}, {SWG}, {sT0} offen offset:2048 {opt.ldw} lds ;@{tag}"],
       [f"buffer_load_dwordx4 {vWO[3]}, {SWU}, {sT0} offen offset:3072 {opt.ldw} lds ;@{tag}"]]
    return g
def flat(g): return [i for x in g for i in (x if isinstance(x,list) else [x])]

def sprinkle(main, items, every, start=0):
    out=[]; items=list(items); main=mk(main)
    for n,ins in enumerate(main):
        if items and n>=start and (n-start)%every==0: out+=mk(items.pop(0))
        out.append(ins)
    for it in items: out+=mk(it)
    return out

def prologue():
    c=[]
    c+=["s_cmp_ge_u32 s2, 256","s_cbranch_scc1 L_end"]
    if opt.stamps: c+=["s_memrealtime s[100:101]"]
    c+=stamp()
    c+=["s_load_dwordx4 s[4:7], s[0:1], 0",
        "s_load_dwordx2 s[36:37], s[0:1], 16",
        "s_load_dwordx8 s[8:15], s[0:1], 32",
        "s_load_dwordx2 s[24:25], s[0:1], 64",
        "s_load_dwordx2 s[20:21], s[0:1], 80"]
    c+=["v_lshrrev_b32 v5, 6, v0","v_and_b32 v0, 63, v0",f"v_readfirstlane_b32 {sW}, v5",
        f"v_lshlrev_b32 {vL16}, 4, {vL}",
        f"s_and_b32 {sT0}, s2, 7", f"s_lshr_b32 {sT1}, s2, 3",
        f"s_and_b32 {sRES}, {sT0}, 3", f"s_lshr_b32 {sCG}, {sT1}, 2",
        f"s_and_b32 {sT0}, {sT0}, 4", f"s_and_b32 {sT1}, {sT1}, 3", f"s_add_u32 {sT0}, {sT0}, {sT1}",
        f"s_lshl_b32 {sRB4}, {sT0}, 2", f"s_add_u32 {sB}, {sRB4}, {sRES}",
        f"s_mul_i32 {sFB}, {sRES}, 7", f"s_add_u32 {sFB}, {sFB}, {sCG}",
        f"s_lshr_b32 {sP}, {sW}, 1", f"s_and_b32 {sQ}, {sW}, 1",
        f"s_lshl_b32 {sM4K}, {sW}, 12", f"s_lshl_b32 {sM16K}, {sW}, 14"]
    c+=set_xs(0)
    c+=["v_lshrrev_b32 v128, 4, v0", "v_and_b32 v129, 15, v0"]
    for j in range(4):
        c+=[f"v_add_u32 v130, {4*j}, v128", "v_xor_b32 v131, v129, v130", "v_lshlrev_b32 v131, 4, v131",
            "v_lshl_add_u32 v131, v130, 15, v131", f"v_subrev_u32 {vXO[j]}, {j*1024}, v131"]
    c+=["v_lshrrev_b32 v128, 3, v0", "v_and_b32 v129, 7, v0", "v_and_b32 v130, 2, v128",
        "v_xor_b32 v129, v129, v130", "v_mul_u32_u24 v128, 3584, v128",
        "v_lshl_add_u32 v131, v129, 4, v128",
        "v_xor_b32 v129, 4, v129", "v_lshl_add_u32 v132, v129, 4, v128",
        f"v_mov_b32 {vWO[0]}, v131", f"v_mov_b32 {vWO[1]}, v132",
        f"v_add_u32 {vWO[2]}, {8*3584-2048}, v131", f"v_add_u32 {vWO[3]}, {8*3584-2048}, v132"]
    c+=[f"s_mul_i32 {sWS0}, {sW}, {16*3584}", f"s_lshl_b32 {sT0}, {sFB}, 7", f"s_add_u32 {sWS0}, {sWS0}, {sT0}"]
    c+=["s_waitcnt lgkmcnt(0)"]
    c+=["s_mov_b32 s32, s6","s_mov_b32 s33, s7","s_mov_b32 s34, 1052672","s_mov_b32 s35, 0x20000",
        "s_mov_b32 s6, 0x200000","s_mov_b32 s7, 0x20000",
        "s_mov_b32 s38, 1052672","s_mov_b32 s39, 0x20000",
        "s_mov_b32 s28, s14","s_mov_b32 s29, s15","s_mov_b32 s30, 1024","s_mov_b32 s31, 0x20000",
        "s_mov_b32 s16, s12","s_mov_b32 s17, s13","s_mov_b32 s18, 1835008","s_mov_b32 s19, 0x20000",
        "s_sub_u32 s12, s10, 1024","s_subb_u32 s13, s11, 0",
        f"s_cmp_eq_u32 {sCG}, 7",
        "s_cselect_b32 s10, 0, 1835008","s_cselect_b32 s14, 0, 1836032",
        "s_mov_b32 s11, 0x20000","s_mov_b32 s15, 0x20000",
        f"s_mov_b32 s22, {WS_SIZE}","s_mov_b32 s23, 0x20000",
        "s_mov_b32 s26, 0x200000","s_mov_b32 s27, 0x20000"]
    return c

FF=160; HF=224; PAD=64
def gen_F():
    c=[]
    c+=["v_and_b32 v128, 15, v0", f"s_and_b32 {sT2}, {sW}, 1", f"s_lshl_b32 {sT2}, {sT2}, 4",
        f"s_lshl_b32 {sT3}, {sCG}, 5", f"s_add_u32 {sT2}, {sT2}, {sT3}",
        f"v_add_u32 v128, {sT2}, v128",
        f"v_cvt_f32_u32 v129, {sP}", f"v_mul_f32 v129, {f2u(-0.25)}, v129",
        f"s_lshl_b32 {sT3}, {sP}, 8", f"v_mov_b32 v130, {sT3}",
        "v_cmp_eq_u32 vcc, 0, v128", "v_cndmask_b32 v128, v128, v130, vcc", "v_cndmask_b32 v129, v129, 0, vcc",
        "v_cvt_f32_u32 v128, v128", f"v_mul_f32 v128, {f2u(1/512)}, v128",
        "v_lshrrev_b32 v130, 4, v0", "v_lshlrev_b32 v130, 3, v130", "v_cvt_f32_u32 v130, v130",
        "v_fma_f32 v129, v130, v128, v129",
        f"v_mul_f32 v130, {f2u(32.0)}, v128", "v_cos_f32 v130, v130", "v_add_f32 v130, v130, v130"]
    S0,S1=132,140
    for ks in range(2):
        S=S0 if ks==0 else S1
        for j in range(8):
            c+=[f"v_fmamk_f32 v{S+j}, v128, {f2u(32*ks+j)}, v129"]
        for j in range(8):
            c+=[f"v_cos_f32 v{S+j}, v{S+j}"]
        for j in range(4):
            c+=[f"v_cvt_pk_bf16_f32 v{FF+4*ks+j}, v{S+2*j}, v{S+2*j+1}"]
    for ks in range(2,16):
        P,Cu=(S0,S1) if ks%2==0 else (S1,S0)
        for j in range(8):
            c+=[f"v_fma_f32 v{P+j}, v130, v{Cu+j}, -v{P+j}"]
        for j in range(4):
            c+=[f"v_cvt_pk_bf16_f32 v{FF+4*ks+j}, v{P+2*j}, v{P+2*j+1}"]
    return c
def gen_H():
    c=[]
    AF=96
    c+=["v_lshrrev_b32 v128, 4, v0","v_lshlrev_b32 v128, 2, v128"]
    for t in range(4):
        c+=[f"s_add_u32 {sT2}, {sW}, {t}", f"s_and_b32 {sT2}, {sT2}, 3", f"s_lshl_b32 {sT2}, {sT2}, 4",
            f"v_add_u32 v129, {sT2}, v128", f"v_cvt_f32_u32 v{AF+4*t}, v129"]
        for i in range(1,4): c+=[f"v_add_f32 v{AF+4*t+i}, 1.0, v{AF+4*t+i-1}"]
    c+=["v_and_b32 v128, 15, v0","v_lshrrev_b32 v129, 1, v128","v_cvt_f32_u32 v129, v129",
        f"v_mul_f32 v129, {f2u(1/64)}, v129",
        "v_and_b32 v130, 1, v0","v_cvt_f32_u32 v130, v130",f"v_mul_f32 v130, {f2u(-0.25)}, v130",
        "v_cmp_eq_u32 vcc, 1, v128","v_mov_b32 v133, 0.5","v_cndmask_b32 v131, v129, v133, vcc","v_cndmask_b32 v132, v130, 0, vcc"]
    T=112
    for tj in range(4):
        cf,ph=("v131","v132") if tj==0 else ("v129","v130")
        if tj>0: c+=[f"v_add_f32 v129, {f2u(0.125)}, v129"]
        for e in range(16): c+=[f"v_fma_f32 v{T+e}, v{AF+e}, {cf}, {ph}"]
        for e in range(16): c+=[f"v_cos_f32 v{T+e}, v{T+e}"]
        for e in range(8):  c+=[f"v_cvt_pk_bf16_f32 v{HF+8*tj+e}, v{T+2*e}, v{T+2*e+1}"]
    return c
def gen_addr():
    c=[]
    c+=[f"v_mov_b32 v128, 0x40000000","v_cmp_eq_u32 vcc, 0, v0",f"v_cndmask_b32 {vFO}, v128, 0, vcc"]
    c+=["v_and_b32 v128, 15, v0","v_lshrrev_b32 v129, 4, v0"]
    for i in range(4):
        c+=[f"v_add_u32 v130, {4*i}, v129","v_xor_b32 v130, v130, v128","v_lshlrev_b32 v130, 4, v130",f"v_lshl_add_u32 v{132+i}, v128, 8, v130"]
    for t in range(4):
        c+=[f"s_add_u32 {sT2}, {sW}, {t}", f"s_and_b32 {sT2}, {sT2}, 3", f"s_lshl_b32 {sT2}, {sT2}, 12"]
        for i in range(4): c+=[f"v_add_u32 v{PAD+4*t+i}, {sT2}, v{132+i}"]
    c+=["v_lshlrev_b32 v80, 4, v129", f"v_add_u32 v80, {L_GW}, v80"]
    c+=["v_lshrrev_b32 v130, 1, v129", f"s_lshl_b32 {sT2}, {sW}, 1", f"v_add_u32 v130, {sT2}, v130",
        "v_and_b32 v131, 7, v0","v_xor_b32 v130, v130, v131","v_lshlrev_b32 v130, 4, v130","v_lshl_add_u32 v130, v128, 7, v130",
        "v_and_b32 v131, 1, v129","v_lshl_add_u32 v130, v131, 3, v130", f"v_add_u32 v81, {L_RB}, v130"]
    c+=["v_lshrrev_b32 v130, 3, v0","v_and_b32 v131, 7, v0","v_xor_b32 v131, v131, v130","v_lshlrev_b32 v131, 4, v131",
        "v_lshl_add_u32 v131, v130, 7, v131", f"s_lshl_b32 {sT2}, {sW}, 11", f"s_add_u32 {sT2}, {sT2}, {L_RB}", f"v_add_u32 v82, {sT2}, v131"]
    c+=[f"s_lshl_b32 {sT2}, {sW}, 6", f"s_add_u32 {sT2}, {sT2}, {L_G}", f"v_lshl_add_u32 v83, v128, 2, {sT2}",
        "v_and_b32 v130, 31, v0","v_lshlrev_b32 v130, 2, v130", f"v_add_u32 v84, {L_G}, v130"]
    c+=["v_and_b32 v130, 31, v0", f"s_lshl_b32 {sT2}, {sQ}, 13", f"v_lshl_add_u32 v130, v130, 8, {sT2}", "v_lshrrev_b32 v131, 5, v0"]
    for i in range(8):
        c+=[f"v_add_u32 v132, {2*i}, v131","v_xor_b32 v132, v132, v128",f"v_lshl_add_u32 {vXR[i]}, v132, 4, v130"]
    c+=["v_lshrrev_b32 v130, 4, v0","v_lshlrev_b32 v130, 10, v130",
        "v_bfe_u32 v131, v0, 2, 2","v_lshl_add_u32 v130, v131, 7, v130",
        "v_and_b32 v131, 3, v0","v_lshl_add_u32 v130, v131, 3, v130",
        "v_bfe_u32 v131, v0, 3, 2"]
    for tau in range(2):
        c+=[f"s_lshl_b32 {sT2}, {sP}, 1", f"s_add_u32 {sT2}, {sT2}, {tau}", f"v_xor_b32 v132, {sT2}, v131",
            "v_lshl_add_u32 v132, v132, 5, v130", f"v_add_u32 {vWT[tau]}, {XB}, v132", f"v_add_u32 {vWT[2+tau]}, {C0}, v132"]
    c+=[f"s_mov_b32 {sGC0}, {f2u(-2*math.sqrt(2/math.pi)*math.log2(math.e))}",
        f"s_mov_b32 {sGC1}, {f2u(-2*math.sqrt(2/math.pi)*math.log2(math.e)*0.044715)}"]
    return c

def startup():
    dm=[]
    for kq in range(4): dm+=dma_x(XA,kq,0,"x0")
    dm.insert(0,[f"s_mov_b32 m0, {L_GW}","v_mov_b32 v5, 0",f"buffer_load_dwordx4 {vL16}, {SGW}, 0 offen lds ;@x0"])
    dm.append([f"buffer_load_dwordx2 {vNON}, v5, {SWS}, 0 offen sc1 ;@x0"])
    main=gen_addr()+gen_F()+gen_H()
    c=sprinkle(main, dm, 16)
    return c

def p0():
    c=[]
    TA=32; GA=48; RA=32+20
    GF=144
    c+=["WAITVM x0","s_barrier"]
    c+=stamp()
    c+=["v_readfirstlane_b32 s40, v6","v_readfirstlane_b32 s41, v7",
        "s_mul_i32 s40, s40, 0x9E3779B1","s_add_u32 s40, s40, 0x7F4A7C15",
        "s_mul_i32 s41, s41, 0x85EBCA6D","s_add_u32 s41, s41, 0xC2B2AE35",
        "v_mov_b32 v6, s40","v_mov_b32 v7, s41"]
    def reads(ks):
        r=[]
        for t in range(4):
            r.append(f"ds_read_b128 {vr(XR+16*(ks%2)+4*t,4)}, v{PAD+4*t+ks%4} offset:{(ks//4)*16384} ;@p{ks}")
        r.append(f"ds_read_b128 {vr(GF+4*(ks%2),4)}, v80 offset:{ks*64} ;@p{ks}")
        return r
    wd=[]
    for i in range(5): wd+=dma_w(i)
    c+=reads(0)
    for ks in range(16):
        nx=reads(ks+1) if ks<15 else []
        mf=[]
        for t in range(4):
            mf.append(MF16(vr(TA+4*t,4), vr(XR+16*(ks%2)+4*t,4), vr(FF+4*ks,4), vr(TA+4*t,4) if ks else "0"))
        mf.append(MF16(vr(GA,4), vr(GF+4*(ks%2),4), vr(XR+16*(ks%2),4), vr(GA,4) if ks else "0"))
        c+=[f"WAITLG p{ks}"]
        for i in range(5):
            c+=[mf[i]]
            if nx: c+=[nx[i]]
            if i in (1,3) and wd and (i==1 or ks%4==0): c+=wd.pop(0)
    for g in wd: c+=g
    TP=128
    for t in range(4):
        c+=[f"v_cvt_pk_bf16_f32 v{TP+2*t}, v{TA+4*t}, v{TA+4*t+1}", f"v_cvt_pk_bf16_f32 v{TP+2*t+1}, v{TA+4*t+2}, v{TA+4*t+3}"]
    RA=96
    for sg in range(2):
        for tj in range(4):
            c+=[MF16(vr(RA+4*tj,4), vr(TP+4*sg,4), vr(HF+8*tj+4*sg,4), vr(RA+4*tj,4) if sg else "0")]
    c+=[f"v_mul_f32 v136, {f2u(-math.log2(math.e))}, v{GA}","v_exp_f32 v136, v136","v_add_f32 v136, 1.0, v136","v_rcp_f32 v136, v136",
        "ds_write_b32 v83, v136 ;@bw"]
    for tj in range(4):
        c+=[f"v_cvt_pk_bf16_f32 v{138+2*tj}, v{RA+4*tj}, v{RA+4*tj+1}", f"v_cvt_pk_bf16_f32 v{139+2*tj}, v{RA+4*tj+2}, v{RA+4*tj+3}",
            f"ds_write_b64 v81, {vr(138+2*tj,2)} offset:{tj*2048} ;@bw"]
    c+=["WAITLG all","WAITVM W0","s_barrier"]
    c+=stamp()
    c+=[f"ds_read_b128 {vr(128,4)}, v82 ;@br", f"ds_read_b128 {vr(132,4)}, v82 offset:1024 ;@br",
        f"ds_read_b32 {vG[0]}, v84 ;@br", f"ds_read_b32 {vG[1]}, v84 offset:128 ;@br",
        f"s_lshl_b32 {sT2}, {sB}, 3", f"s_add_u32 {sT2}, {sT2}, {sCG}", f"s_lshl_b32 {sT2}, {sT2}, 13",
        f"s_lshl_b32 {sT3}, {sW}, 11", f"s_add_u32 {sT2}, {sT2}, {sT3}", f"s_add_u32 {sT2}, {sT2}, {WS_R}",
        "WAITLG br",
        f"buffer_store_dwordx4 {vr(128,4)}, {vL16}, {SWS}, {sT2} offen sc1 ;@Rst",
        f"buffer_store_dwordx4 {vr(132,4)}, {vL16}, {SWS}, {sT2} offen offset:1024 sc1 ;@Rst",
        f"v_sub_f32 {vOMG[0]}, 1.0, {vG[0]}", f"v_sub_f32 {vOMG[1]}, 1.0, {vG[1]}"]
    return c
def flag_R():
    return [f"s_lshl_b32 {sT2}, {sW}, 3", f"s_add_u32 {sT2}, {sT2}, {sCG}", f"s_lshl_b32 {sT2}, {sT2}, 5", f"s_add_u32 {sT2}, {sT2}, {sB}",
            f"s_lshl_b32 {sT2}, {sT2}, 3", f"s_add_u32 {sT2}, {sT2}, {WS_FR}", "WAITVM Rst",
            f"buffer_store_dwordx2 {vNON}, {vFO}, {SWS}, {sT2} offen sc1 ;@fl"]

def wfrag(tau,ks): return 128*tau+4*ks
def xread(ks, tag):
    return f"ds_read_b128 {vr(XR+4*(ks%8),4)}, {vXR[ks%8]} offset:{(ks//8)*16384} ;@{tag}"
def g1_mf(rnd,ks):
    s=ACC+32*(rnd%2)
    return [MF32(vr(s+16*t,16), ar(wfrag(t,ks),4), vr(XR+4*(ks%8),4), vr(s+16*t,16) if ks else "0") for t in range(2)]
def xr_move(delta):
    if delta>=0: return [f"v_add_u32 {r}, {delta}, {r}" for r in vXR]
    return [f"v_subrev_u32 {r}, {-delta}, {r}" for r in vXR]
def set_hs(rnd):
    return [f"s_add_u32 {sT1}, {sRES}, {rnd}", f"s_and_b32 {sT1}, {sT1}, 3", f"s_add_u32 {sT1}, {sT1}, {sRB4}",
            f"s_mul_i32 {sHS}, {sT1}, 28", f"s_add_u32 {sHS}, {sHS}, {sFB}", f"s_lshl_b32 {sHS}, {sHS}, 1", f"s_add_u32 {sHS}, {sHS}, {sP}",
            f"s_lshl_b32 {sHS}, {sHS}, 2", f"s_add_u32 {sHS}, {sHS}, {sQ}", f"s_lshl_b32 {sHS}, {sHS}, 10", f"s_add_u32 {sHS}, {sHS}, {WS_H}"]
def flag_H(rnd):
    return [[f"s_add_u32 {sT1}, {sRES}, {rnd}", f"s_and_b32 {sT1}, {sT1}, 3", f"s_add_u32 {sT1}, {sT1}, {sRB4}"],
            [f"s_lshl_b32 {sT1}, {sT1}, 1", f"s_add_u32 {sT1}, {sT1}, {sP}", f"s_lshl_b32 {sT1}, {sT1}, 5"],
            [f"s_add_u32 {sT1}, {sT1}, {sFB}", f"s_lshl_b32 {sT1}, {sT1}, 1", f"s_add_u32 {sT1}, {sT1}, {sQ}"],
            [f"s_lshl_b32 {sT1}, {sT1}, 3", f"s_add_u32 {sFHS}, {sT1}, {WS_FH}"],
            [f"WAITVM h{rnd}", f"buffer_store_dwordx2 {vNON}, {vFO}, {SWS}, {sFHS} offen sc1 ;@fl"]]
def epilogue(rnd):
    s=ACC+32*(rnd%2); c=[]
    for t in range(2):
        for hh in range(2):
            g=[s+16*t+4*hh+i for i in range(4)]; u=[x+8 for x in g]
            A=ET+8*((2*t+hh)%2); Bq=A+4
            for i in range(4): c+=[f"v_mul_f32 v{A+i}, v{g[i]}, v{g[i]}"]
            for i in range(4): c+=[f"v_fma_f32 v{A+i}, v{A+i}, {sGC1}, v{ET+16}"]
            for i in range(4): c+=[f"v_mul_f32 v{A+i}, v{A+i}, v{g[i]}"]
            for i in range(4): c+=[f"v_exp_f32 v{A+i}, v{A+i}", f"v_mul_f32 v{Bq+i}, v{g[i]}, v{u[i]}"]
            for i in range(4): c+=[f"v_add_f32 v{A+i}, 1.0, v{A+i}"]
            for i in range(4): c+=[f"v_rcp_f32 v{A+i}, v{A+i}"]
            for i in range(4): c+=[f"v_mul_f32 v{Bq+i}, v{Bq+i}, v{A+i}"]
            c+=[f"v_cvt_pk_bf16_f32 v{HP+4*t+2*hh}, v{Bq}, v{Bq+1}", f"v_cvt_pk_bf16_f32 v{HP+4*t+2*hh+1}, v{Bq+2}, v{Bq+3}"]
        c+=[f"buffer_store_dwordx4 {vr(HP+4*t,4)}, {vL16}, {SWS}, {sHS} offen offset:{2048*t} sc1 ;@h{rnd}"]
    return c

def round0():
    c=[f"v_mov_b32 v{ET+16}, {sGC0}"]
    for i in range(9):
        fill=[]
        if 1<=i<=3: fill+=dma_w(i+4)
        if i==4: fill+=[set_xs(1)]
        if 4<=i<=7: fill+=dma_x(XB,i-4,1,f"x1q{i-4}")
        if i==5: fill+=[flag_R()]
        rd=[]
        if i<8:
            sl=wslot(i); base=(2,C0) if sl==C0 else (0,XB)
            for ks in range(4):
                for t in range(2):
                    for u in range(2):
                        rd.append(f"ds_read_b64_tr_b16 {ar(wfrag(t,4*i+ks)+2*u,2)}, {vWT[base[0]+t]} offset:{sl-base[1]+ks*4096+u*512} ;@r")
                rd.append(xread(4*i+ks,"r"))
        else:
            rd+=[xr_move(XB-XA)]+[xread(ks,"r") for ks in range(4)]
            fill+=[set_xs(2)]+dma_x(XA,0,2,"x2")
        if i==0:
            c+=flat(fill)+flat(rd)
        else:
            mf=[m for ks in range(4*(i-1),4*i) for m in g1_mf(0,ks)]
            gaps=[[] for _ in mf]
            spread(gaps,rd,0,7); spread(gaps,fill,0,8)
            c+=weave(mf,gaps)
        if i<7: c+=["WAITLG all",f"WAITVM W{i+1}","s_barrier"]
        elif i==7: c+=["WAITLG all","WAITVM x1q1","s_barrier"]
    return c

def wd_setup():
    c=["v_lshrrev_b32 v160, 3, v0","v_and_b32 v161, 7, v0","v_and_b32 v162, 2, v160","v_lshlrev_b32 v162, 1, v162",
       "v_xor_b32 v161, v161, v162","v_lshlrev_b32 v161, 4, v161",f"v_lshl_add_u32 {vWO[0]}, v160, 10, v161",
       f"v_add_u32 {vWO[1]}, {8192-1024}, {vWO[0]}", f"v_add_u32 {vWO[2]}, {65536-2048}, {vWO[0]}", f"v_add_u32 {vWO[3]}, {65536+8192-3072}, {vWO[0]}",
       "v_lshrrev_b32 v160, 5, v0","v_lshlrev_b32 v160, 9, v160","v_bfe_u32 v161, v0, 2, 2","v_lshl_add_u32 v160, v161, 7, v160",
       "v_bfe_u32 v161, v0, 4, 1","v_lshl_add_u32 v160, v161, 5, v160","v_and_b32 v161, 3, v0","v_lshl_add_u32 v160, v161, 3, v160",
       f"v_add_u32 v160, {sM16K}, v160","v_bfe_u32 v161, v0, 3, 1",
       f"v_lshl_add_u32 {vWT[0]}, v161, 6, v160","v_xor_b32 v161, 1, v161",f"v_lshl_add_u32 {vWT[1]}, v161, 6, v160",
       f"v_add_u32 {vWT[2]}, {XB}, {vWT[0]}", f"v_add_u32 {vWT[3]}, {XB}, {vWT[1]}"]
    return c
def set_cls(i, dst, mul):
    return [f"s_sub_u32 {dst}, {sRES}, {i}", f"s_and_b32 {dst}, {dst}, 3", f"s_mul_i32 {dst}, {dst}, {mul}"]
def dma_wd(i, region):
    tag=f"D{i}"
    g=[set_cls(i,sWDS,7*65536)+[f"s_add_u32 {sWDS}, {sWDS}, {sM16K}"],[f"s_lshl_b32 {sT1}, {sCG}, 7", f"s_add_u32 {sWDS}, {sWDS}, {sT1}"]]
    for pr in range(4):
        n=4 if pr<3 else 2
        for j in range(n):
            pre=[f"s_add_u32 m0, {sM16K}, {region+pr*4096}", f"s_add_u32 {sT0}, {sWDS}, {pr*131072}"] if j==0 else []
            g.append(pre+[f"buffer_load_dwordx4 {vWO[j]}, {SWD}, {sT0} offen offset:{j*1024} {opt.ldd} lds ;@{tag}"])
    return g
def dfrag(i,fb,dt): return 56*i+8*fb+4*dt
def tr_wd(i, region):
    o=0 if region==XA else 2
    return [f"ds_read_b64_tr_b16 {ar(dfrag(i,fb,dt)+2*u,2)}, {vWT[o+dt]} offset:{fb*2048+u*1024} ;@d{i}" for fb in range(7) for dt in range(2) for u in range(2)]

def round_n(r):
    mf=[m for ks in range(32) for m in g1_mf(r,ks)]
    gaps=[[] for _ in mf]; pre={}
    for k4 in range(8):
        ks=4*k4
        pre[2*ks]=["WAITLG r"]
        if k4<7:
            if r==1 and k4==3: pre[2*ks]+=["WAITVM x1q3","s_barrier"]
            spread(gaps,[xread(k,"r") for k in range(ks+4,ks+8)],2*ks,2*ks+7)
        else:
            if r<3:
                pre[2*ks]+=[f"WAITVM x{r+1}","s_barrier"]
                mv=xr_move(XA-XB if r%2 else XB-XA)
                spread(gaps,[mv[:4]],2*ks-1,2*ks);
                spread(gaps,[xread(k,"r") for k in range(4)],2*ks,2*ks+7)
                spread(gaps,[mv[4:6],mv[6:8]],2*ks+4,2*ks+8)
            else:
                pre[2*ks]+=["s_barrier"]
    ep=[set_hs(r-1)[:6],set_hs(r-1)[6:]]+epilogue(r-1)
    spread(gaps,ep,0,56)
    dm=[]
    if r==1:
        for kq in range(1,4): dm+=dma_x(XA,kq,2,"x2")
        spread(gaps,dm,0,28)
    if r==2:
        dm=[set_xs(3)]
        for kq in range(4): dm+=dma_x(XB,kq,3,"x3")
        spread(gaps,dm,0,34)
        spread(gaps,[[x] for x in wd_setup()],36,55)
    if r==3:
        spread(gaps,dma_wd(0,XA),0,34)
        spread(gaps,dma_wd(1,XB)[:6],56,64)
    if r>=2: spread(gaps,flag_H(r-2),14,24)
    return weave(mf,gaps,pre)

lab=[0]
def poll_issue(tag): return [f"buffer_load_dwordx2 {vPOLL}, {vPA}, {SWS}, 0 offen sc1 ;@{tag}"]
def poll_check(tag):
    lab[0]+=1; n=lab[0]
    c=[f"s_mov_b32 {sCNT}, 100000", f"WAITVM {tag}", f"s_branch L_pc{n}",
       f"L_pl{n}:", f"buffer_load_dwordx2 {vPOLL}, {vPA}, {SWS}, 0 offen sc1 ;@skip", "s_waitcnt vmcnt(0) ;@skip",
       f"L_pc{n}:", f"v_cmp_eq_u64 vcc, {sNON}, {vPOLL}", f"s_and_b64 {sPT}, vcc, {sPM}", f"s_cmp_eq_u64 {sPT}, {sPM}", f"s_cbranch_scc1 L_pd{n}",
       f"s_sub_u32 {sCNT}, {sCNT}, 1", f"s_cmp_lg_u32 {sCNT}, 0", f"s_cbranch_scc1 L_pl{n}", f"L_pd{n}:"]
    return c
def pa_H():
    return [f"s_lshl_b32 {sT1}, {sB}, 1", f"s_add_u32 {sT1}, {sT1}, {sP}", f"s_lshl_b32 {sT1}, {sT1}, 9", f"s_add_u32 {sT1}, {sT1}, {WS_FH}",
            f"v_lshl_add_u32 {vPA}, {vL}, 3, {sT1}"]
def mask_H(i):
    return set_cls(i,sT1,14)+[f"s_mov_b64 {sPM}, 0x3fff", f"s_lshl_b64 {sPM}, {sPM}, {sT1}"]
def pa_P():
    return [f"s_lshl_b32 {sT1}, {sW}, 8", f"s_add_u32 {sT1}, {sT1}, {WS_FP}", f"v_lshl_add_u32 {vPA}, {vL}, 3, {sT1}",
            "s_mov_b32 s64, -1", "s_mov_b32 s65, 0"]

HB=[128,192]
def h_loads(i):
    g=[set_cls(i,sHS,7*8192)+[f"s_mul_i32 {sT1}, {sB}, {28*8192}", f"s_add_u32 {sHS}, {sHS}, {sT1}"],
       [f"s_lshl_b32 {sT1}, {sW}, 11", f"s_add_u32 {sHS}, {sHS}, {sT1}", f"s_add_u32 {sHS}, {sHS}, {WS_H}"]]
    for fb in range(7):
        for at in range(2):
            pre=[f"s_add_u32 {sT0}, {sHS}, {fb*8192}"] if at==0 else []
            g.append(pre+[f"buffer_load_dwordx4 {vr(HB[i%2]+8*fb+4*at,4)}, {vL16}, {SWS}, {sT0} offen offset:{at*1024} sc1 ;@H{i}_{fb}"])
    return g
def acc2(dt,at): return ACC+32*dt+16*at
def g2_class(i, fill, lo=0, hi=28):
    mf=[]; pre={}
    for fb in range(7):
        pre[4*fb]=[f"WAITVM H{i}_{fb}"]
        if fb==0: pre[0]+=[f"WAITLG d{i}"]
        for at in range(2):
            for dt in range(2):
                d=vr(acc2(dt,at),16)
                mf.append(MF32(d, ar(dfrag(i,fb,dt),4), vr(HB[i%2]+8*fb+4*at,4), d if (i or fb) else "0"))
    gaps=[[] for _ in mf]
    for (items,l,h) in fill: spread(gaps,items,l,h)
    return weave(mf,gaps,pre)
TT=184
FI=0
GF2=224
def gen_Finv():
    c=[]
    c+=["v_and_b32 v252, 31, v0", f"s_lshl_b32 {sT1}, {sCG}, 6", f"v_add_u32 v252, {sT1}, v252", "v_cvt_f32_u32 v248, v252",
        f"v_mul_f32 v248, {f2u(1/512)}, v248", f"v_add_f32 v249, {f2u(32/512)}, v248",
        "v_lshrrev_b32 v253, 5, v0", "v_lshlrev_b32 v253, 2, v253", f"s_lshl_b32 {sT1}, {sW}, 6", f"v_add_u32 v253, {sT1}, v253",
        "v_cmp_eq_u32 vcc, 0, v253", "v_cvt_f32_u32 v253, v253",
        "v_mul_f32 v250, v253, v248", "v_mul_f32 v251, v253, v249",
        "v_and_b32 v252, 1, v0", "v_cvt_f32_u32 v252, v252", "v_fma_f32 v252, v252, -2.0, 1.0",
        "v_cndmask_b32 v252, 0, v252, vcc"]
    for gs in range(4):
        for dt in range(2):
            for j in range(8):
                c+=[f"v_fmamk_f32 v{TT+j}, v{248+dt}, {f2u(16*gs+8*(j//4)+j%4)}, v{250+dt}"]
            for ct in range(2):
                op="v_cos_f32" if ct==0 else "v_sin_f32"
                for j2 in range(4):
                    c+=[f"{op} v254, v{TT+2*j2}", f"{op} v255, v{TT+2*j2+1}"]
                    if ct==1 and gs==0 and j2==0: c+=["v_add_f32 v254, v254, v252"]
                    c+=[f"v_cvt_pk_bf16_f32 v254, v254, v255", f"v_accvgpr_write_b32 a{FI+((ct*4+gs)*2+dt)*4+j2}, v254"]
    return c
def gen_G():
    c=[]
    c+=["v_and_b32 v252, 31, v0", "v_cvt_f32_u32 v248, v252", f"v_mul_f32 v248, {f2u(1/64)}, v248", "v_add_f32 v249, 0.5, v248",
        "v_lshrrev_b32 v253, 5, v0", "v_cmp_eq_u32 vcc, 0, v253", "v_lshlrev_b32 v253, 1, v253", "v_cvt_f32_u32 v253, v253",
        "v_mul_f32 v250, v253, v248", "v_mul_f32 v251, v253, v249",
        "v_and_b32 v252, 1, v0", "v_cvt_f32_u32 v252, v252", "v_fma_f32 v252, v252, -2.0, 1.0", "v_cndmask_b32 v252, 0, v252, vcc"]
    for js in range(4):
        for at in range(2):
            for j2 in range(4):
                cc=8*js+4*(j2//2)+j2%2
                c+=[f"v_fmamk_f32 v{TT+j2}, v{248+at}, {f2u(cc)}, v{250+at}"]
            for j2 in range(4):
                c+=[f"v_cos_f32 v254, v{TT+j2}", f"v_sin_f32 v255, v{TT+j2}"]
                if js==0 and j2==0: c+=["v_add_f32 v255, v255, v252"]
                c+=[f"v_cvt_pk_bf16_f32 v254, v254, v255", f"v_accvgpr_write_b32 a{GF2+(js*2+at)*4+j2}, v254"]
    return c
def dma_rp(region):
    g=[[f"s_lshl_b32 {sT1}, {sB}, 16", f"s_add_u32 {sT1}, {sT1}, {sM16K}", f"s_add_u32 {sWDS}, {sT1}, {WS_RP}"]]
    for i in range(16):
        pre=[f"s_add_u32 m0, {sM16K}, {region+(i//4)*4096}", f"s_add_u32 {sT0}, {sWDS}, {(i//4)*4096}"] if i%4==0 else []
        g.append(pre+[f"buffer_load_dwordx4 {vL16}, {SWS}, {sT0} offen offset:{(i%4)*1024} sc1 lds ;@RP"])
    return g
def vpart(fill):
    U=HB[0]
    def rd(k): return [f"ds_read_b128 {vr(XR+8*(k%4)+4*jt,4)}, {vXR[k]} offset:{jt*8192} ;@u{k}" for jt in range(2)]
    c=["WAITVM RP"]+rd(0)+rd(1)+rd(2)
    mf=[]; pre={}
    for k in range(8):
        pre[4*k]=[f"WAITLG u{k}"]
        for jt in range(2):
            for dt in range(2):
                d=vr(U+32*jt+16*dt,16)
                mf.append(MF32(d, vr(XR+8*(k%4)+4*jt,4), ar(FI+(k*2+dt)*4,4), d if k else "0"))
    gaps=[[] for _ in mf]
    for k in range(3,8): spread(gaps,rd(k),4*(k-3)+1,4*(k-3)+3)
    for (items,l,h) in fill: spread(gaps,items,l,h)
    c+=weave(mf,gaps,pre)
    for jt in range(2):
        for dt in range(2):
            for e in range(8):
                c+=[f"v_cvt_pk_bf16_f32 v{XR+16*jt+8*dt+e}, v{U+32*jt+16*dt+2*e}, v{U+32*jt+16*dt+2*e+1}"]
    for js in range(4):
        for dt in range(2):
            for at in range(2):
                d=vr(U+32*dt+16*at,16)
                c+=[MF32(d, vr(XR+16*(js//2)+8*dt+4*(js%2),4), ar(GF2+(js*2+at)*4,4), d if js else "0")]
    return c
def final():
    Y=HB[0]; c=[]
    for dt in range(2):
        for at in range(2):
            for q in range(4):
                a=acc2(dt,at)+4*q; y=Y+32*dt+16*at+4*q
                for i in range(4): c+=[f"v_fma_f32 v{a+i}, v{a+i}, {vOMG[at]}, v{y+i}"]
                c+=[f"ds_write_b128 {vXR[4*dt+q]}, {vr(a,4)} offset:{at*8192} ;@fw"]
    c+=["v_lshrrev_b32 v96, 3, v0","v_and_b32 v97, 7, v0","v_lshlrev_b32 v98, 1, v97","v_xor_b32 v98, v98, v96",
        "v_lshlrev_b32 v98, 4, v98","v_lshl_add_u32 v98, v96, 8, v98", f"v_add_u32 v98, {sM4K}, v98",
        "v_xor_b32 v99, 16, v98", "v_xor_b32 v100, 0x880, v98", "v_xor_b32 v101, 0x890, v98",
        "v_lshlrev_b32 v102, 15, v96","v_lshl_add_u32 v102, v97, 4, v102",
        f"s_lshl_b32 {sT1}, {sW}, 19", f"s_lshl_b32 {sT0}, {sB}, 10", f"s_add_u32 {sT1}, {sT1}, {sT0}", f"s_lshl_b32 {sT0}, {sCG}, 7", f"s_add_u32 {sT1}, {sT1}, {sT0}",
        f"s_add_u32 {sT0}, {sT1}, {8*32768}"]
    c+=["WAITLG all","s_barrier"]
    for rho in range(2):
        for pw in range(4):
            for e in range(2):
                c+=[f"ds_read_b128 {vr(128+32*rho+8*pw+4*e,4)}, v{98+2*rho+e} offset:{pw*16384} ;@fr{rho}"]
    for rho in range(2):
        b=128+32*rho
        c+=[f"WAITLG fr{rho}"]
        for i in range(8): c+=[f"v_add_f32 v{b+i}, v{b+i}, v{b+8+i}", f"v_add_f32 v{b+16+i}, v{b+16+i}, v{b+24+i}"]
        for i in range(8): c+=[f"v_add_f32 v{b+i}, v{b+i}, v{b+16+i}"]
        for i in range(4): c+=[f"v_cvt_pk_bf16_f32 v{b+8+i}, v{b+2*i}, v{b+2*i+1}"]
        c+=[f"buffer_store_dwordx4 {vr(b+8,4)}, v102, {SOUT}, {sT1 if rho==0 else sT0} offen ;@out"]
    return c

def xr_to_private():
    c=["v_and_b32 v252, 31, v0", f"v_lshl_add_u32 v252, v252, 8, {sM16K}", "v_lshrrev_b32 v253, 5, v0", "v_and_b32 v254, 15, v0"]
    for i in range(8):
        c+=[f"v_add_u32 v255, {2*i}, v253","v_xor_b32 v255, v255, v254",f"v_lshl_add_u32 {vXR[i]}, v255, 4, v252"]
    return c

def gemm2():
    one=lambda L: [[x] for x in L]
    c=[]
    c+=mask_H(0)+poll_check("ph")
    c+=flat(h_loads(0))
    c+=["WAITVM D0"]+tr_wd(0,XA)
    c+=mask_H(1)+poll_check("ph")
    c+=["WAITLG d0"]
    c+=flat(dma_wd(2,XA))
    c+=flat(h_loads(1))
    c+=["WAITVM D1"]+tr_wd(1,XB)
    c+=stamp()
    c+=g2_class(0,[(one(gen_G()),0,28)])
    c+=poll_issue("ph2")+["WAITLG d1"]+flat(dma_wd(3,XB))
    c+=mask_H(2)+poll_check("ph2")
    c+=flat(h_loads(2))
    c+=["WAITVM D2"]+tr_wd(2,XA)
    c+=g2_class(1,[(one(xr_to_private()),0,28)])
    c+=stamp()
    c+=pa_P()+poll_issue("pp")+["WAITLG d2"]+poll_check("pp")
    c+=flat(dma_rp(XA))
    c+=pa_H()+poll_issue("ph3")
    c+=["WAITVM D3"]+tr_wd(3,XB)
    fi=gen_Finv()
    c+=g2_class(2,[(one(fi[:110]),0,28)])
    c+=fi[110:]
    c+=stamp()
    c+=mask_H(3)+poll_check("ph3")
    c+=flat(h_loads(3))
    c+=vpart([])
    c+=stamp()
    sc=[f"v_mul_f32 v{HB[0]+32*dt+16*at+i}, {vG[at]}, v{HB[0]+32*dt+16*at+i}" for dt in range(2) for at in range(2) for i in range(16)]
    c+=g2_class(3,[(one(sc),4,28)])
    c+=stamp()
    c+=final()
    return c

MFW=0; MIV=32; BFR=64; CSV=96
CP1,CP2,CQ,CR1,CR2,CU=[128+16*i for i in range(6)]
CX=224
ZP=96
DD=32
def p2_consts():
    c=[]
    sC=sB
    c+=[f"s_cmp_eq_u32 {sC}, 0", f"s_cselect_b32 s69, -992, {sC}", f"s_cselect_b32 {sT3}, 1, 0"]
    c+=["v_and_b32 v228, 31, v0", "v_lshlrev_b32 v229, 6, v228", "v_cmp_gt_u32 vcc, 16, v228",
        "v_mov_b32 v230, s69", f"v_mov_b32 v231, {sC}", "v_cndmask_b32 v230, v230, v231, vcc", "v_add_u32 v229, v229, v230",
        "v_cvt_f32_u32 v232, v229", f"v_mul_f32 v232, {f2u(1/2048)}, v232",
        f"v_cvt_f32_u32 v236, {sT3}",
        "v_cndmask_b32 v234, v236, 0, vcc", "v_sub_f32 v233, 1.0, v234", "v_sub_f32 v235, 1.0, v236",
        "v_lshrrev_b32 v237, 5, v0", "v_lshlrev_b32 v237, 2, v237", "v_cvt_f32_u32 v237, v237", "v_mul_f32 v238, v237, v232",
        "v_cmp_eq_u32 vcc, 0, v229", "v_cndmask_b32 v239, 0, 1.0, vcc"]
    def blocks(base, idx, u0,u1,u2):
        o=[]
        for j2 in range(4):
            for blk in range(4):
                for e in range(2):
                    C=f"v{240+2*j2+e}"; S=f"v{248+2*j2+e}"; d=f"v{226+e}"
                    if blk==0: o+=[f"v_mul_f32 {d}, {u0}, {C}"]
                    if blk==1: o+=[f"v_mul_f32 {d}, {u1}, {C}", f"v_fma_f32 {d}, -{S}, {u2}, {d}"]
                    if blk==2: o+=[f"v_mul_f32 {d}, {u0}, {S}"]
                    if blk==3: o+=[f"v_mul_f32 {d}, {u2}, {C}", f"v_fma_f32 {d}, {S}, {u1}, {d}"]
                o+=["v_cvt_pk_bf16_f32 v226, v226, v227", f"v_accvgpr_write_b32 a{base+(blk*2+idx)*4+j2}, v226"]
        return o
    for kh in range(2):
        for j in range(8): c+=[f"v_fmamk_f32 v{248+j}, v232, {f2u(16*kh+8*(j//4)+j%4)}, v238"]
        for j in range(8): c+=[f"v_cos_f32 v{240+j}, v{248+j}", f"v_sin_f32 v{248+j}, v{248+j}"]
        for j in range(8): c+=[f"v_add_f32 v{248+j}, v{248+j}, v239" if j%2==0 else f"v_sub_f32 v{248+j}, v{248+j}, v239"]
        c+=blocks(MFW,kh,"v233","v234","v235")
    c+=["v_cvt_f32_u32 v232, v228", f"v_mul_f32 v232, {f2u(1/2048)}, v232", f"v_mul_f32 v229, {f2u(64.0)}, v232",
        "v_and_b32 v239, 1, v0", "v_cvt_f32_u32 v239, v239", "v_fma_f32 v239, v239, -2.0, 1.0", "v_mul_f32 v239, v239, v236",
        "v_cmp_gt_u32 vcc, 32, v0", "v_cndmask_b32 v239, 0, v239, vcc"]
    for sg in range(2):
        off = sC if sg==0 else "s69"
        c+=[f"v_cvt_f32_i32 v238, {off}", "v_mul_f32 v238, v238, v232", "v_fma_f32 v238, v237, v229, v238"]
        if sg==0: c+=["v_mov_b32 v233, 1.0","v_mov_b32 v234, 0"]
        else: c+=["v_mov_b32 v233, v235","v_mov_b32 v234, v236"]
        for j in range(8): c+=[f"v_fmamk_f32 v{248+j}, v229, {f2u(16*sg+8*(j//4)+j%4)}, v238"]
        for j in range(8): c+=[f"v_cos_f32 v{240+j}, v{248+j}", f"v_sin_f32 v{248+j}, v{248+j}"]
        if sg==0: c+=["v_add_f32 v248, v248, v239"]
        c+=blocks(MIV,sg,"v233","v234","v235")
    return c
def p2_coefs(gam):
    c=[]; sC=sB
    c+=["v_and_b32 v228, 31, v0", f"s_lshl_b32 {sT1}, {sW}, 6", f"s_add_u32 {sT1}, {sT1}, {32*gam}", f"v_add_u32 v228, {sT1}, v228",
        "v_cmp_eq_u32 vcc, 0, v228", "v_lshlrev_b32 v228, 1, v228", "v_mov_b32 v234, 512", "v_cndmask_b32 v229, v228, v234, vcc",
        f"v_mov_b32 v234, {f2u(2.0**-19)}", f"v_mov_b32 v235, {f2u(2.0**-20)}", "v_cndmask_b32 v230, v234, v235, vcc", "v_cndmask_b32 v231, v234, 0, vcc",
        "v_lshrrev_b32 v232, 5, v0", "v_lshlrev_b32 v232, 8, v232"]
    LD=32
    for half in range(2):
        for r8 in range(8):
            rho=8*half+r8; e0=8*(rho//4)+rho%4
            off = sC if half==0 else "s69"
            c+=[f"s_add_i32 {sT1}, {off}, {64*e0}", f"v_add_u32 v234, {sT1}, v232",
                "v_sub_u32 v235, 2048, v234", "v_and_b32 v235, 2047, v235"]
            if rho==0:
                c+=["v_cmp_eq_u32 vcc, 0, v234", "v_mov_b32 v236, 1024", "v_cndmask_b32 v235, v235, v236, vcc", "v_cndmask_b32 v233, 1.0, 0, vcc"]
            c+=["v_mul_u32_u24 v234, 514, v234", "v_mul_u32_u24 v235, 514, v235",
                "v_add_u32 v236, v234, v228", "v_add_u32 v237, v235, v228", "v_add_u32 v238, v234, v229", "v_add_u32 v239, v235, v229"]
            b=LD+8*r8
            for n,(a,srd) in enumerate([(236,SWR),(237,SWR),(236,SWI),(237,SWI),(238,SWR),(239,SWR),(238,SWI),(239,SWI)]):
                c+=[f"buffer_load_ushort v{b+n}, v{a}, {srd}, 0 offen ;@wl{r8}"]
            if r8==6: c+=["WAITVM wl0"]
        for r8 in range(8):
            rho=8*half+r8; b=LD+8*r8
            c+=[f"WAITVM wl{r8}"]
            for n in range(8): c+=[f"v_lshlrev_b32 v{b+n}, 16, v{b+n}"]
            rt,rm,it,im,rt2,rm2,it2,im2=[f"v{b+n}" for n in range(8)]
            if rho==0:
                c+=[f"v_fma_f32 v{CP1}, v233, {rm}, {rt}", f"v_fma_f32 v{CP2}, v233, {rm2}, {rt2}", f"v_fma_f32 v{CQ}, v233, {im}, {it}",
                    f"v_fma_f32 v{CX}, v233, {rt}, {rm}", f"v_fma_f32 v{CX+1}, v233, {rt2}, {rm2}", f"v_fma_f32 v{CX+2}, v233, {it}, {im}",
                    f"v_mul_f32 v{CX}, v230, v{CX}", f"v_mul_f32 v{CX+1}, v230, v{CX+1}", f"v_mul_f32 v{CX+2}, v231, v{CX+2}"]
            else:
                c+=[f"v_add_f32 v{CP1+rho}, {rt}, {rm}", f"v_add_f32 v{CP2+rho}, {rt2}, {rm2}", f"v_add_f32 v{CQ+rho}, {it}, {im}"]
            c+=[f"v_sub_f32 v{CR1+rho}, {it}, {im}", f"v_sub_f32 v{CR2+rho}, {it2}, {im2}", f"v_sub_f32 v{CU+rho}, {rt}, {rm}"]
            if rho==0:
                c+=[f"v_mul_f32 v{x}, v233, v{x}" for x in (CR1,CR2,CU)]
            c+=[f"v_mul_f32 v{x+rho}, v230, v{x+rho}" for x in (CP1,CP2,CR1,CR2)]
            c+=[f"v_mul_f32 v{x+rho}, v231, v{x+rho}" for x in (CQ,CU)]
    return c
def p2_group(gam):
    c=[]
    c+=[f"WAITVM RR{gam}"]
    for ks in range(4):
        for ct in range(2):
            for u in range(2):
                c+=[f"ds_read_b64_tr_b16 {ar(BFR+(ks*2+ct)*4+2*u,2)}, {vWT[ct]} offset:{gam*8192+ks*2048+u*1024} ;@b{ks}"]
    for ks in range(4):
        c+=[f"WAITLG b{ks}"]
        tau,kh=ks//2,ks%2
        for ab in range(2):
            for ct in range(2):
                d=vr(DD+32*ab+16*ct,16)
                c+=[MF32(d, ar(MFW+((ab*2+tau)*2+kh)*4,4), ar(BFR+(ks*2+ct)*4,4), d if ks else "0")]
    if gam==1:
        for i in range(99): c+=[f"v_accvgpr_read_b32 v{128+i}, a{CSV+i}"]
    T=228
    for r2 in range(8):
        for e in range(2):
            rho=2*r2+e
            ac,as_,bc,bs=[f"v{DD+16*i+rho}" for i in range(4)]
            p1,p2,q,r1,r2_,u=[f"v{x+rho}" for x in (CP1,CP2,CQ,CR1,CR2,CU)]
            p1b,p2b,qb=(f"v{CX}",f"v{CX+1}",f"v{CX+2}") if rho==0 else (p1,p2,q)
            o=[f"v{T+2*i+e}" for i in range(4)]
            c+=[f"v_mul_f32 {o[0]}, {ac}, {p1}", f"v_mul_f32 {o[1]}, {as_}, {p2}", f"v_mul_f32 {o[2]}, {bc}, {p1b}", f"v_mul_f32 {o[3]}, {bs}, {p2b}",
                f"v_fmac_f32 {o[0]}, {as_}, {q}", f"v_fma_f32 {o[1]}, -{ac}, {q}, {o[1]}", f"v_fmac_f32 {o[2]}, {bs}, {qb}", f"v_fma_f32 {o[3]}, -{bc}, {qb}, {o[3]}",
                f"v_fmac_f32 {o[0]}, {bc}, {r1}", f"v_fmac_f32 {o[1]}, {bs}, {r2_}", f"v_fma_f32 {o[2]}, -{ac}, {r1}, {o[2]}", f"v_fma_f32 {o[3]}, -{as_}, {r2_}, {o[3]}",
                f"v_fma_f32 {o[0]}, -{bs}, {u}, {o[0]}", f"v_fmac_f32 {o[1]}, {bc}, {u}", f"v_fmac_f32 {o[2]}, {as_}, {u}", f"v_fma_f32 {o[3]}, -{ac}, {u}, {o[3]}"]
        for i in range(4): c+=[f"v_cvt_pk_bf16_f32 v{ZP+8*i+r2}, v{T+2*i}, v{T+2*i+1}"]
    n=0
    for ab in range(2):
        for sg in range(2):
            for tau in range(2):
                for ct in range(2):
                    d=vr(DD+32*tau+16*ct,16)
                    c+=[MF32(d, vr(ZP+8*(2*ab+ct)+4*sg,4), ar(MIV+((ab*2+tau)*2+sg)*4,4), d if n else "0")]
            n+=1
    for sg in range(2):
        c+=[f"v_xor_b32 v{236+sg}, {(gam*2+sg)*2*16}, v238"]
    for tau in range(2):
        for ct in range(2):
            for sg in range(2):
                s=DD+32*tau+16*ct+8*sg; t=240+4*((2*ct+sg)%4)
                for i in range(4): c+=[f"v_cvt_pk_bf16_f32 v{t+i}, v{s+2*i}, v{s+2*i+1}"]
                c+=[f"ds_write_b128 v{236+sg}, {vr(t,4)} offset:{tau*256+ct*128} ;@ow"]
    return c
def p2():
    c=["L_p2:"]
    c+=flag_R()
    c+=wd_setup()
    c+=p2_consts()
    c+=p2_coefs(1)
    for i in range(99): c+=[f"v_accvgpr_write_b32 a{CSV+i}, v{128+i}"]
    c+=p2_coefs(0)
    c+=[f"s_and_b32 {sT1}, {sB}, 24", f"s_lshl_b32 {sT0}, {sW}, 1", f"s_add_u32 {sT1}, {sT1}, {sT0}", f"s_lshl_b32 {sT1}, {sT1}, 8",
        f"s_add_u32 {sT1}, {sT1}, {WS_FR}", f"v_lshl_add_u32 {vPA}, {vL}, 3, {sT1}", f"s_mov_b64 {sPM}, -1"]
    c+=["v_lshrrev_b32 v236, 3, v0","v_and_b32 v237, 7, v0","v_and_b32 v238, 2, v236","v_lshlrev_b32 v238, 1, v238","v_xor_b32 v237, v237, v238",
        "v_lshlrev_b32 v237, 4, v237","v_lshl_add_u32 v239, v236, 16, v237",
        "v_and_b32 v236, 31, v0","v_lshrrev_b32 v237, 5, v0","v_and_b32 v238, 7, v0","v_xor_b32 v237, v237, v238","v_lshlrev_b32 v237, 4, v237",
        "v_lshl_add_u32 v237, v236, 9, v237", f"s_add_u32 {sT1}, {sM16K}, {XB}", f"v_add_u32 v238, {sT1}, v237"]
    c+=stamp()
    c+=["s_barrier"]
    c+=poll_issue("pr")+poll_check("pr")
    c+=stamp()
    c+=[f"s_lshl_b32 {sT1}, {sB}, 8", f"s_add_u32 {sT1}, {sT1}, {sM16K}", f"s_add_u32 {sWDS}, {sT1}, {WS_R}"]
    for gam in range(2):
        for rg in range(8):
            c+=[f"s_add_u32 m0, {sM16K}, {XA+gam*8192+rg*1024}", f"s_add_u32 {sT0}, {sWDS}, {gam*8192+(rg%4)*8*65536+(rg//4)*128}",
                f"buffer_load_dwordx4 v239, {SWS}, {sT0} offen sc1 lds ;@RR{gam}"]
    c+=p2_group(0)+p2_group(1)
    c+=["v_bfe_u32 v228, v0, 4, 1", f"s_lshl_b32 {sT1}, {sB}, 1", f"v_add_u32 v229, {sT1}, v228", "v_xor_b32 v229, v229, v0", "v_and_b32 v229, 15, v229",
        "v_lshrrev_b32 v230, 5, v0", "v_xor_b32 v229, v229, v230", "v_lshlrev_b32 v229, 4, v229",
        "v_lshrrev_b32 v231, 4, v0", "v_lshl_add_u32 v229, v231, 8, v229", f"s_add_u32 {sT1}, {sM16K}, {XB}", f"v_add_u32 v229, {sT1}, v229"]
    for i in range(1,4): c+=[f"v_xor_b32 v{229+i*2}, {i*32}, v229"]
    c+=["v_and_b32 v236, 31, v0", "v_lshlrev_b32 v236, 4, v236", "v_lshl_add_u32 v236, v230, 16, v236",
        f"s_lshl_b32 {sT1}, {sB}, 9", f"s_add_u32 {sT1}, {sT1}, {sM16K}", f"s_add_u32 {sWDS}, {sT1}, {WS_RP}", "WAITLG all"]
    for i in range(16): c+=[f"ds_read_b128 {vr(32+4*i,4)}, v{229+2*(i%4)} offset:{i*1024} ;@or{i}"]
    for i in range(16):
        c+=[f"s_add_u32 {sT0}, {sWDS}, {i*131072}", f"WAITLG or{i}", f"buffer_store_dwordx4 {vr(32+4*i,4)}, v236, {SWS}, {sT0} offen sc1 ;@Pst"]
    c+=flat(dma_wd(0,XA))
    c+=[f"s_lshl_b32 {sT2}, {sW}, 5", f"s_add_u32 {sT2}, {sT2}, {sB}", f"s_lshl_b32 {sT2}, {sT2}, 3", f"s_add_u32 {sT2}, {sT2}, {WS_FP}",
        "WAITVM Pst", f"buffer_store_dwordx2 {vNON}, {vFO}, {SWS}, {sT2} offen sc1 ;@fl"]
    c+=stamp()
    c+=flat(dma_wd(1,XB))
    c+=pa_H()+poll_issue("ph")+["WAITVM all","s_branch L_g2"]
    return c

def tail():
    c=[]
    c+=["s_cmp_lg_u32 s2, 0","s_cbranch_scc1 L_noe", f"buffer_store_dwordx2 {vNON}, {vFO}, {SWS}, 0 offen sc1", "L_noe:"]
    if opt.stamps:
        c+=["s_waitcnt vmcnt(0)"]
        c+=["s_memtime s[98:99]","s_memrealtime s[96:97]","s_waitcnt lgkmcnt(0)",
            f"s_lshl_b32 {sT0}, s2, 2", f"s_add_u32 {sT0}, {sT0}, {sW}", f"s_lshl_b32 {sT0}, {sT0}, 7", f"s_add_u32 {sT0}, {sT0}, {WS_DBG}"]
        for i in range(16):
            c+=[f"v_mov_b32 v8, s{70+2*i}", f"buffer_store_dword v8, {vFO}, {SWS}, {sT0} offen offset:{4*i}"]
    c+=["L_end:","s_endpgm"]
    return c

def build():
    nstamp[0]=0; lab[0]=0
    a=prologue()+startup()+p0()
    n0=nstamp[0]
    br=[f"s_cmp_eq_u32 {sCG}, 7","s_cbranch_scc1 L_p2"]
    m=round0()+stamp()+round_n(1)+round_n(2)+stamp()+round_n(3)
    m+=flat(dma_wd(1,XB)[6:])+pa_H()+poll_issue("ph")+flat(flag_H(2))+set_hs(3)+epilogue(3)+flat(flag_H(3))+stamp()
    n1=nstamp[0]
    g2=["L_g2:"]+gemm2()+tail()
    n2=nstamp[0]
    nstamp[0]=n0
    pp=p2()
    assert nstamp[0]<=n1
    assert n2<=13
    main,ad1=finalize(a+br+m+g2)
    full,ad2=finalize(a+["L_mark:"]+pp)
    idx=[i for i,x in enumerate(full) if x.text=="L_mark:"][0]
    side=full[idx+1:]
    return main+side

HEAD = open("gated_mix__spectral_gfnet__glu_gated_geglu__prompt.s.ref").read().split("; Override launch")[0]
def emit(path):
    code=build()
    s=HEAD+"; @launch grid=(256,1,1) block=(256,1,1) lds=163840\n"
    s+='.amdgcn_target "amdgcn-amd-amdhsa--gfx950"\n.text\n'
    s+=f".globl {KNAME}\n.p2align 8\n.type {KNAME},@function\n{KNAME}:\n"
    for ins in code:
        t=ins.text.split(";")[0].rstrip()
        t=" ".join(t.split())
        s+=(t if ins.kind=="label" else "    "+t)+"\n"
    s+='.section .rodata,"a"\n.p2align 6\n'
    s+=f".amdhsa_kernel {KNAME}\n  .amdhsa_next_free_vgpr 512\n  .amdhsa_next_free_sgpr 102\n  .amdhsa_accum_offset 256\n"
    s+="  .amdhsa_group_segment_fixed_size 0\n  .amdhsa_kernarg_size 88\n  .amdhsa_user_sgpr_count 2\n  .amdhsa_user_sgpr_kernarg_segment_ptr 1\n"
    s+="  .amdhsa_system_sgpr_workgroup_id_x 1\n  .amdhsa_float_denorm_mode_32 3\n.end_amdhsa_kernel\n"
    open(path,"w").write(s)
    return code
if __name__=="__main__":
    out=sys.argv[1]
    for a in sys.argv[2:]:
        k,v=a.split("=")
        cur=getattr(opt,k)
        setattr(opt,k, (v=="1") if isinstance(cur,bool) else (int(v) if isinstance(cur,int) else v))
    code=emit(out)
    from collections import Counter
    print(len(code), Counter(i.kind for i in code))
```

```python
import sys, struct, math
from asmlib import *

KNAME = "gated_mix__spectral_gfnet__glu_gated_geglu__prompt_kernel"
def f2u(x): return "0x%08x" % struct.unpack("<I", struct.pack("<f", x))[0]

WS_E   = 0x0
WS_FR  = 0x1000
WS_FP  = 0x4000
WS_FH  = 0x8000
WS_R   = 0x100000
WS_RP  = 0x300000
WS_H   = 0x500000
WS_DBG = 0xD00000
WS_SIZE = 0x10000000
XA, XB, C0, C1 = 0, 65536, 131072, 147456
L_GW, L_G, L_RB = C1, C1+1024, C1+2048
SX,SWG,SWU,SWD,SWS,SOUT,SGW,SWR,SWI = [f"s[{i}:{i+3}]" for i in (4,8,12,16,20,24,28,32,36)]
sNON="s[40:41]"
sW,sB,sCG,sRES,sRB4,sFB,sP,sQ = "s42","s43","s44","s45","s46","s47","s48","s49"
sXS,sWS0,sM4K,sHS,sFHS,sWDS,sM16K = "s50","s51","s52","s53","s54","s55","s56"
sT0,sT1,sT2,sT3 = "s58","s59","s60","s61"
sGC0,sGC1="s62","s63"
sPM="s[64:65]"; sPT="s[66:67]"; sCNT="s68"
vL, vL16, vFO = "v0","v1","v2"
vG = ["v3","v4"]; vOMG=["v28","v29"]
vNON="v[6:7]"
vXO=[f"v{8+i}" for i in range(4)]
vXR=[f"v{12+i}" for i in range(8)]
vWO=[f"v{20+i}" for i in range(4)]
vWT=[f"v{24+i}" for i in range(4)]
vPOLL="v[30:31]"; vPA="v5"
def vr(a,n): return f"v[{a}:{a+n-1}]"
def ar(a,n): return f"a[{a}:{a+n-1}]"
ACC=32; XR=96; ET=128; HP=152

class Opt:
    stamps=False
    ldx=""
    ldw=""
    ldd=""
    stop=99
    dbg=False
opt=Opt()
nstamp=[0]
def stamp():
    if not opt.stamps: return []
    i=nstamp[0]; nstamp[0]+=1
    assert i<16
    return [f"s_memtime s[{70+2*i}:{71+2*i}]","s_waitcnt lgkmcnt(0)"]

def MF32(d,a,b,c): return f"v_mfma_f32_32x32x16_bf16 {d}, {a}, {b}, {c}"
def MF16(d,a,b,c): return f"v_mfma_f32_16x16x32_bf16 {d}, {a}, {b}, {c}"

def dma_x(slot, kq, rnd, tag):
    g=[[f"s_add_u32 m0, {sM4K}, {slot+kq*16384}", f"s_add_u32 {sT0}, {sXS}, {kq*256}",
        f"buffer_load_dwordx4 {vXO[0]}, {SX}, {sT0} offen {opt.ldx} lds ;@{tag}"]]
    for j in range(1,4):
        g.append([f"buffer_load_dwordx4 {vXO[j]}, {SX}, {sT0} offen offset:{j*1024} {opt.ldx} lds ;@{tag}"])
    return g
def set_xs(rnd):
    return [f"s_add_u32 {sT1}, {sRES}, {rnd}", f"s_and_b32 {sT1}, {sT1}, 3", f"s_add_u32 {sT1}, {sT1}, {sRB4}",
            f"s_lshl_b32 {sT1}, {sT1}, 10", f"s_lshl_b32 {sXS}, {sW}, 19", f"s_add_u32 {sXS}, {sXS}, {sT1}"]
RING=[XB, XB+16384, XB+32768, XB+49152, C0]
def wslot(n): return RING[(n+2)%5]
def dma_w(i):
    tag=f"W{i}"
    g=[[f"s_add_u32 m0, {sM4K}, {wslot(i)}", f"s_add_u32 {sT0}, {sWS0}, {64*i*3584}",
        f"buffer_load_dwordx4 {vWO[0]}, {SWG}, {sT0} offen {opt.ldw} lds ;@{tag}"],
       [f"buffer_load_dwordx4 {vWO[1]}, {SWU}, {sT0} offen offset:1024 {opt.ldw} lds ;@{tag}"],
       [f"buffer_load_dwordx4 {vWO[2]}, {SWG}, {sT0} offen offset:2048 {opt.ldw} lds ;@{tag}"],
       [f"buffer_load_dwordx4 {vWO[3]}, {SWU}, {sT0} offen offset:3072 {opt.ldw} lds ;@{tag}"]]
    return g
def flat(g): return [i for x in g for i in (x if isinstance(x,list) else [x])]

def sprinkle(main, items, every, start=0):
    out=[]; items=list(items); main=mk(main)
    for n,ins in enumerate(main):
        if items and n>=start and (n-start)%every==0: out+=mk(items.pop(0))
        out.append(ins)
    for it in items: out+=mk(it)
    return out

def prologue():
    c=[]
    c+=["s_cmp_ge_u32 s2, 256","s_cbranch_scc1 L_end"]
    if opt.stamps: c+=["s_memrealtime s[100:101]"]
    c+=stamp()
    c+=["s_load_dwordx4 s[4:7], s[0:1], 0",
        "s_load_dwordx2 s[36:37], s[0:1], 16",
        "s_load_dwordx8 s[8:15], s[0:1], 32",
        "s_load_dwordx2 s[24:25], s[0:1], 64",
        "s_load_dwordx2 s[20:21], s[0:1], 80"]
    c+=["v_lshrrev_b32 v5, 6, v0","v_and_b32 v0, 63, v0",f"v_readfirstlane_b32 {sW}, v5",
        f"v_lshlrev_b32 {vL16}, 4, {vL}",
        f"s_and_b32 {sT0}, s2, 7", f"s_lshr_b32 {sT1}, s2, 3",
        f"s_and_b32 {sRES}, {sT0}, 3", f"s_lshr_b32 {sCG}, {sT1}, 2",
        f"s_and_b32 {sT0}, {sT0}, 4", f"s_and_b32 {sT1}, {sT1}, 3", f"s_add_u32 {sT0}, {sT0}, {sT1}",
        f"s_lshl_b32 {sRB4}, {sT0}, 2", f"s_add_u32 {sB}, {sRB4}, {sRES}",
        f"s_mul_i32 {sFB}, {sRES}, 7", f"s_add_u32 {sFB}, {sFB}, {sCG}",
        f"s_lshr_b32 {sP}, {sW}, 1", f"s_and_b32 {sQ}, {sW}, 1",
        f"s_lshl_b32 {sM4K}, {sW}, 12", f"s_lshl_b32 {sM16K}, {sW}, 14"]
    c+=set_xs(0)
    c+=["v_lshrrev_b32 v128, 4, v0", "v_and_b32 v129, 15, v0"]
    for j in range(4):
        c+=[f"v_add_u32 v130, {4*j}, v128", "v_xor_b32 v131, v129, v130", "v_lshlrev_b32 v131, 4, v131",
            "v_lshl_add_u32 v131, v130, 15, v131", f"v_subrev_u32 {vXO[j]}, {j*1024}, v131"]
    c+=["v_lshrrev_b32 v128, 3, v0", "v_and_b32 v129, 7, v0", "v_and_b32 v130, 2, v128",
        "v_xor_b32 v129, v129, v130", "v_mul_u32_u24 v128, 3584, v128",
        "v_lshl_add_u32 v131, v129, 4, v128",
        "v_xor_b32 v129, 4, v129", "v_lshl_add_u32 v132, v129, 4, v128",
        f"v_mov_b32 {vWO[0]}, v131", f"v_mov_b32 {vWO[1]}, v132",
        f"v_add_u32 {vWO[2]}, {8*3584-2048}, v131", f"v_add_u32 {vWO[3]}, {8*3584-2048}, v132"]
    c+=[f"s_mul_i32 {sWS0}, {sW}, {16*3584}", f"s_lshl_b32 {sT0}, {sFB}, 7", f"s_add_u32 {sWS0}, {sWS0}, {sT0}"]
    c+=["s_waitcnt lgkmcnt(0)"]
    c+=["s_mov_b32 s32, s6","s_mov_b32 s33, s7","s_mov_b32 s34, 1052672","s_mov_b32 s35, 0x20000",
        "s_mov_b32 s6, 0x200000","s_mov_b32 s7, 0x20000",
        "s_mov_b32 s38, 1052672","s_mov_b32 s39, 0x20000",
        "s_mov_b32 s28, s14","s_mov_b32 s29, s15","s_mov_b32 s30, 1024","s_mov_b32 s31, 0x20000",
        "s_mov_b32 s16, s12","s_mov_b32 s17, s13","s_mov_b32 s18, 1835008","s_mov_b32 s19, 0x20000",
        "s_sub_u32 s12, s10, 1024","s_subb_u32 s13, s11, 0",
        f"s_cmp_eq_u32 {sCG}, 7",
        "s_cselect_b32 s10, 0, 1835008","s_cselect_b32 s14, 0, 1836032",
        "s_mov_b32 s11, 0x20000","s_mov_b32 s15, 0x20000",
        f"s_mov_b32 s22, {WS_SIZE}","s_mov_b32 s23, 0x20000",
        "s_mov_b32 s26, 0x200000","s_mov_b32 s27, 0x20000"]
    return c

FF=160; HF=224; PAD=64
def gen_F():
    c=[]
    c+=["v_and_b32 v128, 15, v0", f"s_and_b32 {sT2}, {sW}, 1", f"s_lshl_b32 {sT2}, {sT2}, 4",
        f"s_lshl_b32 {sT3}, {sCG}, 5", f"s_add_u32 {sT2}, {sT2}, {sT3}",
        f"v_add_u32 v128, {sT2}, v128",
        f"v_cvt_f32_u32 v129, {sP}", f"v_mul_f32 v129, {f2u(-0.25)}, v129",
        f"s_lshl_b32 {sT3}, {sP}, 8", f"v_mov_b32 v130, {sT3}",
        "v_cmp_eq_u32 vcc, 0, v128", "v_cndmask_b32 v128, v128, v130, vcc", "v_cndmask_b32 v129, v129, 0, vcc",
        "v_cvt_f32_u32 v128, v128", f"v_mul_f32 v128, {f2u(1/512)}, v128",
        "v_lshrrev_b32 v130, 4, v0", "v_lshlrev_b32 v130, 3, v130", "v_cvt_f32_u32 v130, v130",
        "v_fma_f32 v129, v130, v128, v129",
        f"v_mul_f32 v130, {f2u(32.0)}, v128", "v_cos_f32 v130, v130", "v_add_f32 v130, v130, v130"]
    S0,S1=132,140
    for ks in range(2):
        S=S0 if ks==0 else S1
        for j in range(8):
            c+=[f"v_fmamk_f32 v{S+j}, v128, {f2u(32*ks+j)}, v129"]
        for j in range(8):
            c+=[f"v_cos_f32 v{S+j}, v{S+j}"]
        for j in range(4):
            c+=[f"v_cvt_pk_bf16_f32 v{FF+4*ks+j}, v{S+2*j}, v{S+2*j+1}"]
    for ks in range(2,16):
        P,Cu=(S0,S1) if ks%2==0 else (S1,S0)
        for j in range(8):
            c+=[f"v_fma_f32 v{P+j}, v130, v{Cu+j}, -v{P+j}"]
        for j in range(4):
            c+=[f"v_cvt_pk_bf16_f32 v{FF+4*ks+j}, v{P+2*j}, v{P+2*j+1}"]
    return c
def gen_H():
    c=[]
    AF=96
    c+=["v_lshrrev_b32 v128, 4, v0","v_lshlrev_b32 v128, 2, v128"]
    for t in range(4):
        c+=[f"s_add_u32 {sT2}, {sW}, {t}", f"s_and_b32 {sT2}, {sT2}, 3", f"s_lshl_b32 {sT2}, {sT2}, 4",
            f"v_add_u32 v129, {sT2}, v128", f"v_cvt_f32_u32 v{AF+4*t}, v129"]
        for i in range(1,4): c+=[f"v_add_f32 v{AF+4*t+i}, 1.0, v{AF+4*t+i-1}"]
    c+=["v_and_b32 v128, 15, v0","v_lshrrev_b32 v129, 1, v128","v_cvt_f32_u32 v129, v129",
        f"v_mul_f32 v129, {f2u(1/64)}, v129",
        "v_and_b32 v130, 1, v0","v_cvt_f32_u32 v130, v130",f"v_mul_f32 v130, {f2u(-0.25)}, v130",
        "v_cmp_eq_u32 vcc, 1, v128","v_mov_b32 v133, 0.5","v_cndmask_b32 v131, v129, v133, vcc","v_cndmask_b32 v132, v130, 0, vcc"]
    T=112
    for tj in range(4):
        cf,ph=("v131","v132") if tj==0 else ("v129","v130")
        if tj>0: c+=[f"v_add_f32 v129, {f2u(0.125)}, v129"]
        for e in range(16): c+=[f"v_fma_f32 v{T+e}, v{AF+e}, {cf}, {ph}"]
        for e in range(16): c+=[f"v_cos_f32 v{T+e}, v{T+e}"]
        for e in range(8):  c+=[f"v_cvt_pk_bf16_f32 v{HF+8*tj+e}, v{T+2*e}, v{T+2*e+1}"]
    return c
def gen_addr():
    c=[]
    c+=[f"v_mov_b32 v128, 0x40000000","v_cmp_eq_u32 vcc, 0, v0",f"v_cndmask_b32 {vFO}, v128, 0, vcc"]
    c+=["v_and_b32 v128, 15, v0","v_lshrrev_b32 v129, 4, v0"]
    for i in range(4):
        c+=[f"v_add_u32 v130, {4*i}, v129","v_xor_b32 v130, v130, v128","v_lshlrev_b32 v130, 4, v130",f"v_lshl_add_u32 v{132+i}, v128, 8, v130"]
    for t in range(4):
        c+=[f"s_add_u32 {sT2}, {sW}, {t}", f"s_and_b32 {sT2}, {sT2}, 3", f"s_lshl_b32 {sT2}, {sT2}, 12"]
        for i in range(4): c+=[f"v_add_u32 v{PAD+4*t+i}, {sT2}, v{132+i}"]
    c+=["v_lshlrev_b32 v80, 4, v129", f"v_add_u32 v80, {L_GW}, v80"]
    c+=["v_lshrrev_b32 v130, 1, v129", f"s_lshl_b32 {sT2}, {sW}, 1", f"v_add_u32 v130, {sT2}, v130",
        "v_and_b32 v131, 7, v0","v_xor_b32 v130, v130, v131","v_lshlrev_b32 v130, 4, v130","v_lshl_add_u32 v130, v128, 7, v130",
        "v_and_b32 v131, 1, v129","v_lshl_add_u32 v130, v131, 3, v130", f"v_add_u32 v81, {L_RB}, v130"]
    c+=["v_lshrrev_b32 v130, 3, v0","v_and_b32 v131, 7, v0","v_xor_b32 v131, v131, v130","v_lshlrev_b32 v131, 4, v131",
        "v_lshl_add_u32 v131, v130, 7, v131", f"s_lshl_b32 {sT2}, {sW}, 11", f"s_add_u32 {sT2}, {sT2}, {L_RB}", f"v_add_u32 v82, {sT2}, v131"]
    c+=[f"s_lshl_b32 {sT2}, {sW}, 6", f"s_add_u32 {sT2}, {sT2}, {L_G}", f"v_lshl_add_u32 v83, v128, 2, {sT2}",
        "v_and_b32 v130, 31, v0","v_lshlrev_b32 v130, 2, v130", f"v_add_u32 v84, {L_G}, v130"]
    c+=["v_and_b32 v130, 31, v0", f"s_lshl_b32 {sT2}, {sQ}, 13", f"v_lshl_add_u32 v130, v130, 8, {sT2}", "v_lshrrev_b32 v131, 5, v0"]
    for i in range(8):
        c+=[f"v_add_u32 v132, {2*i}, v131","v_xor_b32 v132, v132, v128",f"v_lshl_add_u32 {vXR[i]}, v132, 4, v130"]
    c+=["v_lshrrev_b32 v130, 4, v0","v_lshlrev_b32 v130, 10, v130",
        "v_bfe_u32 v131, v0, 2, 2","v_lshl_add_u32 v130, v131, 7, v130",
        "v_and_b32 v131, 3, v0","v_lshl_add_u32 v130, v131, 3, v130",
        "v_bfe_u32 v131, v0, 3, 2"]
    for tau in range(2):
        c+=[f"s_lshl_b32 {sT2}, {sP}, 1", f"s_add_u32 {sT2}, {sT2}, {tau}", f"v_xor_b32 v132, {sT2}, v131",
            "v_lshl_add_u32 v132, v132, 5, v130", f"v_add_u32 {vWT[tau]}, {XB}, v132", f"v_add_u32 {vWT[2+tau]}, {C0}, v132"]
    c+=[f"s_mov_b32 {sGC0}, {f2u(-2*math.sqrt(2/math.pi)*math.log2(math.e))}",
        f"s_mov_b32 {sGC1}, {f2u(-2*math.sqrt(2/math.pi)*math.log2(math.e)*0.044715)}"]
    return c

def startup():
    dm=[]
    for kq in range(4): dm+=dma_x(XA,kq,0,"x0")
    dm.insert(0,[f"s_mov_b32 m0, {L_GW}","v_mov_b32 v5, 0",f"buffer_load_dwordx4 {vL16}, {SGW}, 0 offen lds ;@x0"])
    dm.append([f"buffer_load_dwordx2 {vNON}, v5, {SWS}, 0 offen sc1 ;@x0"])
    main=gen_addr()+gen_F()+gen_H()
    c=sprinkle(main, dm, 16)
    return c

def p0():
    c=[]
    TA=32; GA=48; RA=32+20
    GF=144
    c+=["WAITVM x0","s_barrier"]
    c+=stamp()
    c+=["v_readfirstlane_b32 s40, v6","v_readfirstlane_b32 s41, v7",
        "s_mul_i32 s40, s40, 0x9E3779B1","s_add_u32 s40, s40, 0x7F4A7C15",
        "s_mul_i32 s41, s41, 0x85EBCA6D","s_add_u32 s41, s41, 0xC2B2AE35",
        "v_mov_b32 v6, s40","v_mov_b32 v7, s41"]
    def reads(ks):
        r=[]
        for t in range(4):
            r.append(f"ds_read_b128 {vr(XR+16*(ks%2)+4*t,4)}, v{PAD+4*t+ks%4} offset:{(ks//4)*16384} ;@p{ks}")
        r.append(f"ds_read_b128 {vr(GF+4*(ks%2),4)}, v80 offset:{ks*64} ;@p{ks}")
        return r
    wd=[]
    for i in range(5): wd+=dma_w(i)
    c+=reads(0)
    for ks in range(16):
        nx=reads(ks+1) if ks<15 else []
        mf=[]
        for t in range(4):
            mf.append(MF16(vr(TA+4*t,4), vr(XR+16*(ks%2)+4*t,4), vr(FF+4*ks,4), vr(TA+4*t,4) if ks else "0"))
        mf.append(MF16(vr(GA,4), vr(GF+4*(ks%2),4), vr(XR+16*(ks%2),4), vr(GA,4) if ks else "0"))
        c+=[f"WAITLG p{ks}"]
        for i in range(5):
            c+=[mf[i]]
            if nx: c+=[nx[i]]
            if i in (1,3) and wd and (i==1 or ks%4==0): c+=wd.pop(0)
    for g in wd: c+=g
    TP=128
    for t in range(4):
        c+=[f"v_cvt_pk_bf16_f32 v{TP+2*t}, v{TA+4*t}, v{TA+4*t+1}", f"v_cvt_pk_bf16_f32 v{TP+2*t+1}, v{TA+4*t+2}, v{TA+4*t+3}"]
    RA=96
    for sg in range(2):
        for tj in range(4):
            c+=[MF16(vr(RA+4*tj,4), vr(TP+4*sg,4), vr(HF+8*tj+4*sg,4), vr(RA+4*tj,4) if sg else "0")]
    c+=[f"v_mul_f32 v136, {f2u(-math.log2(math.e))}, v{GA}","v_exp_f32 v136, v136","v_add_f32 v136, 1.0, v136","v_rcp_f32 v136, v136",
        "ds_write_b32 v83, v136 ;@bw"]
    for tj in range(4):
        c+=[f"v_cvt_pk_bf16_f32 v{138+2*tj}, v{RA+4*tj}, v{RA+4*tj+1}", f"v_cvt_pk_bf16_f32 v{139+2*tj}, v{RA+4*tj+2}, v{RA+4*tj+3}",
            f"ds_write_b64 v81, {vr(138+2*tj,2)} offset:{tj*2048} ;@bw"]
    c+=["WAITLG all","WAITVM W0","s_barrier"]
    c+=stamp()
    c+=[f"ds_read_b128 {vr(128,4)}, v82 ;@br", f"ds_read_b128 {vr(132,4)}, v82 offset:1024 ;@br",
        f"ds_read_b32 {vG[0]}, v84 ;@br", f"ds_read_b32 {vG[1]}, v84 offset:128 ;@br",
        f"s_lshl_b32 {sT2}, {sB}, 3", f"s_add_u32 {sT2}, {sT2}, {sCG}", f"s_lshl_b32 {sT2}, {sT2}, 13",
        f"s_lshl_b32 {sT3}, {sW}, 11", f"s_add_u32 {sT2}, {sT2}, {sT3}", f"s_add_u32 {sT2}, {sT2}, {WS_R}",
        "WAITLG br",
        f"buffer_store_dwordx4 {vr(128,4)}, {vL16}, {SWS}, {sT2} offen sc1 ;@Rst",
        f"buffer_store_dwordx4 {vr(132,4)}, {vL16}, {SWS}, {sT2} offen offset:1024 sc1 ;@Rst",
        f"v_sub_f32 {vOMG[0]}, 1.0, {vG[0]}", f"v_sub_f32 {vOMG[1]}, 1.0, {vG[1]}"]
    return c
def flag_R():
    return [f"s_lshl_b32 {sT2}, {sW}, 3", f"s_add_u32 {sT2}, {sT2}, {sCG}", f"s_lshl_b32 {sT2}, {sT2}, 5", f"s_add_u32 {sT2}, {sT2}, {sB}",
            f"s_lshl_b32 {sT2}, {sT2}, 3", f"s_add_u32 {sT2}, {sT2}, {WS_FR}", "WAITVM Rst",
            f"buffer_store_dwordx2 {vNON}, {vFO}, {SWS}, {sT2} offen sc1 ;@fl"]

def wfrag(tau,ks): return 128*tau+4*ks
def xread(ks, tag):
    return f"ds_read_b128 {vr(XR+4*(ks%8),4)}, {vXR[ks%8]} offset:{(ks//8)*16384} ;@{tag}"
def g1_mf(rnd,ks):
    s=ACC+32*(rnd%2)
    return [MF32(vr(s+16*t,16), ar(wfrag(t,ks),4), vr(XR+4*(ks%8),4), vr(s+16*t,16) if ks else "0") for t in range(2)]
def xr_move(delta):
    if delta>=0: return [f"v_add_u32 {r}, {delta}, {r}" for r in vXR]
    return [f"v_subrev_u32 {r}, {-delta}, {r}" for r in vXR]
def set_hs(rnd):
    return [f"s_add_u32 {sT1}, {sRES}, {rnd}", f"s_and_b32 {sT1}, {sT1}, 3", f"s_add_u32 {sT1}, {sT1}, {sRB4}",
            f"s_mul_i32 {sHS}, {sT1}, 28", f"s_add_u32 {sHS}, {sHS}, {sFB}", f"s_lshl_b32 {sHS}, {sHS}, 1", f"s_add_u32 {sHS}, {sHS}, {sP}",
            f"s_lshl_b32 {sHS}, {sHS}, 2", f"s_add_u32 {sHS}, {sHS}, {sQ}", f"s_lshl_b32 {sHS}, {sHS}, 10", f"s_add_u32 {sHS}, {sHS}, {WS_H}"]
def flag_H(rnd):
    return [[f"s_add_u32 {sT1}, {sRES}, {rnd}", f"s_and_b32 {sT1}, {sT1}, 3", f"s_add_u32 {sT1}, {sT1}, {sRB4}"],
            [f"s_lshl_b32 {sT1}, {sT1}, 1", f"s_add_u32 {sT1}, {sT1}, {sP}", f"s_lshl_b32 {sT1}, {sT1}, 5"],
            [f"s_add_u32 {sT1}, {sT1}, {sFB}", f"s_lshl_b32 {sT1}, {sT1}, 1", f"s_add_u32 {sT1}, {sT1}, {sQ}"],
            [f"s_lshl_b32 {sT1}, {sT1}, 3", f"s_add_u32 {sFHS}, {sT1}, {WS_FH}"],
            [f"WAITVM h{rnd}", f"buffer_store_dwordx2 {vNON}, {vFO}, {SWS}, {sFHS} offen sc1 ;@fl"]]
def epilogue(rnd):
    s=ACC+32*(rnd%2); c=[]
    for t in range(2):
        for hh in range(2):
            g=[s+16*t+4*hh+i for i in range(4)]; u=[x+8 for x in g]
            A=ET+8*((2*t+hh)%2); Bq=A+4
            for i in range(4): c+=[f"v_mul_f32 v{A+i}, v{g[i]}, v{g[i]}"]
            for i in range(4): c+=[f"v_fma_f32 v{A+i}, v{A+i}, {sGC1}, v{ET+16}"]
            for i in range(4): c+=[f"v_mul_f32 v{A+i}, v{A+i}, v{g[i]}"]
            for i in range(4): c+=[f"v_exp_f32 v{A+i}, v{A+i}", f"v_mul_f32 v{Bq+i}, v{g[i]}, v{u[i]}"]
            for i in range(4): c+=[f"v_add_f32 v{A+i}, 1.0, v{A+i}"]
            for i in range(4): c+=[f"v_rcp_f32 v{A+i}, v{A+i}"]
            for i in range(4): c+=[f"v_mul_f32 v{Bq+i}, v{Bq+i}, v{A+i}"]
            c+=[f"v_cvt_pk_bf16_f32 v{HP+4*t+2*hh}, v{Bq}, v{Bq+1}", f"v_cvt_pk_bf16_f32 v{HP+4*t+2*hh+1}, v{Bq+2}, v{Bq+3}"]
        c+=[f"buffer_store_dwordx4 {vr(HP+4*t,4)}, {vL16}, {SWS}, {sHS} offen offset:{2048*t} sc1 ;@h{rnd}"]
    return c

def round0():
    c=[f"v_mov_b32 v{ET+16}, {sGC0}"]
    for i in range(9):
        fill=[]
        if 1<=i<=3: fill+=dma_w(i+4)
        if i==4: fill+=[set_xs(1)]
        if 4<=i<=7: fill+=dma_x(XB,i-4,1,f"x1q{i-4}")
        if i==5: fill+=[flag_R()]
        rd=[]
        if i<8:
            sl=wslot(i); base=(2,C0) if sl==C0 else (0,XB)
            for ks in range(4):
                for t in range(2):
                    for u in range(2):
                        rd.append(f"ds_read_b64_tr_b16 {ar(wfrag(t,4*i+ks)+2*u,2)}, {vWT[base[0]+t]} offset:{sl-base[1]+ks*4096+u*512} ;@r")
                rd.append(xread(4*i+ks,"r"))
        else:
            rd+=[xr_move(XB-XA)]+[xread(ks,"r") for ks in range(4)]
            fill+=[set_xs(2)]+dma_x(XA,0,2,"x2")
        if i==0:
            c+=flat(fill)+flat(rd)
        else:
            mf=[m for ks in range(4*(i-1),4*i) for m in g1_mf(0,ks)]
            gaps=[[] for _ in mf]
            spread(gaps,rd,0,7); spread(gaps,fill,0,8)
            c+=weave(mf,gaps)
        if i<7: c+=["WAITLG all",f"WAITVM W{i+1}","s_barrier"]
        elif i==7: c+=["WAITLG all","WAITVM x1q1","s_barrier"]
    return c

def wd_setup():
    c=["v_lshrrev_b32 v160, 3, v0","v_and_b32 v161, 7, v0","v_and_b32 v162, 2, v160","v_lshlrev_b32 v162, 1, v162",
       "v_xor_b32 v161, v161, v162","v_lshlrev_b32 v161, 4, v161",f"v_lshl_add_u32 {vWO[0]}, v160, 10, v161",
       f"v_add_u32 {vWO[1]}, {8192-1024}, {vWO[0]}", f"v_add_u32 {vWO[2]}, {65536-2048}, {vWO[0]}", f"v_add_u32 {vWO[3]}, {65536+8192-3072}, {vWO[0]}",
       "v_lshrrev_b32 v160, 5, v0","v_lshlrev_b32 v160, 9, v160","v_bfe_u32 v161, v0, 2, 2","v_lshl_add_u32 v160, v161, 7, v160",
       "v_bfe_u32 v161, v0, 4, 1","v_lshl_add_u32 v160, v161, 5, v160","v_and_b32 v161, 3, v0","v_lshl_add_u32 v160, v161, 3, v160",
       f"v_add_u32 v160, {sM16K}, v160","v_bfe_u32 v161, v0, 3, 1",
       f"v_lshl_add_u32 {vWT[0]}, v161, 6, v160","v_xor_b32 v161, 1, v161",f"v_lshl_add_u32 {vWT[1]}, v161, 6, v160",
       f"v_add_u32 {vWT[2]}, {XB}, {vWT[0]}", f"v_add_u32 {vWT[3]}, {XB}, {vWT[1]}"]
    return c
def set_cls(i, dst, mul):
    return [f"s_sub_u32 {dst}, {sRES}, {i}", f"s_and_b32 {dst}, {dst}, 3", f"s_mul_i32 {dst}, {dst}, {mul}"]
def dma_wd(i, region):
    tag=f"D{i}"
    g=[set_cls(i,sWDS,7*65536)+[f"s_add_u32 {sWDS}, {sWDS}, {sM16K}"],[f"s_lshl_b32 {sT1}, {sCG}, 7", f"s_add_u32 {sWDS}, {sWDS}, {sT1}"]]
    for pr in range(4):
        n=4 if pr<3 else 2
        for j in range(n):
            pre=[f"s_add_u32 m0, {sM16K}, {region+pr*4096}", f"s_add_u32 {sT0}, {sWDS}, {pr*131072}"] if j==0 else []
            g.append(pre+[f"buffer_load_dwordx4 {vWO[j]}, {SWD}, {sT0} offen offset:{j*1024} {opt.ldd} lds ;@{tag}"])
    return g
def dfrag(i,fb,dt): return 56*i+8*fb+4*dt
def tr_wd(i, region):
    o=0 if region==XA else 2
    return [f"ds_read_b64_tr_b16 {ar(dfrag(i,fb,dt)+2*u,2)}, {vWT[o+dt]} offset:{fb*2048+u*1024} ;@d{i}" for fb in range(7) for dt in range(2) for u in range(2)]

def round_n(r):
    mf=[m for ks in range(32) for m in g1_mf(r,ks)]
    gaps=[[] for _ in mf]; pre={}
    for k4 in range(8):
        ks=4*k4
        pre[2*ks]=["WAITLG r"]
        if k4<7:
            if r==1 and k4==3: pre[2*ks]+=["WAITVM x1q3","s_barrier"]
            spread(gaps,[xread(k,"r") for k in range(ks+4,ks+8)],2*ks,2*ks+7)
        else:
            if r<3:
                pre[2*ks]+=[f"WAITVM x{r+1}","s_barrier"]
                mv=xr_move(XA-XB if r%2 else XB-XA)
                spread(gaps,[mv[:4]],2*ks-1,2*ks);
                spread(gaps,[xread(k,"r") for k in range(4)],2*ks,2*ks+7)
                spread(gaps,[mv[4:6],mv[6:8]],2*ks+4,2*ks+8)
            else:
                pre[2*ks]+=["s_barrier"]
    ep=[set_hs(r-1)[:6],set_hs(r-1)[6:]]+epilogue(r-1)
    spread(gaps,ep,0,56)
    dm=[]
    if r==1:
        for kq in range(1,4): dm+=dma_x(XA,kq,2,"x2")
        spread(gaps,dm,0,28)
    if r==2:
        dm=[set_xs(3)]
        for kq in range(4): dm+=dma_x(XB,kq,3,"x3")
        spread(gaps,dm,0,34)
        spread(gaps,[[x] for x in wd_setup()],36,55)
    if r==3:
        spread(gaps,dma_wd(0,XA),0,34)
        spread(gaps,dma_wd(1,XB)[:6],56,64)
    if r>=2: spread(gaps,flag_H(r-2),14,24)
    return weave(mf,gaps,pre)

lab=[0]
def poll_issue(tag): return [f"buffer_load_dwordx2 {vPOLL}, {vPA}, {SWS}, 0 offen sc1 ;@{tag}"]
def poll_check(tag):
    lab[0]+=1; n=lab[0]
    c=[f"s_mov_b32 {sCNT}, 100000", f"WAITVM {tag}", f"s_branch L_pc{n}",
       f"L_pl{n}:", f"buffer_load_dwordx2 {vPOLL}, {vPA}, {SWS}, 0 offen sc1 ;@skip", "s_waitcnt vmcnt(0) ;@skip",
       f"L_pc{n}:", f"v_cmp_eq_u64 vcc, {sNON}, {vPOLL}", f"s_and_b64 {sPT}, vcc, {sPM}", f"s_cmp_eq_u64 {sPT}, {sPM}", f"s_cbranch_scc1 L_pd{n}",
       f"s_sub_u32 {sCNT}, {sCNT}, 1", f"s_cmp_lg_u32 {sCNT}, 0", f"s_cbranch_scc1 L_pl{n}", f"L_pd{n}:"]
    return c
def pa_H():
    return [f"s_lshl_b32 {sT1}, {sB}, 1", f"s_add_u32 {sT1}, {sT1}, {sP}", f"s_lshl_b32 {sT1}, {sT1}, 9", f"s_add_u32 {sT1}, {sT1}, {WS_FH}",
            f"v_lshl_add_u32 {vPA}, {vL}, 3, {sT1}"]
def mask_H(i):
    return set_cls(i,sT1,14)+[f"s_mov_b64 {sPM}, 0x3fff", f"s_lshl_b64 {sPM}, {sPM}, {sT1}"]
def pa_P():
    return [f"s_lshl_b32 {sT1}, {sW}, 8", f"s_add_u32 {sT1}, {sT1}, {WS_FP}", f"v_lshl_add_u32 {vPA}, {vL}, 3, {sT1}",
            "s_mov_b32 s64, -1", "s_mov_b32 s65, 0"]

HB=[128,192]
def h_loads(i):
    g=[set_cls(i,sHS,7*8192)+[f"s_mul_i32 {sT1}, {sB}, {28*8192}", f"s_add_u32 {sHS}, {sHS}, {sT1}"],
       [f"s_lshl_b32 {sT1}, {sW}, 11", f"s_add_u32 {sHS}, {sHS}, {sT1}", f"s_add_u32 {sHS}, {sHS}, {WS_H}"]]
    for fb in range(7):
        for at in range(2):
            pre=[f"s_add_u32 {sT0}, {sHS}, {fb*8192}"] if at==0 else []
            g.append(pre+[f"buffer_load_dwordx4 {vr(HB[i%2]+8*fb+4*at,4)}, {vL16}, {SWS}, {sT0} offen offset:{at*1024} sc1 ;@H{i}_{fb}"])
    return g
def acc2(dt,at): return ACC+32*dt+16*at
def g2_class(i, fill, lo=0, hi=28):
    mf=[]; pre={}
    for fb in range(7):
        pre[4*fb]=[f"WAITVM H{i}_{fb}"]
        if fb==0: pre[0]+=[f"WAITLG d{i}"]
        for at in range(2):
            for dt in range(2):
                d=vr(acc2(dt,at),16)
                mf.append(MF32(d, ar(dfrag(i,fb,dt),4), vr(HB[i%2]+8*fb+4*at,4), d if (i or fb) else "0"))
    gaps=[[] for _ in mf]
    for (items,l,h) in fill: spread(gaps,items,l,h)
    return weave(mf,gaps,pre)
TT=184
FI=0
GF2=224
def gen_Finv():
    c=[]
    c+=["v_and_b32 v252, 31, v0", f"s_lshl_b32 {sT1}, {sCG}, 6", f"v_add_u32 v252, {sT1}, v252", "v_cvt_f32_u32 v248, v252",
        f"v_mul_f32 v248, {f2u(1/512)}, v248", f"v_add_f32 v249, {f2u(32/512)}, v248",
        "v_lshrrev_b32 v253, 5, v0", "v_lshlrev_b32 v253, 2, v253", f"s_lshl_b32 {sT1}, {sW}, 6", f"v_add_u32 v253, {sT1}, v253",
        "v_cmp_eq_u32 vcc, 0, v253", "v_cvt_f32_u32 v253, v253",
        "v_mul_f32 v250, v253, v248", "v_mul_f32 v251, v253, v249",
        "v_and_b32 v252, 1, v0", "v_cvt_f32_u32 v252, v252", "v_fma_f32 v252, v252, -2.0, 1.0",
        "v_cndmask_b32 v252, 0, v252, vcc"]
    for gs in range(4):
        for dt in range(2):
            for j in range(8):
                c+=[f"v_fmamk_f32 v{TT+j}, v{248+dt}, {f2u(16*gs+8*(j//4)+j%4)}, v{250+dt}"]
            for ct in range(2):
                op="v_cos_f32" if ct==0 else "v_sin_f32"
                for j2 in range(4):
                    c+=[f"{op} v254, v{TT+2*j2}", f"{op} v255, v{TT+2*j2+1}"]
                    if ct==1 and gs==0 and j2==0: c+=["v_add_f32 v254, v254, v252"]
                    c+=[f"v_cvt_pk_bf16_f32 v254, v254, v255", f"v_accvgpr_write_b32 a{FI+((ct*4+gs)*2+dt)*4+j2}, v254"]
    return c
def gen_G():
    c=[]
    c+=["v_and_b32 v252, 31, v0", "v_cvt_f32_u32 v248, v252", f"v_mul_f32 v248, {f2u(1/64)}, v248", "v_add_f32 v249, 0.5, v248",
        "v_lshrrev_b32 v253, 5, v0", "v_cmp_eq_u32 vcc, 0, v253", "v_lshlrev_b32 v253, 1, v253", "v_cvt_f32_u32 v253, v253",
        "v_mul_f32 v250, v253, v248", "v_mul_f32 v251, v253, v249",
        "v_and_b32 v252, 1, v0", "v_cvt_f32_u32 v252, v252", "v_fma_f32 v252, v252, -2.0, 1.0", "v_cndmask_b32 v252, 0, v252, vcc"]
    for js in range(4):
        for at in range(2):
            for j2 in range(4):
                cc=8*js+4*(j2//2)+j2%2
                c+=[f"v_fmamk_f32 v{TT+j2}, v{248+at}, {f2u(cc)}, v{250+at}"]
            for j2 in range(4):
                c+=[f"v_cos_f32 v254, v{TT+j2}", f"v_sin_f32 v255, v{TT+j2}"]
                if js==0 and j2==0: c+=["v_add_f32 v255, v255, v252"]
                c+=[f"v_cvt_pk_bf16_f32 v254, v254, v255", f"v_accvgpr_write_b32 a{GF2+(js*2+at)*4+j2}, v254"]
    return c
def dma_rp(region):
    g=[[f"s_lshl_b32 {sT1}, {sB}, 16", f"s_add_u32 {sT1}, {sT1}, {sM16K}", f"s_add_u32 {sWDS}, {sT1}, {WS_RP}"]]
    for i in range(16):
        pre=[f"s_add_u32 m0, {sM16K}, {region+(i//4)*4096}", f"s_add_u32 {sT0}, {sWDS}, {(i//4)*4096}"] if i%4==0 else []
        g.append(pre+[f"buffer_load_dwordx4 {vL16}, {SWS}, {sT0} offen offset:{(i%4)*1024} sc1 lds ;@RP"])
    return g
def vpart(fill):
    U=HB[0]
    def rd(k): return [f"ds_read_b128 {vr(XR+8*(k%4)+4*jt,4)}, {vXR[k]} offset:{jt*8192} ;@u{k}" for jt in range(2)]
    c=["WAITVM RP"]+rd(0)+rd(1)+rd(2)
    mf=[]; pre={}
    for k in range(8):
        pre[4*k]=[f"WAITLG u{k}"]
        for jt in range(2):
            for dt in range(2):
                d=vr(U+32*jt+16*dt,16)
                mf.append(MF32(d, vr(XR+8*(k%4)+4*jt,4), ar(FI+(k*2+dt)*4,4), d if k else "0"))
    gaps=[[] for _ in mf]
    for k in range(3,8): spread(gaps,rd(k),4*(k-3)+1,4*(k-3)+3)
    for (items,l,h) in fill: spread(gaps,items,l,h)
    c+=weave(mf,gaps,pre)
    for jt in range(2):
        for dt in range(2):
            for e in range(8):
                c+=[f"v_cvt_pk_bf16_f32 v{XR+16*jt+8*dt+e}, v{U+32*jt+16*dt+2*e}, v{U+32*jt+16*dt+2*e+1}"]
    for js in range(4):
        for dt in range(2):
            for at in range(2):
                d=vr(U+32*dt+16*at,16)
                c+=[MF32(d, vr(XR+16*(js//2)+8*dt+4*(js%2),4), ar(GF2+(js*2+at)*4,4), d if js else "0")]
    return c
def final():
    Y=HB[0]; c=[]
    for dt in range(2):
        for at in range(2):
            for q in range(4):
                a=acc2(dt,at)+4*q; y=Y+32*dt+16*at+4*q
                for i in range(4): c+=[f"v_fma_f32 v{a+i}, v{a+i}, {vOMG[at]}, v{y+i}"]
                c+=[f"ds_write_b128 {vXR[4*dt+q]}, {vr(a,4)} offset:{at*8192} ;@fw"]
    c+=["v_lshrrev_b32 v96, 3, v0","v_and_b32 v97, 7, v0","v_lshlrev_b32 v98, 1, v97","v_xor_b32 v98, v98, v96",
        "v_lshlrev_b32 v98, 4, v98","v_lshl_add_u32 v98, v96, 8, v98", f"v_add_u32 v98, {sM4K}, v98",
        "v_xor_b32 v99, 16, v98", "v_xor_b32 v100, 0x880, v98", "v_xor_b32 v101, 0x890, v98",
        "v_lshlrev_b32 v102, 15, v96","v_lshl_add_u32 v102, v97, 4, v102",
        f"s_lshl_b32 {sT1}, {sW}, 19", f"s_lshl_b32 {sT0}, {sB}, 10", f"s_add_u32 {sT1}, {sT1}, {sT0}", f"s_lshl_b32 {sT0}, {sCG}, 7", f"s_add_u32 {sT1}, {sT1}, {sT0}",
        f"s_add_u32 {sT0}, {sT1}, {8*32768}"]
    c+=["WAITLG all","s_barrier"]
    for rho in range(2):
        for pw in range(4):
            for e in range(2):
                c+=[f"ds_read_b128 {vr(128+32*rho+8*pw+4*e,4)}, v{98+2*rho+e} offset:{pw*16384} ;@fr{rho}"]
    for rho in range(2):
        b=128+32*rho
        c+=[f"WAITLG fr{rho}"]
        for i in range(8): c+=[f"v_add_f32 v{b+i}, v{b+i}, v{b+8+i}", f"v_add_f32 v{b+16+i}, v{b+16+i}, v{b+24+i}"]
        for i in range(8): c+=[f"v_add_f32 v{b+i}, v{b+i}, v{b+16+i}"]
        for i in range(4): c+=[f"v_cvt_pk_bf16_f32 v{b+8+i}, v{b+2*i}, v{b+2*i+1}"]
        c+=[f"buffer_store_dwordx4 {vr(b+8,4)}, v102, {SOUT}, {sT1 if rho==0 else sT0} offen ;@out"]
    return c

def xr_to_private():
    c=["v_and_b32 v252, 31, v0", f"v_lshl_add_u32 v252, v252, 8, {sM16K}", "v_lshrrev_b32 v253, 5, v0", "v_and_b32 v254, 15, v0"]
    for i in range(8):
        c+=[f"v_add_u32 v255, {2*i}, v253","v_xor_b32 v255, v255, v254",f"v_lshl_add_u32 {vXR[i]}, v255, 4, v252"]
    return c

def gemm2():
    one=lambda L: [[x] for x in L]
    c=[]
    c+=mask_H(0)+poll_check("ph")
    c+=flat(h_loads(0))
    c+=["WAITVM D0"]+tr_wd(0,XA)
    c+=mask_H(1)+poll_check("ph")
    c+=["WAITLG d0"]
    c+=flat(dma_wd(2,XA))
    c+=flat(h_loads(1))
    c+=["WAITVM D1"]+tr_wd(1,XB)
    c+=stamp()
    c+=g2_class(0,[(one(gen_G()),0,28)])
    c+=poll_issue("ph2")+["WAITLG d1"]+flat(dma_wd(3,XB))
    c+=mask_H(2)+poll_check("ph2")
    c+=flat(h_loads(2))
    c+=["WAITVM D2"]+tr_wd(2,XA)
    c+=g2_class(1,[(one(xr_to_private()),0,28)])
    c+=stamp()
    c+=pa_P()+poll_issue("pp")+["WAITLG d2"]+poll_check("pp")
    c+=flat(dma_rp(XA))
    c+=pa_H()+poll_issue("ph3")
    c+=["WAITVM D3"]+tr_wd(3,XB)
    fi=gen_Finv()
    c+=g2_class(2,[(one(fi[:110]),0,28)])
    c+=fi[110:]
    c+=stamp()
    c+=mask_H(3)+poll_check("ph3")
    c+=flat(h_loads(3))
    c+=vpart([])
    c+=stamp()
    sc=[f"v_mul_f32 v{HB[0]+32*dt+16*at+i}, {vG[at]}, v{HB[0]+32*dt+16*at+i}" for dt in range(2) for at in range(2) for i in range(16)]
    c+=g2_class(3,[(one(sc),4,28)])
    c+=stamp()
    c+=final()
    return c

MFW=0; MIV=32; BFR=64; CSV=96
CP1,CP2,CQ,CR1,CR2,CU=[128+16*i for i in range(6)]
CX=224
ZP=96
DD=32
def p2_consts():
    c=[]
    sC=sB
    c+=[f"s_cmp_eq_u32 {sC}, 0", f"s_cselect_b32 s69, -992, {sC}", f"s_cselect_b32 {sT3}, 1, 0"]
    c+=["v_and_b32 v228, 31, v0", "v_lshlrev_b32 v229, 6, v228", "v_cmp_gt_u32 vcc, 16, v228",
        "v_mov_b32 v230, s69", f"v_mov_b32 v231, {sC}", "v_cndmask_b32 v230, v230, v231, vcc", "v_add_u32 v229, v229, v230",
        "v_cvt_f32_u32 v232, v229", f"v_mul_f32 v232, {f2u(1/2048)}, v232",
        f"v_cvt_f32_u32 v236, {sT3}",
        "v_cndmask_b32 v234, v236, 0, vcc", "v_sub_f32 v233, 1.0, v234", "v_sub_f32 v235, 1.0, v236",
        "v_lshrrev_b32 v237, 5, v0", "v_lshlrev_b32 v237, 2, v237", "v_cvt_f32_u32 v237, v237", "v_mul_f32 v238, v237, v232",
        "v_cmp_eq_u32 vcc, 0, v229", "v_cndmask_b32 v239, 0, 1.0, vcc"]
    def blocks(base, idx, u0,u1,u2):
        o=[]
        for j2 in range(4):
            for blk in range(4):
                for e in range(2):
                    C=f"v{240+2*j2+e}"; S=f"v{248+2*j2+e}"; d=f"v{226+e}"
                    if blk==0: o+=[f"v_mul_f32 {d}, {u0}, {C}"]
                    if blk==1: o+=[f"v_mul_f32 {d}, {u1}, {C}", f"v_fma_f32 {d}, -{S}, {u2}, {d}"]
                    if blk==2: o+=[f"v_mul_f32 {d}, {u0}, {S}"]
                    if blk==3: o+=[f"v_mul_f32 {d}, {u2}, {C}", f"v_fma_f32 {d}, {S}, {u1}, {d}"]
                o+=["v_cvt_pk_bf16_f32 v226, v226, v227", f"v_accvgpr_write_b32 a{base+(blk*2+idx)*4+j2}, v226"]
        return o
    for kh in range(2):
        for j in range(8): c+=[f"v_fmamk_f32 v{248+j}, v232, {f2u(16*kh+8*(j//4)+j%4)}, v238"]
        for j in range(8): c+=[f"v_cos_f32 v{240+j}, v{248+j}", f"v_sin_f32 v{248+j}, v{248+j}"]
        for j in range(8): c+=[f"v_add_f32 v{248+j}, v{248+j}, v239" if j%2==0 else f"v_sub_f32 v{248+j}, v{248+j}, v239"]
        c+=blocks(MFW,kh,"v233","v234","v235")
    c+=["v_cvt_f32_u32 v232, v228", f"v_mul_f32 v232, {f2u(1/2048)}, v232", f"v_mul_f32 v229, {f2u(64.0)}, v232",
        "v_and_b32 v239, 1, v0", "v_cvt_f32_u32 v239, v239", "v_fma_f32 v239, v239, -2.0, 1.0", "v_mul_f32 v239, v239, v236",
        "v_cmp_gt_u32 vcc, 32, v0", "v_cndmask_b32 v239, 0, v239, vcc"]
    for sg in range(2):
        off = sC if sg==0 else "s69"
        c+=[f"v_cvt_f32_i32 v238, {off}", "v_mul_f32 v238, v238, v232", "v_fma_f32 v238, v237, v229, v238"]
        if sg==0: c+=["v_mov_b32 v233, 1.0","v_mov_b32 v234, 0"]
        else: c+=["v_mov_b32 v233, v235","v_mov_b32 v234, v236"]
        for j in range(8): c+=[f"v_fmamk_f32 v{248+j}, v229, {f2u(16*sg+8*(j//4)+j%4)}, v238"]
        for j in range(8): c+=[f"v_cos_f32 v{240+j}, v{248+j}", f"v_sin_f32 v{248+j}, v{248+j}"]
        if sg==0: c+=["v_add_f32 v248, v248, v239"]
        c+=blocks(MIV,sg,"v233","v234","v235")
    return c
def p2_coefs(gam):
    c=[]; sC=sB
    c+=["v_and_b32 v228, 31, v0", f"s_lshl_b32 {sT1}, {sW}, 6", f"s_add_u32 {sT1}, {sT1}, {32*gam}", f"v_add_u32 v228, {sT1}, v228",
        "v_cmp_eq_u32 vcc, 0, v228", "v_lshlrev_b32 v228, 1, v228", "v_mov_b32 v234, 512", "v_cndmask_b32 v229, v228, v234, vcc",
        f"v_mov_b32 v234, {f2u(2.0**-19)}", f"v_mov_b32 v235, {f2u(2.0**-20)}", "v_cndmask_b32 v230, v234, v235, vcc", "v_cndmask_b32 v231, v234, 0, vcc",
        "v_lshrrev_b32 v232, 5, v0", "v_lshlrev_b32 v232, 8, v232"]
    LD=32
    for half in range(2):
        for r8 in range(8):
            rho=8*half+r8; e0=8*(rho//4)+rho%4
            off = sC if half==0 else "s69"
            c+=[f"s_add_i32 {sT1}, {off}, {64*e0}", f"v_add_u32 v234, {sT1}, v232",
                "v_sub_u32 v235, 2048, v234", "v_and_b32 v235, 2047, v235"]
            if rho==0:
                c+=["v_cmp_eq_u32 vcc, 0, v234", "v_mov_b32 v236, 1024", "v_cndmask_b32 v235, v235, v236, vcc", "v_cndmask_b32 v233, 1.0, 0, vcc"]
            c+=["v_mul_u32_u24 v234, 514, v234", "v_mul_u32_u24 v235, 514, v235",
                "v_add_u32 v236, v234, v228", "v_add_u32 v237, v235, v228", "v_add_u32 v238, v234, v229", "v_add_u32 v239, v235, v229"]
            b=LD+8*r8
            for n,(a,srd) in enumerate([(236,SWR),(237,SWR),(236,SWI),(237,SWI),(238,SWR),(239,SWR),(238,SWI),(239,SWI)]):
                c+=[f"buffer_load_ushort v{b+n}, v{a}, {srd}, 0 offen ;@wl{r8}"]
            if r8==6: c+=["WAITVM wl0"]
        for r8 in range(8):
            rho=8*half+r8; b=LD+8*r8
            c+=[f"WAITVM wl{r8}"]
            for n in range(8): c+=[f"v_lshlrev_b32 v{b+n}, 16, v{b+n}"]
            rt,rm,it,im,rt2,rm2,it2,im2=[f"v{b+n}" for n in range(8)]
            if rho==0:
                c+=[f"v_fma_f32 v{CP1}, v233, {rm}, {rt}", f"v_fma_f32 v{CP2}, v233, {rm2}, {rt2}", f"v_fma_f32 v{CQ}, v233, {im}, {it}",
                    f"v_fma_f32 v{CX}, v233, {rt}, {rm}", f"v_fma_f32 v{CX+1}, v233, {rt2}, {rm2}", f"v_fma_f32 v{CX+2}, v233, {it}, {im}",
                    f"v_mul_f32 v{CX}, v230, v{CX}", f"v_mul_f32 v{CX+1}, v230, v{CX+1}", f"v_mul_f32 v{CX+2}, v231, v{CX+2}"]
            else:
                c+=[f"v_add_f32 v{CP1+rho}, {rt}, {rm}", f"v_add_f32 v{CP2+rho}, {rt2}, {rm2}", f"v_add_f32 v{CQ+rho}, {it}, {im}"]
            c+=[f"v_sub_f32 v{CR1+rho}, {it}, {im}", f"v_sub_f32 v{CR2+rho}, {it2}, {im2}", f"v_sub_f32 v{CU+rho}, {rt}, {rm}"]
            if rho==0:
                c+=[f"v_mul_f32 v{x}, v233, v{x}" for x in (CR1,CR2,CU)]
            c+=[f"v_mul_f32 v{x+rho}, v230, v{x+rho}" for x in (CP1,CP2,CR1,CR2)]
            c+=[f"v_mul_f32 v{x+rho}, v231, v{x+rho}" for x in (CQ,CU)]
    return c
def p2_group(gam):
    c=[]
    c+=[f"WAITVM RR{gam}"]
    for ks in range(4):
        for ct in range(2):
            for u in range(2):
                c+=[f"ds_read_b64_tr_b16 {ar(BFR+(ks*2+ct)*4+2*u,2)}, {vWT[ct]} offset:{gam*8192+ks*2048+u*1024} ;@b{ks}"]
    for ks in range(4):
        c+=[f"WAITLG b{ks}"]
        tau,kh=ks//2,ks%2
        for ab in range(2):
            for ct in range(2):
                d=vr(DD+32*ab+16*ct,16)
                c+=[MF32(d, ar(MFW+((ab*2+tau)*2+kh)*4,4), ar(BFR+(ks*2+ct)*4,4), d if ks else "0")]
    if gam==1:
        for i in range(99): c+=[f"v_accvgpr_read_b32 v{128+i}, a{CSV+i}"]
    T=228
    for r2 in range(8):
        for e in range(2):
            rho=2*r2+e
            ac,as_,bc,bs=[f"v{DD+16*i+rho}" for i in range(4)]
            p1,p2,q,r1,r2_,u=[f"v{x+rho}" for x in (CP1,CP2,CQ,CR1,CR2,CU)]
            p1b,p2b,qb=(f"v{CX}",f"v{CX+1}",f"v{CX+2}") if rho==0 else (p1,p2,q)
            o=[f"v{T+2*i+e}" for i in range(4)]
            c+=[f"v_mul_f32 {o[0]}, {ac}, {p1}", f"v_mul_f32 {o[1]}, {as_}, {p2}", f"v_mul_f32 {o[2]}, {bc}, {p1b}", f"v_mul_f32 {o[3]}, {bs}, {p2b}",
                f"v_fmac_f32 {o[0]}, {as_}, {q}", f"v_fma_f32 {o[1]}, -{ac}, {q}, {o[1]}", f"v_fmac_f32 {o[2]}, {bs}, {qb}", f"v_fma_f32 {o[3]}, -{bc}, {qb}, {o[3]}",
                f"v_fmac_f32 {o[0]}, {bc}, {r1}", f"v_fmac_f32 {o[1]}, {bs}, {r2_}", f"v_fma_f32 {o[2]}, -{ac}, {r1}, {o[2]}", f"v_fma_f32 {o[3]}, -{as_}, {r2_}, {o[3]}",
                f"v_fma_f32 {o[0]}, -{bs}, {u}, {o[0]}", f"v_fmac_f32 {o[1]}, {bc}, {u}", f"v_fmac_f32 {o[2]}, {as_}, {u}", f"v_fma_f32 {o[3]}, -{ac}, {u}, {o[3]}"]
        for i in range(4): c+=[f"v_cvt_pk_bf16_f32 v{ZP+8*i+r2}, v{T+2*i}, v{T+2*i+1}"]
    n=0
    for ab in range(2):
        for sg in range(2):
            for tau in range(2):
                for ct in range(2):
                    d=vr(DD+32*tau+16*ct,16)
                    c+=[MF32(d, vr(ZP+8*(2*ab+ct)+4*sg,4), ar(MIV+((ab*2+tau)*2+sg)*4,4), d if n else "0")]
            n+=1
    for sg in range(2):
        c+=[f"v_xor_b32 v{236+sg}, {(gam*2+sg)*2*16}, v238"]
    for tau in range(2):
        for ct in range(2):
            for sg in range(2):
                s=DD+32*tau+16*ct+8*sg; t=240+4*((2*ct+sg)%4)
                for i in range(4): c+=[f"v_cvt_pk_bf16_f32 v{t+i}, v{s+2*i}, v{s+2*i+1}"]
                c+=[f"ds_write_b128 v{236+sg}, {vr(t,4)} offset:{tau*256+ct*128} ;@ow"]
    return c
def p2():
    c=["L_p2:"]
    c+=flag_R()
    c+=wd_setup()
    c+=p2_consts()
    c+=p2_coefs(1)
    for i in range(99): c+=[f"v_accvgpr_write_b32 a{CSV+i}, v{128+i}"]
    c+=p2_coefs(0)
    c+=[f"s_and_b32 {sT1}, {sB}, 24", f"s_lshl_b32 {sT0}, {sW}, 1", f"s_add_u32 {sT1}, {sT1}, {sT0}", f"s_lshl_b32 {sT1}, {sT1}, 8",
        f"s_add_u32 {sT1}, {sT1}, {WS_FR}", f"v_lshl_add_u32 {vPA}, {vL}, 3, {sT1}", f"s_mov_b64 {sPM}, -1"]
    c+=["v_lshrrev_b32 v236, 3, v0","v_and_b32 v237, 7, v0","v_and_b32 v238, 2, v236","v_lshlrev_b32 v238, 1, v238","v_xor_b32 v237, v237, v238",
        "v_lshlrev_b32 v237, 4, v237","v_lshl_add_u32 v239, v236, 16, v237",
        "v_and_b32 v236, 31, v0","v_lshrrev_b32 v237, 5, v0","v_and_b32 v238, 7, v0","v_xor_b32 v237, v237, v238","v_lshlrev_b32 v237, 4, v237",
        "v_lshl_add_u32 v237, v236, 9, v237", f"s_add_u32 {sT1}, {sM16K}, {XB}", f"v_add_u32 v238, {sT1}, v237"]
    c+=stamp()
    c+=["s_barrier"]
    c+=poll_issue("pr")+poll_check("pr")
    c+=stamp()
    c+=[f"s_lshl_b32 {sT1}, {sB}, 8", f"s_add_u32 {sT1}, {sT1}, {sM16K}", f"s_add_u32 {sWDS}, {sT1}, {WS_R}"]
    for gam in range(2):
        for rg in range(8):
            c+=[f"s_add_u32 m0, {sM16K}, {XA+gam*8192+rg*1024}", f"s_add_u32 {sT0}, {sWDS}, {gam*8192+(rg%4)*8*65536+(rg//4)*128}",
                f"buffer_load_dwordx4 v239, {SWS}, {sT0} offen sc1 lds ;@RR{gam}"]
    c+=p2_group(0)+p2_group(1)
    c+=["v_bfe_u32 v228, v0, 4, 1", f"s_lshl_b32 {sT1}, {sB}, 1", f"v_add_u32 v229, {sT1}, v228", "v_xor_b32 v229, v229, v0", "v_and_b32 v229, 15, v229",
        "v_lshrrev_b32 v230, 5, v0", "v_xor_b32 v229, v229, v230", "v_lshlrev_b32 v229, 4, v229",
        "v_lshrrev_b32 v231, 4, v0", "v_lshl_add_u32 v229, v231, 8, v229", f"s_add_u32 {sT1}, {sM16K}, {XB}", f"v_add_u32 v229, {sT1}, v229"]
    for i in range(1,4): c+=[f"v_xor_b32 v{229+i*2}, {i*32}, v229"]
    c+=["v_and_b32 v236, 31, v0", "v_lshlrev_b32 v236, 4, v236", "v_lshl_add_u32 v236, v230, 16, v236",
        f"s_lshl_b32 {sT1}, {sB}, 9", f"s_add_u32 {sT1}, {sT1}, {sM16K}", f"s_add_u32 {sWDS}, {sT1}, {WS_RP}", "WAITLG all"]
    for i in range(16): c+=[f"ds_read_b128 {vr(32+4*i,4)}, v{229+2*(i%4)} offset:{i*1024} ;@or{i}"]
    for i in range(16):
        c+=[f"s_add_u32 {sT0}, {sWDS}, {i*131072}", f"WAITLG or{i}", f"buffer_store_dwordx4 {vr(32+4*i,4)}, v236, {SWS}, {sT0} offen sc1 ;@Pst"]
    c+=flat(dma_wd(0,XA))
    c+=[f"s_lshl_b32 {sT2}, {sW}, 5", f"s_add_u32 {sT2}, {sT2}, {sB}", f"s_lshl_b32 {sT2}, {sT2}, 3", f"s_add_u32 {sT2}, {sT2}, {WS_FP}",
        "WAITVM Pst", f"buffer_store_dwordx2 {vNON}, {vFO}, {SWS}, {sT2} offen sc1 ;@fl"]
    c+=stamp()
    c+=flat(dma_wd(1,XB))
    c+=pa_H()+poll_issue("ph")+["WAITVM all","s_branch L_g2"]
    return c

def tail():
    c=[]
    c+=["s_cmp_lg_u32 s2, 0","s_cbranch_scc1 L_noe", f"buffer_store_dwordx2 {vNON}, {vFO}, {SWS}, 0 offen sc1", "L_noe:"]
    if opt.stamps:
        c+=["s_waitcnt vmcnt(0)"]
        c+=["s_memtime s[98:99]","s_memrealtime s[96:97]","s_waitcnt lgkmcnt(0)",
            f"s_lshl_b32 {sT0}, s2, 2", f"s_add_u32 {sT0}, {sT0}, {sW}", f"s_lshl_b32 {sT0}, {sT0}, 7", f"s_add_u32 {sT0}, {sT0}, {WS_DBG}"]
        for i in range(16):
            c+=[f"v_mov_b32 v8, s{70+2*i}", f"buffer_store_dword v8, {vFO}, {SWS}, {sT0} offen offset:{4*i}"]
    if opt.dbg:
        c+=["s_waitcnt vmcnt(0)","s_load_dwordx2 s[8:9], s[0:1], 72","s_waitcnt lgkmcnt(0)","s_mov_b32 s10, 256","s_mov_b32 s11, 0x20000",
            "v_mov_b32 v8, s96", f"buffer_atomic_umax v8, {vFO}, s[8:11], 0 offen",
            "s_not_b32 s100, s100","v_mov_b32 v9, s100", f"buffer_atomic_umax v9, {vFO}, s[8:11], 0 offen offset:4",
            f"s_cmp_lg_u32 {sW}, 0","s_cbranch_scc1 L_end",
            "s_cmp_eq_u32 s2, 0","s_cbranch_scc1 L_d0","s_cmp_eq_u32 s2, 255","s_cbranch_scc0 L_end"]
        for n,i in enumerate((1,3,4,5,6,14)):
            c+=[f"s_sub_u32 {sT0}, s{70+2*i}, s70", f"v_mov_b32 v8, {sT0}", f"buffer_store_dword v8, {vFO}, s[8:11], 0 offen offset:{40+4*n}"]
        c+=["s_branch L_end","L_d0:"]
        for n,i in enumerate((1,2,3,5,6,7,8,14)):
            c+=[f"s_sub_u32 {sT0}, s{70+2*i}, s70", f"v_mov_b32 v8, {sT0}", f"buffer_store_dword v8, {vFO}, s[8:11], 0 offen offset:{8+4*n}"]
    c+=["L_end:","s_endpgm"]
    return c

def build():
    nstamp[0]=0; lab[0]=0
    a=prologue()+startup()+p0()
    n0=nstamp[0]
    br=[f"s_cmp_eq_u32 {sCG}, 7","s_cbranch_scc1 L_p2"]
    m=round0()+stamp()+round_n(1)+round_n(2)+stamp()+round_n(3)
    m+=flat(dma_wd(1,XB)[6:])+pa_H()+poll_issue("ph")+flat(flag_H(2))+set_hs(3)+epilogue(3)+flat(flag_H(3))+stamp()
    n1=nstamp[0]
    g2=["L_g2:"]+gemm2()+tail()
    n2=nstamp[0]
    nstamp[0]=n0
    pp=p2()
    assert nstamp[0]<=n1
    assert n2<=13
    main,ad1=finalize(a+br+m+g2)
    full,ad2=finalize(a+["L_mark:"]+pp)
    idx=[i for i,x in enumerate(full) if x.text=="L_mark:"][0]
    side=full[idx+1:]
    return main+side

HEAD = open("gated_mix__spectral_gfnet__glu_gated_geglu__prompt.s.ref").read().split("; Override launch")[0]
def emit(path):
    code=build()
    s=HEAD+"; @launch grid=(256,1,1) block=(256,1,1) lds=163840\n"
    s+='.amdgcn_target "amdgcn-amd-amdhsa--gfx950"\n.text\n'
    s+=f".globl {KNAME}\n.p2align 8\n.type {KNAME},@function\n{KNAME}:\n"
    for ins in code:
        t=ins.text.split(";")[0].rstrip()
        t=" ".join(t.split())
        s+=(t if ins.kind=="label" else "    "+t)+"\n"
    s+='.section .rodata,"a"\n.p2align 6\n'
    s+=f".amdhsa_kernel {KNAME}\n  .amdhsa_next_free_vgpr 512\n  .amdhsa_next_free_sgpr 102\n  .amdhsa_accum_offset 256\n"
    s+="  .amdhsa_group_segment_fixed_size 0\n  .amdhsa_kernarg_size 88\n  .amdhsa_user_sgpr_count 2\n  .amdhsa_user_sgpr_kernarg_segment_ptr 1\n"
    s+="  .amdhsa_system_sgpr_workgroup_id_x 1\n  .amdhsa_float_denorm_mode_32 3\n.end_amdhsa_kernel\n"
    open(path,"w").write(s)
    return code
if __name__=="__main__":
    out=sys.argv[1]
    for a in sys.argv[2:]:
        k,v=a.split("=")
        cur=getattr(opt,k)
        setattr(opt,k, (v=="1") if isinstance(cur,bool) else (int(v) if isinstance(cur,int) else v))
    code=emit(out)
    from collections import Counter
    print(len(code), Counter(i.kind for i in code))
```

```python
import sys, struct, math
from asmlib import *

KNAME = "gated_mix__spectral_gfnet__glu_gated_geglu__prompt_kernel"
def f2u(x): return "0x%08x" % struct.unpack("<I", struct.pack("<f", x))[0]

WS_E   = 0x0
WS_FR  = 0x1000
WS_FP  = 0x4000
WS_FH  = 0x8000
WS_R   = 0x100000
WS_RP  = 0x300000
WS_H   = 0x500000
WS_DBG = 0xD00000
WS_SIZE = 0x10000000
XA, XB, C0, C1 = 0, 65536, 131072, 147456
L_GW, L_G, L_RB = C1, C1+1024, C1+2048
SX,SWG,SWU,SWD,SWS,SOUT,SGW,SWR,SWI = [f"s[{i}:{i+3}]" for i in (4,8,12,16,20,24,28,32,36)]
sNON="s[40:41]"
sW,sB,sCG,sRES,sRB4,sFB,sP,sQ = "s42","s43","s44","s45","s46","s47","s48","s49"
sXS,sWS0,sM4K,sHS,sFHS,sWDS,sM16K = "s50","s51","s52","s53","s54","s55","s56"
sT0,sT1,sT2,sT3 = "s58","s59","s60","s61"
sGC0,sGC1="s62","s63"
sPM="s[64:65]"; sPT="s[66:67]"; sCNT="s68"
vL, vL16, vFO = "v0","v1","v2"
vG = ["v3","v4"]; vOMG=["v28","v29"]
vNON="v[6:7]"
vXO=[f"v{8+i}" for i in range(4)]
vXR=[f"v{12+i}" for i in range(8)]
vWO=[f"v{20+i}" for i in range(4)]
vWT=[f"v{24+i}" for i in range(4)]
vPOLL="v[30:31]"; vPA="v5"
def vr(a,n): return f"v[{a}:{a+n-1}]"
def ar(a,n): return f"a[{a}:{a+n-1}]"
ACC=32; XR=96; ET=128; HP=152

class Opt:
    stamps=False
    ldx=""
    ldw=""
    ldd=""
    stop=99
    dbg=False
    hold=0
opt=Opt()
nstamp=[0]
def stamp():
    if not opt.stamps: return []
    i=nstamp[0]; nstamp[0]+=1
    assert i<16
    return [f"s_memtime s[{70+2*i}:{71+2*i}]","s_waitcnt lgkmcnt(0)"]

def MF32(d,a,b,c): return f"v_mfma_f32_32x32x16_bf16 {d}, {a}, {b}, {c}"
def MF16(d,a,b,c): return f"v_mfma_f32_16x16x32_bf16 {d}, {a}, {b}, {c}"

def dma_x(slot, kq, rnd, tag):
    g=[[f"s_add_u32 m0, {sM4K}, {slot+kq*16384}", f"s_add_u32 {sT0}, {sXS}, {kq*256}",
        f"buffer_load_dwordx4 {vXO[0]}, {SX}, {sT0} offen {opt.ldx} lds ;@{tag}"]]
    for j in range(1,4):
        g.append([f"buffer_load_dwordx4 {vXO[j]}, {SX}, {sT0} offen offset:{j*1024} {opt.ldx} lds ;@{tag}"])
    return g
def set_xs(rnd):
    return [f"s_add_u32 {sT1}, {sRES}, {rnd}", f"s_and_b32 {sT1}, {sT1}, 3", f"s_add_u32 {sT1}, {sT1}, {sRB4}",
            f"s_lshl_b32 {sT1}, {sT1}, 10", f"s_lshl_b32 {sXS}, {sW}, 19", f"s_add_u32 {sXS}, {sXS}, {sT1}"]
RING=[XB, XB+16384, XB+32768, XB+49152, C0]
def wslot(n): return RING[(n+2)%5]
def dma_w(i):
    tag=f"W{i}"
    g=[[f"s_add_u32 m0, {sM4K}, {wslot(i)}", f"s_add_u32 {sT0}, {sWS0}, {64*i*3584}",
        f"buffer_load_dwordx4 {vWO[0]}, {SWG}, {sT0} offen {opt.ldw} lds ;@{tag}"],
       [f"buffer_load_dwordx4 {vWO[1]}, {SWU}, {sT0} offen offset:1024 {opt.ldw} lds ;@{tag}"],
       [f"buffer_load_dwordx4 {vWO[2]}, {SWG}, {sT0} offen offset:2048 {opt.ldw} lds ;@{tag}"],
       [f"buffer_load_dwordx4 {vWO[3]}, {SWU}, {sT0} offen offset:3072 {opt.ldw} lds ;@{tag}"]]
    return g
def flat(g): return [i for x in g for i in (x if isinstance(x,list) else [x])]

def sprinkle(main, items, every, start=0):
    out=[]; items=list(items); main=mk(main)
    for n,ins in enumerate(main):
        if items and n>=start and (n-start)%every==0: out+=mk(items.pop(0))
        out.append(ins)
    for it in items: out+=mk(it)
    return out

def prologue():
    c=[]
    c+=["s_cmp_ge_u32 s2, 256","s_cbranch_scc1 L_end"]
    if opt.stamps or opt.hold: c+=["s_memrealtime s[100:101]"]
    c+=stamp()
    c+=["s_load_dwordx4 s[4:7], s[0:1], 0",
        "s_load_dwordx2 s[36:37], s[0:1], 16",
        "s_load_dwordx8 s[8:15], s[0:1], 32",
        "s_load_dwordx2 s[24:25], s[0:1], 64",
        "s_load_dwordx2 s[20:21], s[0:1], 80"]
    c+=["v_lshrrev_b32 v5, 6, v0","v_and_b32 v0, 63, v0",f"v_readfirstlane_b32 {sW}, v5",
        f"v_lshlrev_b32 {vL16}, 4, {vL}",
        f"s_and_b32 {sT0}, s2, 7", f"s_lshr_b32 {sT1}, s2, 3",
        f"s_and_b32 {sRES}, {sT0}, 3", f"s_lshr_b32 {sCG}, {sT1}, 2",
        f"s_and_b32 {sT0}, {sT0}, 4", f"s_and_b32 {sT1}, {sT1}, 3", f"s_add_u32 {sT0}, {sT0}, {sT1}",
        f"s_lshl_b32 {sRB4}, {sT0}, 2", f"s_add_u32 {sB}, {sRB4}, {sRES}",
        f"s_mul_i32 {sFB}, {sRES}, 7", f"s_add_u32 {sFB}, {sFB}, {sCG}",
        f"s_lshr_b32 {sP}, {sW}, 1", f"s_and_b32 {sQ}, {sW}, 1",
        f"s_lshl_b32 {sM4K}, {sW}, 12", f"s_lshl_b32 {sM16K}, {sW}, 14"]
    c+=set_xs(0)
    c+=["v_lshrrev_b32 v128, 4, v0", "v_and_b32 v129, 15, v0"]
    for j in range(4):
        c+=[f"v_add_u32 v130, {4*j}, v128", "v_xor_b32 v131, v129, v130", "v_lshlrev_b32 v131, 4, v131",
            "v_lshl_add_u32 v131, v130, 15, v131", f"v_subrev_u32 {vXO[j]}, {j*1024}, v131"]
    c+=["v_lshrrev_b32 v128, 3, v0", "v_and_b32 v129, 7, v0", "v_and_b32 v130, 2, v128",
        "v_xor_b32 v129, v129, v130", "v_mul_u32_u24 v128, 3584, v128",
        "v_lshl_add_u32 v131, v129, 4, v128",
        "v_xor_b32 v129, 4, v129", "v_lshl_add_u32 v132, v129, 4, v128",
        f"v_mov_b32 {vWO[0]}, v131", f"v_mov_b32 {vWO[1]}, v132",
        f"v_add_u32 {vWO[2]}, {8*3584-2048}, v131", f"v_add_u32 {vWO[3]}, {8*3584-2048}, v132"]
    c+=[f"s_mul_i32 {sWS0}, {sW}, {16*3584}", f"s_lshl_b32 {sT0}, {sFB}, 7", f"s_add_u32 {sWS0}, {sWS0}, {sT0}"]
    c+=["s_waitcnt lgkmcnt(0)"]
    c+=["s_mov_b32 s32, s6","s_mov_b32 s33, s7","s_mov_b32 s34, 1052672","s_mov_b32 s35, 0x20000",
        "s_mov_b32 s6, 0x200000","s_mov_b32 s7, 0x20000",
        "s_mov_b32 s38, 1052672","s_mov_b32 s39, 0x20000",
        "s_mov_b32 s28, s14","s_mov_b32 s29, s15","s_mov_b32 s30, 1024","s_mov_b32 s31, 0x20000",
        "s_mov_b32 s16, s12","s_mov_b32 s17, s13","s_mov_b32 s18, 1835008","s_mov_b32 s19, 0x20000",
        "s_sub_u32 s12, s10, 1024","s_subb_u32 s13, s11, 0",
        f"s_cmp_eq_u32 {sCG}, 7",
        "s_cselect_b32 s10, 0, 1835008","s_cselect_b32 s14, 0, 1836032",
        "s_mov_b32 s11, 0x20000","s_mov_b32 s15, 0x20000",
        f"s_mov_b32 s22, {WS_SIZE}","s_mov_b32 s23, 0x20000",
        "s_mov_b32 s26, 0x200000","s_mov_b32 s27, 0x20000"]
    return c

FF=160; HF=224; PAD=64
def gen_F():
    c=[]
    c+=["v_and_b32 v128, 15, v0", f"s_and_b32 {sT2}, {sW}, 1", f"s_lshl_b32 {sT2}, {sT2}, 4",
        f"s_lshl_b32 {sT3}, {sCG}, 5", f"s_add_u32 {sT2}, {sT2}, {sT3}",
        f"v_add_u32 v128, {sT2}, v128",
        f"v_cvt_f32_u32 v129, {sP}", f"v_mul_f32 v129, {f2u(-0.25)}, v129",
        f"s_lshl_b32 {sT3}, {sP}, 8", f"v_mov_b32 v130, {sT3}",
        "v_cmp_eq_u32 vcc, 0, v128", "v_cndmask_b32 v128, v128, v130, vcc", "v_cndmask_b32 v129, v129, 0, vcc",
        "v_cvt_f32_u32 v128, v128", f"v_mul_f32 v128, {f2u(1/512)}, v128",
        "v_lshrrev_b32 v130, 4, v0", "v_lshlrev_b32 v130, 3, v130", "v_cvt_f32_u32 v130, v130",
        "v_fma_f32 v129, v130, v128, v129",
        f"v_mul_f32 v130, {f2u(32.0)}, v128", "v_cos_f32 v130, v130", "v_add_f32 v130, v130, v130"]
    S0,S1=132,140
    for ks in range(2):
        S=S0 if ks==0 else S1
        for j in range(8):
            c+=[f"v_fmamk_f32 v{S+j}, v128, {f2u(32*ks+j)}, v129"]
        for j in range(8):
            c+=[f"v_cos_f32 v{S+j}, v{S+j}"]
        for j in range(4):
            c+=[f"v_cvt_pk_bf16_f32 v{FF+4*ks+j}, v{S+2*j}, v{S+2*j+1}"]
    for ks in range(2,16):
        P,Cu=(S0,S1) if ks%2==0 else (S1,S0)
        for j in range(8):
            c+=[f"v_fma_f32 v{P+j}, v130, v{Cu+j}, -v{P+j}"]
        for j in range(4):
            c+=[f"v_cvt_pk_bf16_f32 v{FF+4*ks+j}, v{P+2*j}, v{P+2*j+1}"]
    return c
def gen_H():
    c=[]
    AF=96
    c+=["v_lshrrev_b32 v128, 4, v0","v_lshlrev_b32 v128, 2, v128"]
    for t in range(4):
        c+=[f"s_add_u32 {sT2}, {sW}, {t}", f"s_and_b32 {sT2}, {sT2}, 3", f"s_lshl_b32 {sT2}, {sT2}, 4",
            f"v_add_u32 v129, {sT2}, v128", f"v_cvt_f32_u32 v{AF+4*t}, v129"]
        for i in range(1,4): c+=[f"v_add_f32 v{AF+4*t+i}, 1.0, v{AF+4*t+i-1}"]
    c+=["v_and_b32 v128, 15, v0","v_lshrrev_b32 v129, 1, v128","v_cvt_f32_u32 v129, v129",
        f"v_mul_f32 v129, {f2u(1/64)}, v129",
        "v_and_b32 v130, 1, v0","v_cvt_f32_u32 v130, v130",f"v_mul_f32 v130, {f2u(-0.25)}, v130",
        "v_cmp_eq_u32 vcc, 1, v128","v_mov_b32 v133, 0.5","v_cndmask_b32 v131, v129, v133, vcc","v_cndmask_b32 v132, v130, 0, vcc"]
    T=112
    for tj in range(4):
        cf,ph=("v131","v132") if tj==0 else ("v129","v130")
        if tj>0: c+=[f"v_add_f32 v129, {f2u(0.125)}, v129"]
        for e in range(16): c+=[f"v_fma_f32 v{T+e}, v{AF+e}, {cf}, {ph}"]
        for e in range(16): c+=[f"v_cos_f32 v{T+e}, v{T+e}"]
        for e in range(8):  c+=[f"v_cvt_pk_bf16_f32 v{HF+8*tj+e}, v{T+2*e}, v{T+2*e+1}"]
    return c
def gen_addr():
    c=[]
    c+=[f"v_mov_b32 v128, 0x40000000","v_cmp_eq_u32 vcc, 0, v0",f"v_cndmask_b32 {vFO}, v128, 0, vcc"]
    c+=["v_and_b32 v128, 15, v0","v_lshrrev_b32 v129, 4, v0"]
    for i in range(4):
        c+=[f"v_add_u32 v130, {4*i}, v129","v_xor_b32 v130, v130, v128","v_lshlrev_b32 v130, 4, v130",f"v_lshl_add_u32 v{132+i}, v128, 8, v130"]
    for t in range(4):
        c+=[f"s_add_u32 {sT2}, {sW}, {t}", f"s_and_b32 {sT2}, {sT2}, 3", f"s_lshl_b32 {sT2}, {sT2}, 12"]
        for i in range(4): c+=[f"v_add_u32 v{PAD+4*t+i}, {sT2}, v{132+i}"]
    c+=["v_lshlrev_b32 v80, 4, v129", f"v_add_u32 v80, {L_GW}, v80"]
    c+=["v_lshrrev_b32 v130, 1, v129", f"s_lshl_b32 {sT2}, {sW}, 1", f"v_add_u32 v130, {sT2}, v130",
        "v_and_b32 v131, 7, v0","v_xor_b32 v130, v130, v131","v_lshlrev_b32 v130, 4, v130","v_lshl_add_u32 v130, v128, 7, v130",
        "v_and_b32 v131, 1, v129","v_lshl_add_u32 v130, v131, 3, v130", f"v_add_u32 v81, {L_RB}, v130"]
    c+=["v_lshrrev_b32 v130, 3, v0","v_and_b32 v131, 7, v0","v_xor_b32 v131, v131, v130","v_lshlrev_b32 v131, 4, v131",
        "v_lshl_add_u32 v131, v130, 7, v131", f"s_lshl_b32 {sT2}, {sW}, 11", f"s_add_u32 {sT2}, {sT2}, {L_RB}", f"v_add_u32 v82, {sT2}, v131"]
    c+=[f"s_lshl_b32 {sT2}, {sW}, 6", f"s_add_u32 {sT2}, {sT2}, {L_G}", f"v_lshl_add_u32 v83, v128, 2, {sT2}",
        "v_and_b32 v130, 31, v0","v_lshlrev_b32 v130, 2, v130", f"v_add_u32 v84, {L_G}, v130"]
    c+=["v_and_b32 v130, 31, v0", f"s_lshl_b32 {sT2}, {sQ}, 13", f"v_lshl_add_u32 v130, v130, 8, {sT2}", "v_lshrrev_b32 v131, 5, v0"]
    for i in range(8):
        c+=[f"v_add_u32 v132, {2*i}, v131","v_xor_b32 v132, v132, v128",f"v_lshl_add_u32 {vXR[i]}, v132, 4, v130"]
    c+=["v_lshrrev_b32 v130, 4, v0","v_lshlrev_b32 v130, 10, v130",
        "v_bfe_u32 v131, v0, 2, 2","v_lshl_add_u32 v130, v131, 7, v130",
        "v_and_b32 v131, 3, v0","v_lshl_add_u32 v130, v131, 3, v130",
        "v_bfe_u32 v131, v0, 3, 2"]
    for tau in range(2):
        c+=[f"s_lshl_b32 {sT2}, {sP}, 1", f"s_add_u32 {sT2}, {sT2}, {tau}", f"v_xor_b32 v132, {sT2}, v131",
            "v_lshl_add_u32 v132, v132, 5, v130", f"v_add_u32 {vWT[tau]}, {XB}, v132", f"v_add_u32 {vWT[2+tau]}, {C0}, v132"]
    c+=[f"s_mov_b32 {sGC0}, {f2u(-2*math.sqrt(2/math.pi)*math.log2(math.e))}",
        f"s_mov_b32 {sGC1}, {f2u(-2*math.sqrt(2/math.pi)*math.log2(math.e)*0.044715)}"]
    return c

def startup():
    dm=[]
    for kq in range(4): dm+=dma_x(XA,kq,0,"x0")
    dm.insert(0,[f"s_mov_b32 m0, {L_GW}","v_mov_b32 v5, 0",f"buffer_load_dwordx4 {vL16}, {SGW}, 0 offen lds ;@x0"])
    dm.append([f"buffer_load_dwordx2 {vNON}, v5, {SWS}, 0 offen sc1 ;@x0"])
    main=gen_addr()+gen_F()+gen_H()
    c=sprinkle(main, dm, 16)
    return c

def p0():
    c=[]
    TA=32; GA=48; RA=32+20
    GF=144
    c+=["WAITVM x0","s_barrier"]
    c+=stamp()
    c+=["v_readfirstlane_b32 s40, v6","v_readfirstlane_b32 s41, v7",
        "s_mul_i32 s40, s40, 0x9E3779B1","s_add_u32 s40, s40, 0x7F4A7C15",
        "s_mul_i32 s41, s41, 0x85EBCA6D","s_add_u32 s41, s41, 0xC2B2AE35",
        "v_mov_b32 v6, s40","v_mov_b32 v7, s41"]
    def reads(ks):
        r=[]
        for t in range(4):
            r.append(f"ds_read_b128 {vr(XR+16*(ks%2)+4*t,4)}, v{PAD+4*t+ks%4} offset:{(ks//4)*16384} ;@p{ks}")
        r.append(f"ds_read_b128 {vr(GF+4*(ks%2),4)}, v80 offset:{ks*64} ;@p{ks}")
        return r
    wd=[]
    for i in range(5): wd+=dma_w(i)
    c+=reads(0)
    for ks in range(16):
        nx=reads(ks+1) if ks<15 else []
        mf=[]
        for t in range(4):
            mf.append(MF16(vr(TA+4*t,4), vr(XR+16*(ks%2)+4*t,4), vr(FF+4*ks,4), vr(TA+4*t,4) if ks else "0"))
        mf.append(MF16(vr(GA,4), vr(GF+4*(ks%2),4), vr(XR+16*(ks%2),4), vr(GA,4) if ks else "0"))
        c+=[f"WAITLG p{ks}"]
        for i in range(5):
            c+=[mf[i]]
            if nx: c+=[nx[i]]
            if i in (1,3) and wd and (i==1 or ks%4==0): c+=wd.pop(0)
    for g in wd: c+=g
    TP=128
    for t in range(4):
        c+=[f"v_cvt_pk_bf16_f32 v{TP+2*t}, v{TA+4*t}, v{TA+4*t+1}", f"v_cvt_pk_bf16_f32 v{TP+2*t+1}, v{TA+4*t+2}, v{TA+4*t+3}"]
    RA=96
    for sg in range(2):
        for tj in range(4):
            c+=[MF16(vr(RA+4*tj,4), vr(TP+4*sg,4), vr(HF+8*tj+4*sg,4), vr(RA+4*tj,4) if sg else "0")]
    c+=[f"v_mul_f32 v136, {f2u(-math.log2(math.e))}, v{GA}","v_exp_f32 v136, v136","v_add_f32 v136, 1.0, v136","v_rcp_f32 v136, v136",
        "ds_write_b32 v83, v136 ;@bw"]
    for tj in range(4):
        c+=[f"v_cvt_pk_bf16_f32 v{138+2*tj}, v{RA+4*tj}, v{RA+4*tj+1}", f"v_cvt_pk_bf16_f32 v{139+2*tj}, v{RA+4*tj+2}, v{RA+4*tj+3}",
            f"ds_write_b64 v81, {vr(138+2*tj,2)} offset:{tj*2048} ;@bw"]
    c+=["WAITLG all","WAITVM W0","s_barrier"]
    c+=stamp()
    c+=[f"ds_read_b128 {vr(128,4)}, v82 ;@br", f"ds_read_b128 {vr(132,4)}, v82 offset:1024 ;@br",
        f"ds_read_b32 {vG[0]}, v84 ;@br", f"ds_read_b32 {vG[1]}, v84 offset:128 ;@br",
        f"s_lshl_b32 {sT2}, {sB}, 3", f"s_add_u32 {sT2}, {sT2}, {sCG}", f"s_lshl_b32 {sT2}, {sT2}, 13",
        f"s_lshl_b32 {sT3}, {sW}, 11", f"s_add_u32 {sT2}, {sT2}, {sT3}", f"s_add_u32 {sT2}, {sT2}, {WS_R}",
        "WAITLG br",
        f"buffer_store_dwordx4 {vr(128,4)}, {vL16}, {SWS}, {sT2} offen sc1 ;@Rst",
        f"buffer_store_dwordx4 {vr(132,4)}, {vL16}, {SWS}, {sT2} offen offset:1024 sc1 ;@Rst",
        f"v_sub_f32 {vOMG[0]}, 1.0, {vG[0]}", f"v_sub_f32 {vOMG[1]}, 1.0, {vG[1]}"]
    return c
def flag_R():
    return [f"s_lshl_b32 {sT2}, {sW}, 3", f"s_add_u32 {sT2}, {sT2}, {sCG}", f"s_lshl_b32 {sT2}, {sT2}, 5", f"s_add_u32 {sT2}, {sT2}, {sB}",
            f"s_lshl_b32 {sT2}, {sT2}, 3", f"s_add_u32 {sT2}, {sT2}, {WS_FR}", "WAITVM Rst",
            f"buffer_store_dwordx2 {vNON}, {vFO}, {SWS}, {sT2} offen sc1 ;@fl"]

def wfrag(tau,ks): return 128*tau+4*ks
def xread(ks, tag):
    return f"ds_read_b128 {vr(XR+4*(ks%8),4)}, {vXR[ks%8]} offset:{(ks//8)*16384} ;@{tag}"
def g1_mf(rnd,ks):
    s=ACC+32*(rnd%2)
    return [MF32(vr(s+16*t,16), ar(wfrag(t,ks),4), vr(XR+4*(ks%8),4), vr(s+16*t,16) if ks else "0") for t in range(2)]
def xr_move(delta):
    if delta>=0: return [f"v_add_u32 {r}, {delta}, {r}" for r in vXR]
    return [f"v_subrev_u32 {r}, {-delta}, {r}" for r in vXR]
def set_hs(rnd):
    return [f"s_add_u32 {sT1}, {sRES}, {rnd}", f"s_and_b32 {sT1}, {sT1}, 3", f"s_add_u32 {sT1}, {sT1}, {sRB4}",
            f"s_mul_i32 {sHS}, {sT1}, 28", f"s_add_u32 {sHS}, {sHS}, {sFB}", f"s_lshl_b32 {sHS}, {sHS}, 1", f"s_add_u32 {sHS}, {sHS}, {sP}",
            f"s_lshl_b32 {sHS}, {sHS}, 2", f"s_add_u32 {sHS}, {sHS}, {sQ}", f"s_lshl_b32 {sHS}, {sHS}, 10", f"s_add_u32 {sHS}, {sHS}, {WS_H}"]
def flag_H(rnd):
    return [[f"s_add_u32 {sT1}, {sRES}, {rnd}", f"s_and_b32 {sT1}, {sT1}, 3", f"s_add_u32 {sT1}, {sT1}, {sRB4}"],
            [f"s_lshl_b32 {sT1}, {sT1}, 1", f"s_add_u32 {sT1}, {sT1}, {sP}", f"s_lshl_b32 {sT1}, {sT1}, 5"],
            [f"s_add_u32 {sT1}, {sT1}, {sFB}", f"s_lshl_b32 {sT1}, {sT1}, 1", f"s_add_u32 {sT1}, {sT1}, {sQ}"],
            [f"s_lshl_b32 {sT1}, {sT1}, 3", f"s_add_u32 {sFHS}, {sT1}, {WS_FH}"],
            [f"WAITVM h{rnd}", f"buffer_store_dwordx2 {vNON}, {vFO}, {SWS}, {sFHS} offen sc1 ;@fl"]]
def epilogue(rnd):
    s=ACC+32*(rnd%2); c=[]
    for t in range(2):
        for hh in range(2):
            g=[s+16*t+4*hh+i for i in range(4)]; u=[x+8 for x in g]
            A=ET+8*((2*t+hh)%2); Bq=A+4
            for i in range(4): c+=[f"v_mul_f32 v{A+i}, v{g[i]}, v{g[i]}"]
            for i in range(4): c+=[f"v_fma_f32 v{A+i}, v{A+i}, {sGC1}, v{ET+16}"]
            for i in range(4): c+=[f"v_mul_f32 v{A+i}, v{A+i}, v{g[i]}"]
            for i in range(4): c+=[f"v_exp_f32 v{A+i}, v{A+i}", f"v_mul_f32 v{Bq+i}, v{g[i]}, v{u[i]}"]
            for i in range(4): c+=[f"v_add_f32 v{A+i}, 1.0, v{A+i}"]
            for i in range(4): c+=[f"v_rcp_f32 v{A+i}, v{A+i}"]
            for i in range(4): c+=[f"v_mul_f32 v{Bq+i}, v{Bq+i}, v{A+i}"]
            c+=[f"v_cvt_pk_bf16_f32 v{HP+4*t+2*hh}, v{Bq}, v{Bq+1}", f"v_cvt_pk_bf16_f32 v{HP+4*t+2*hh+1}, v{Bq+2}, v{Bq+3}"]
        c+=[f"buffer_store_dwordx4 {vr(HP+4*t,4)}, {vL16}, {SWS}, {sHS} offen offset:{2048*t} sc1 ;@h{rnd}"]
    return c

def round0():
    c=[f"v_mov_b32 v{ET+16}, {sGC0}"]
    for i in range(9):
        fill=[]
        if 1<=i<=3: fill+=dma_w(i+4)
        if i==4: fill+=[set_xs(1)]
        if 4<=i<=7: fill+=dma_x(XB,i-4,1,f"x1q{i-4}")
        if i==5: fill+=[flag_R()]
        rd=[]
        if i<8:
            sl=wslot(i); base=(2,C0) if sl==C0 else (0,XB)
            for ks in range(4):
                for t in range(2):
                    for u in range(2):
                        rd.append(f"ds_read_b64_tr_b16 {ar(wfrag(t,4*i+ks)+2*u,2)}, {vWT[base[0]+t]} offset:{sl-base[1]+ks*4096+u*512} ;@r")
                rd.append(xread(4*i+ks,"r"))
        else:
            rd+=[xr_move(XB-XA)]+[xread(ks,"r") for ks in range(4)]
            fill+=[set_xs(2)]+dma_x(XA,0,2,"x2")
        if i==0:
            c+=flat(fill)+flat(rd)
        else:
            mf=[m for ks in range(4*(i-1),4*i) for m in g1_mf(0,ks)]
            gaps=[[] for _ in mf]
            spread(gaps,rd,0,7); spread(gaps,fill,0,8)
            c+=weave(mf,gaps)
        if i<7: c+=["WAITLG all",f"WAITVM W{i+1}","s_barrier"]
        elif i==7: c+=["WAITLG all","WAITVM x1q1","s_barrier"]
    return c

def wd_setup():
    c=["v_lshrrev_b32 v160, 3, v0","v_and_b32 v161, 7, v0","v_and_b32 v162, 2, v160","v_lshlrev_b32 v162, 1, v162",
       "v_xor_b32 v161, v161, v162","v_lshlrev_b32 v161, 4, v161",f"v_lshl_add_u32 {vWO[0]}, v160, 10, v161",
       f"v_add_u32 {vWO[1]}, {8192-1024}, {vWO[0]}", f"v_add_u32 {vWO[2]}, {65536-2048}, {vWO[0]}", f"v_add_u32 {vWO[3]}, {65536+8192-3072}, {vWO[0]}",
       "v_lshrrev_b32 v160, 5, v0","v_lshlrev_b32 v160, 9, v160","v_bfe_u32 v161, v0, 2, 2","v_lshl_add_u32 v160, v161, 7, v160",
       "v_bfe_u32 v161, v0, 4, 1","v_lshl_add_u32 v160, v161, 5, v160","v_and_b32 v161, 3, v0","v_lshl_add_u32 v160, v161, 3, v160",
       f"v_add_u32 v160, {sM16K}, v160","v_bfe_u32 v161, v0, 3, 1",
       f"v_lshl_add_u32 {vWT[0]}, v161, 6, v160","v_xor_b32 v161, 1, v161",f"v_lshl_add_u32 {vWT[1]}, v161, 6, v160",
       f"v_add_u32 {vWT[2]}, {XB}, {vWT[0]}", f"v_add_u32 {vWT[3]}, {XB}, {vWT[1]}"]
    return c
def set_cls(i, dst, mul):
    return [f"s_sub_u32 {dst}, {sRES}, {i}", f"s_and_b32 {dst}, {dst}, 3", f"s_mul_i32 {dst}, {dst}, {mul}"]
def dma_wd(i, region):
    tag=f"D{i}"
    g=[set_cls(i,sWDS,7*65536)+[f"s_add_u32 {sWDS}, {sWDS}, {sM16K}"],[f"s_lshl_b32 {sT1}, {sCG}, 7", f"s_add_u32 {sWDS}, {sWDS}, {sT1}"]]
    for pr in range(4):
        n=4 if pr<3 else 2
        for j in range(n):
            pre=[f"s_add_u32 m0, {sM16K}, {region+pr*4096}", f"s_add_u32 {sT0}, {sWDS}, {pr*131072}"] if j==0 else []
            g.append(pre+[f"buffer_load_dwordx4 {vWO[j]}, {SWD}, {sT0} offen offset:{j*1024} {opt.ldd} lds ;@{tag}"])
    return g
def dfrag(i,fb,dt): return 56*i+8*fb+4*dt
def tr_wd(i, region):
    o=0 if region==XA else 2
    return [f"ds_read_b64_tr_b16 {ar(dfrag(i,fb,dt)+2*u,2)}, {vWT[o+dt]} offset:{fb*2048+u*1024} ;@d{i}" for fb in range(7) for dt in range(2) for u in range(2)]

def round_n(r):
    mf=[m for ks in range(32) for m in g1_mf(r,ks)]
    gaps=[[] for _ in mf]; pre={}
    for k4 in range(8):
        ks=4*k4
        pre[2*ks]=["WAITLG r"]
        if k4<7:
            if r==1 and k4==3: pre[2*ks]+=["WAITVM x1q3","s_barrier"]
            spread(gaps,[xread(k,"r") for k in range(ks+4,ks+8)],2*ks,2*ks+7)
        else:
            if r<3:
                pre[2*ks]+=[f"WAITVM x{r+1}","s_barrier"]
                mv=xr_move(XA-XB if r%2 else XB-XA)
                spread(gaps,[mv[:4]],2*ks-1,2*ks);
                spread(gaps,[xread(k,"r") for k in range(4)],2*ks,2*ks+7)
                spread(gaps,[mv[4:6],mv[6:8]],2*ks+4,2*ks+8)
            else:
                pre[2*ks]+=["s_barrier"]
    ep=[set_hs(r-1)[:6],set_hs(r-1)[6:]]+epilogue(r-1)
    spread(gaps,ep,0,56)
    dm=[]
    if r==1:
        for kq in range(1,4): dm+=dma_x(XA,kq,2,"x2")
        spread(gaps,dm,0,28)
    if r==2:
        dm=[set_xs(3)]
        for kq in range(4): dm+=dma_x(XB,kq,3,"x3")
        spread(gaps,dm,0,34)
        spread(gaps,[[x] for x in wd_setup()],36,55)
    if r==3:
        spread(gaps,dma_wd(0,XA),0,34)
        spread(gaps,dma_wd(1,XB)[:6],56,64)
    if r>=2: spread(gaps,flag_H(r-2),14,24)
    return weave(mf,gaps,pre)

lab=[0]
def poll_issue(tag): return [f"buffer_load_dwordx2 {vPOLL}, {vPA}, {SWS}, 0 offen sc1 ;@{tag}"]
def poll_check(tag):
    lab[0]+=1; n=lab[0]
    c=[f"s_mov_b32 {sCNT}, 100000", f"WAITVM {tag}", f"s_branch L_pc{n}",
       f"L_pl{n}:", f"buffer_load_dwordx2 {vPOLL}, {vPA}, {SWS}, 0 offen sc1 ;@skip", "s_waitcnt vmcnt(0) ;@skip",
       f"L_pc{n}:", f"v_cmp_eq_u64 vcc, {sNON}, {vPOLL}", f"s_and_b64 {sPT}, vcc, {sPM}", f"s_cmp_eq_u64 {sPT}, {sPM}", f"s_cbranch_scc1 L_pd{n}",
       f"s_sub_u32 {sCNT}, {sCNT}, 1", f"s_cmp_lg_u32 {sCNT}, 0", f"s_cbranch_scc1 L_pl{n}", f"L_pd{n}:"]
    return c
def pa_H():
    return [f"s_lshl_b32 {sT1}, {sB}, 1", f"s_add_u32 {sT1}, {sT1}, {sP}", f"s_lshl_b32 {sT1}, {sT1}, 9", f"s_add_u32 {sT1}, {sT1}, {WS_FH}",
            f"v_lshl_add_u32 {vPA}, {vL}, 3, {sT1}"]
def mask_H(i):
    return set_cls(i,sT1,14)+[f"s_mov_b64 {sPM}, 0x3fff", f"s_lshl_b64 {sPM}, {sPM}, {sT1}"]
def pa_P():
    return [f"s_lshl_b32 {sT1}, {sW}, 8", f"s_add_u32 {sT1}, {sT1}, {WS_FP}", f"v_lshl_add_u32 {vPA}, {vL}, 3, {sT1}",
            "s_mov_b32 s64, -1", "s_mov_b32 s65, 0"]

HB=[128,192]
def h_loads(i):
    g=[set_cls(i,sHS,7*8192)+[f"s_mul_i32 {sT1}, {sB}, {28*8192}", f"s_add_u32 {sHS}, {sHS}, {sT1}"],
       [f"s_lshl_b32 {sT1}, {sW}, 11", f"s_add_u32 {sHS}, {sHS}, {sT1}", f"s_add_u32 {sHS}, {sHS}, {WS_H}"]]
    for fb in range(7):
        for at in range(2):
            pre=[f"s_add_u32 {sT0}, {sHS}, {fb*8192}"] if at==0 else []
            g.append(pre+[f"buffer_load_dwordx4 {vr(HB[i%2]+8*fb+4*at,4)}, {vL16}, {SWS}, {sT0} offen offset:{at*1024} sc1 ;@H{i}_{fb}"])
    return g
def acc2(dt,at): return ACC+32*dt+16*at
def g2_class(i, fill, lo=0, hi=28):
    mf=[]; pre={}
    for fb in range(7):
        pre[4*fb]=[f"WAITVM H{i}_{fb}"]
        if fb==0: pre[0]+=[f"WAITLG d{i}"]
        for at in range(2):
            for dt in range(2):
                d=vr(acc2(dt,at),16)
                mf.append(MF32(d, ar(dfrag(i,fb,dt),4), vr(HB[i%2]+8*fb+4*at,4), d if (i or fb) else "0"))
    gaps=[[] for _ in mf]
    for (items,l,h) in fill: spread(gaps,items,l,h)
    return weave(mf,gaps,pre)
TT=184
FI=0
GF2=224
def gen_Finv():
    c=[]
    c+=["v_and_b32 v252, 31, v0", f"s_lshl_b32 {sT1}, {sCG}, 6", f"v_add_u32 v252, {sT1}, v252", "v_cvt_f32_u32 v248, v252",
        f"v_mul_f32 v248, {f2u(1/512)}, v248", f"v_add_f32 v249, {f2u(32/512)}, v248",
        "v_lshrrev_b32 v253, 5, v0", "v_lshlrev_b32 v253, 2, v253", f"s_lshl_b32 {sT1}, {sW}, 6", f"v_add_u32 v253, {sT1}, v253",
        "v_cmp_eq_u32 vcc, 0, v253", "v_cvt_f32_u32 v253, v253",
        "v_mul_f32 v250, v253, v248", "v_mul_f32 v251, v253, v249",
        "v_and_b32 v252, 1, v0", "v_cvt_f32_u32 v252, v252", "v_fma_f32 v252, v252, -2.0, 1.0",
        "v_cndmask_b32 v252, 0, v252, vcc"]
    for gs in range(4):
        for dt in range(2):
            for j in range(8):
                c+=[f"v_fmamk_f32 v{TT+j}, v{248+dt}, {f2u(16*gs+8*(j//4)+j%4)}, v{250+dt}"]
            for ct in range(2):
                op="v_cos_f32" if ct==0 else "v_sin_f32"
                for j2 in range(4):
                    c+=[f"{op} v254, v{TT+2*j2}", f"{op} v255, v{TT+2*j2+1}"]
                    if ct==1 and gs==0 and j2==0: c+=["v_add_f32 v254, v254, v252"]
                    c+=[f"v_cvt_pk_bf16_f32 v254, v254, v255", f"v_accvgpr_write_b32 a{FI+((ct*4+gs)*2+dt)*4+j2}, v254"]
    return c
def gen_G():
    c=[]
    c+=["v_and_b32 v252, 31, v0", "v_cvt_f32_u32 v248, v252", f"v_mul_f32 v248, {f2u(1/64)}, v248", "v_add_f32 v249, 0.5, v248",
        "v_lshrrev_b32 v253, 5, v0", "v_cmp_eq_u32 vcc, 0, v253", "v_lshlrev_b32 v253, 1, v253", "v_cvt_f32_u32 v253, v253",
        "v_mul_f32 v250, v253, v248", "v_mul_f32 v251, v253, v249",
        "v_and_b32 v252, 1, v0", "v_cvt_f32_u32 v252, v252", "v_fma_f32 v252, v252, -2.0, 1.0", "v_cndmask_b32 v252, 0, v252, vcc"]
    for js in range(4):
        for at in range(2):
            for j2 in range(4):
                cc=8*js+4*(j2//2)+j2%2
                c+=[f"v_fmamk_f32 v{TT+j2}, v{248+at}, {f2u(cc)}, v{250+at}"]
            for j2 in range(4):
                c+=[f"v_cos_f32 v254, v{TT+j2}", f"v_sin_f32 v255, v{TT+j2}"]
                if js==0 and j2==0: c+=["v_add_f32 v255, v255, v252"]
                c+=[f"v_cvt_pk_bf16_f32 v254, v254, v255", f"v_accvgpr_write_b32 a{GF2+(js*2+at)*4+j2}, v254"]
    return c
def dma_rp(region):
    g=[[f"s_lshl_b32 {sT1}, {sB}, 16", f"s_add_u32 {sT1}, {sT1}, {sM16K}", f"s_add_u32 {sWDS}, {sT1}, {WS_RP}"]]
    for i in range(16):
        pre=[f"s_add_u32 m0, {sM16K}, {region+(i//4)*4096}", f"s_add_u32 {sT0}, {sWDS}, {(i//4)*4096}"] if i%4==0 else []
        g.append(pre+[f"buffer_load_dwordx4 {vL16}, {SWS}, {sT0} offen offset:{(i%4)*1024} sc1 lds ;@RP"])
    return g
def vpart(fill):
    U=HB[0]
    def rd(k): return [f"ds_read_b128 {vr(XR+8*(k%4)+4*jt,4)}, {vXR[k]} offset:{jt*8192} ;@u{k}" for jt in range(2)]
    c=["WAITVM RP"]+rd(0)+rd(1)+rd(2)
    mf=[]; pre={}
    for k in range(8):
        pre[4*k]=[f"WAITLG u{k}"]
        for jt in range(2):
            for dt in range(2):
                d=vr(U+32*jt+16*dt,16)
                mf.append(MF32(d, vr(XR+8*(k%4)+4*jt,4), ar(FI+(k*2+dt)*4,4), d if k else "0"))
    gaps=[[] for _ in mf]
    for k in range(3,8): spread(gaps,rd(k),4*(k-3)+1,4*(k-3)+3)
    for (items,l,h) in fill: spread(gaps,items,l,h)
    c+=weave(mf,gaps,pre)
    for jt in range(2):
        for dt in range(2):
            for e in range(8):
                c+=[f"v_cvt_pk_bf16_f32 v{XR+16*jt+8*dt+e}, v{U+32*jt+16*dt+2*e}, v{U+32*jt+16*dt+2*e+1}"]
    for js in range(4):
        for dt in range(2):
            for at in range(2):
                d=vr(U+32*dt+16*at,16)
                c+=[MF32(d, vr(XR+16*(js//2)+8*dt+4*(js%2),4), ar(GF2+(js*2+at)*4,4), d if js else "0")]
    return c
def final():
    Y=HB[0]; c=[]
    for dt in range(2):
        for at in range(2):
            for q in range(4):
                a=acc2(dt,at)+4*q; y=Y+32*dt+16*at+4*q
                for i in range(4): c+=[f"v_fma_f32 v{a+i}, v{a+i}, {vOMG[at]}, v{y+i}"]
                c+=[f"ds_write_b128 {vXR[4*dt+q]}, {vr(a,4)} offset:{at*8192} ;@fw"]
    c+=["v_lshrrev_b32 v96, 3, v0","v_and_b32 v97, 7, v0","v_lshlrev_b32 v98, 1, v97","v_xor_b32 v98, v98, v96",
        "v_lshlrev_b32 v98, 4, v98","v_lshl_add_u32 v98, v96, 8, v98", f"v_add_u32 v98, {sM4K}, v98",
        "v_xor_b32 v99, 16, v98", "v_xor_b32 v100, 0x880, v98", "v_xor_b32 v101, 0x890, v98",
        "v_lshlrev_b32 v102, 15, v96","v_lshl_add_u32 v102, v97, 4, v102",
        f"s_lshl_b32 {sT1}, {sW}, 19", f"s_lshl_b32 {sT0}, {sB}, 10", f"s_add_u32 {sT1}, {sT1}, {sT0}", f"s_lshl_b32 {sT0}, {sCG}, 7", f"s_add_u32 {sT1}, {sT1}, {sT0}",
        f"s_add_u32 {sT0}, {sT1}, {8*32768}"]
    c+=["WAITLG all","s_barrier"]
    for rho in range(2):
        for pw in range(4):
            for e in range(2):
                c+=[f"ds_read_b128 {vr(128+32*rho+8*pw+4*e,4)}, v{98+2*rho+e} offset:{pw*16384} ;@fr{rho}"]
    for rho in range(2):
        b=128+32*rho
        c+=[f"WAITLG fr{rho}"]
        for i in range(8): c+=[f"v_add_f32 v{b+i}, v{b+i}, v{b+8+i}", f"v_add_f32 v{b+16+i}, v{b+16+i}, v{b+24+i}"]
        for i in range(8): c+=[f"v_add_f32 v{b+i}, v{b+i}, v{b+16+i}"]
        for i in range(4): c+=[f"v_cvt_pk_bf16_f32 v{b+8+i}, v{b+2*i}, v{b+2*i+1}"]
        c+=[f"buffer_store_dwordx4 {vr(b+8,4)}, v102, {SOUT}, {sT1 if rho==0 else sT0} offen ;@out"]
    return c

def xr_to_private():
    c=["v_and_b32 v252, 31, v0", f"v_lshl_add_u32 v252, v252, 8, {sM16K}", "v_lshrrev_b32 v253, 5, v0", "v_and_b32 v254, 15, v0"]
    for i in range(8):
        c+=[f"v_add_u32 v255, {2*i}, v253","v_xor_b32 v255, v255, v254",f"v_lshl_add_u32 {vXR[i]}, v255, 4, v252"]
    return c

def gemm2():
    one=lambda L: [[x] for x in L]
    c=[]
    c+=mask_H(0)+poll_check("ph")
    c+=flat(h_loads(0))
    c+=["WAITVM D0"]+tr_wd(0,XA)
    c+=mask_H(1)+poll_check("ph")
    c+=["WAITLG d0"]
    c+=flat(dma_wd(2,XA))
    c+=flat(h_loads(1))
    c+=["WAITVM D1"]+tr_wd(1,XB)
    c+=stamp()
    c+=g2_class(0,[(one(gen_G()),0,28)])
    c+=poll_issue("ph2")+["WAITLG d1"]+flat(dma_wd(3,XB))
    c+=mask_H(2)+poll_check("ph2")
    c+=flat(h_loads(2))
    c+=["WAITVM D2"]+tr_wd(2,XA)
    c+=g2_class(1,[(one(xr_to_private()),0,28)])
    c+=stamp()
    c+=pa_P()+poll_issue("pp")+["WAITLG d2"]+poll_check("pp")
    c+=flat(dma_rp(XA))
    c+=pa_H()+poll_issue("ph3")
    c+=["WAITVM D3"]+tr_wd(3,XB)
    fi=gen_Finv()
    c+=g2_class(2,[(one(fi[:110]),0,28)])
    c+=fi[110:]
    c+=stamp()
    c+=mask_H(3)+poll_check("ph3")
    c+=flat(h_loads(3))
    c+=vpart([])
    c+=stamp()
    sc=[f"v_mul_f32 v{HB[0]+32*dt+16*at+i}, {vG[at]}, v{HB[0]+32*dt+16*at+i}" for dt in range(2) for at in range(2) for i in range(16)]
    c+=g2_class(3,[(one(sc),4,28)])
    c+=stamp()
    c+=final()
    return c

MFW=0; MIV=32; BFR=64; CSV=96
CP1,CP2,CQ,CR1,CR2,CU=[128+16*i for i in range(6)]
CX=224
ZP=96
DD=32
def p2_consts():
    c=[]
    sC=sB
    c+=[f"s_cmp_eq_u32 {sC}, 0", f"s_cselect_b32 s69, -992, {sC}", f"s_cselect_b32 {sT3}, 1, 0"]
    c+=["v_and_b32 v228, 31, v0", "v_lshlrev_b32 v229, 6, v228", "v_cmp_gt_u32 vcc, 16, v228",
        "v_mov_b32 v230, s69", f"v_mov_b32 v231, {sC}", "v_cndmask_b32 v230, v230, v231, vcc", "v_add_u32 v229, v229, v230",
        "v_cvt_f32_u32 v232, v229", f"v_mul_f32 v232, {f2u(1/2048)}, v232",
        f"v_cvt_f32_u32 v236, {sT3}",
        "v_cndmask_b32 v234, v236, 0, vcc", "v_sub_f32 v233, 1.0, v234", "v_sub_f32 v235, 1.0, v236",
        "v_lshrrev_b32 v237, 5, v0", "v_lshlrev_b32 v237, 2, v237", "v_cvt_f32_u32 v237, v237", "v_mul_f32 v238, v237, v232",
        "v_cmp_eq_u32 vcc, 0, v229", "v_cndmask_b32 v239, 0, 1.0, vcc"]
    def blocks(base, idx, u0,u1,u2):
        o=[]
        for j2 in range(4):
            for blk in range(4):
                for e in range(2):
                    C=f"v{240+2*j2+e}"; S=f"v{248+2*j2+e}"; d=f"v{226+e}"
                    if blk==0: o+=[f"v_mul_f32 {d}, {u0}, {C}"]
                    if blk==1: o+=[f"v_mul_f32 {d}, {u1}, {C}", f"v_fma_f32 {d}, -{S}, {u2}, {d}"]
                    if blk==2: o+=[f"v_mul_f32 {d}, {u0}, {S}"]
                    if blk==3: o+=[f"v_mul_f32 {d}, {u2}, {C}", f"v_fma_f32 {d}, {S}, {u1}, {d}"]
                o+=["v_cvt_pk_bf16_f32 v226, v226, v227", f"v_accvgpr_write_b32 a{base+(blk*2+idx)*4+j2}, v226"]
        return o
    for kh in range(2):
        for j in range(8): c+=[f"v_fmamk_f32 v{248+j}, v232, {f2u(16*kh+8*(j//4)+j%4)}, v238"]
        for j in range(8): c+=[f"v_cos_f32 v{240+j}, v{248+j}", f"v_sin_f32 v{248+j}, v{248+j}"]
        for j in range(8): c+=[f"v_add_f32 v{248+j}, v{248+j}, v239" if j%2==0 else f"v_sub_f32 v{248+j}, v{248+j}, v239"]
        c+=blocks(MFW,kh,"v233","v234","v235")
    c+=["v_cvt_f32_u32 v232, v228", f"v_mul_f32 v232, {f2u(1/2048)}, v232", f"v_mul_f32 v229, {f2u(64.0)}, v232",
        "v_and_b32 v239, 1, v0", "v_cvt_f32_u32 v239, v239", "v_fma_f32 v239, v239, -2.0, 1.0", "v_mul_f32 v239, v239, v236",
        "v_cmp_gt_u32 vcc, 32, v0", "v_cndmask_b32 v239, 0, v239, vcc"]
    for sg in range(2):
        off = sC if sg==0 else "s69"
        c+=[f"v_cvt_f32_i32 v238, {off}", "v_mul_f32 v238, v238, v232", "v_fma_f32 v238, v237, v229, v238"]
        if sg==0: c+=["v_mov_b32 v233, 1.0","v_mov_b32 v234, 0"]
        else: c+=["v_mov_b32 v233, v235","v_mov_b32 v234, v236"]
        for j in range(8): c+=[f"v_fmamk_f32 v{248+j}, v229, {f2u(16*sg+8*(j//4)+j%4)}, v238"]
        for j in range(8): c+=[f"v_cos_f32 v{240+j}, v{248+j}", f"v_sin_f32 v{248+j}, v{248+j}"]
        if sg==0: c+=["v_add_f32 v248, v248, v239"]
        c+=blocks(MIV,sg,"v233","v234","v235")
    return c
def p2_coefs(gam):
    c=[]; sC=sB
    c+=["v_and_b32 v228, 31, v0", f"s_lshl_b32 {sT1}, {sW}, 6", f"s_add_u32 {sT1}, {sT1}, {32*gam}", f"v_add_u32 v228, {sT1}, v228",
        "v_cmp_eq_u32 vcc, 0, v228", "v_lshlrev_b32 v228, 1, v228", "v_mov_b32 v234, 512", "v_cndmask_b32 v229, v228, v234, vcc",
        f"v_mov_b32 v234, {f2u(2.0**-19)}", f"v_mov_b32 v235, {f2u(2.0**-20)}", "v_cndmask_b32 v230, v234, v235, vcc", "v_cndmask_b32 v231, v234, 0, vcc",
        "v_lshrrev_b32 v232, 5, v0", "v_lshlrev_b32 v232, 8, v232"]
    LD=32
    for half in range(2):
        for r8 in range(8):
            rho=8*half+r8; e0=8*(rho//4)+rho%4
            off = sC if half==0 else "s69"
            c+=[f"s_add_i32 {sT1}, {off}, {64*e0}", f"v_add_u32 v234, {sT1}, v232",
                "v_sub_u32 v235, 2048, v234", "v_and_b32 v235, 2047, v235"]
            if rho==0:
                c+=["v_cmp_eq_u32 vcc, 0, v234", "v_mov_b32 v236, 1024", "v_cndmask_b32 v235, v235, v236, vcc", "v_cndmask_b32 v233, 1.0, 0, vcc"]
            c+=["v_mul_u32_u24 v234, 514, v234", "v_mul_u32_u24 v235, 514, v235",
                "v_add_u32 v236, v234, v228", "v_add_u32 v237, v235, v228", "v_add_u32 v238, v234, v229", "v_add_u32 v239, v235, v229"]
            b=LD+8*r8
            for n,(a,srd) in enumerate([(236,SWR),(237,SWR),(236,SWI),(237,SWI),(238,SWR),(239,SWR),(238,SWI),(239,SWI)]):
                c+=[f"buffer_load_ushort v{b+n}, v{a}, {srd}, 0 offen ;@wl{r8}"]
            if r8==6: c+=["WAITVM wl0"]
        for r8 in range(8):
            rho=8*half+r8; b=LD+8*r8
            c+=[f"WAITVM wl{r8}"]
            for n in range(8): c+=[f"v_lshlrev_b32 v{b+n}, 16, v{b+n}"]
            rt,rm,it,im,rt2,rm2,it2,im2=[f"v{b+n}" for n in range(8)]
            if rho==0:
                c+=[f"v_fma_f32 v{CP1}, v233, {rm}, {rt}", f"v_fma_f32 v{CP2}, v233, {rm2}, {rt2}", f"v_fma_f32 v{CQ}, v233, {im}, {it}",
                    f"v_fma_f32 v{CX}, v233, {rt}, {rm}", f"v_fma_f32 v{CX+1}, v233, {rt2}, {rm2}", f"v_fma_f32 v{CX+2}, v233, {it}, {im}",
                    f"v_mul_f32 v{CX}, v230, v{CX}", f"v_mul_f32 v{CX+1}, v230, v{CX+1}", f"v_mul_f32 v{CX+2}, v231, v{CX+2}"]
            else:
                c+=[f"v_add_f32 v{CP1+rho}, {rt}, {rm}", f"v_add_f32 v{CP2+rho}, {rt2}, {rm2}", f"v_add_f32 v{CQ+rho}, {it}, {im}"]
            c+=[f"v_sub_f32 v{CR1+rho}, {it}, {im}", f"v_sub_f32 v{CR2+rho}, {it2}, {im2}", f"v_sub_f32 v{CU+rho}, {rt}, {rm}"]
            if rho==0:
                c+=[f"v_mul_f32 v{x}, v233, v{x}" for x in (CR1,CR2,CU)]
            c+=[f"v_mul_f32 v{x+rho}, v230, v{x+rho}" for x in (CP1,CP2,CR1,CR2)]
            c+=[f"v_mul_f32 v{x+rho}, v231, v{x+rho}" for x in (CQ,CU)]
    return c
def p2_group(gam):
    c=[]
    c+=[f"WAITVM RR{gam}"]
    for ks in range(4):
        for ct in range(2):
            for u in range(2):
                c+=[f"ds_read_b64_tr_b16 {ar(BFR+(ks*2+ct)*4+2*u,2)}, {vWT[ct]} offset:{gam*8192+ks*2048+u*1024} ;@b{ks}"]
    for ks in range(4):
        c+=[f"WAITLG b{ks}"]
        tau,kh=ks//2,ks%2
        for ab in range(2):
            for ct in range(2):
                d=vr(DD+32*ab+16*ct,16)
                c+=[MF32(d, ar(MFW+((ab*2+tau)*2+kh)*4,4), ar(BFR+(ks*2+ct)*4,4), d if ks else "0")]
    if gam==1:
        for i in range(99): c+=[f"v_accvgpr_read_b32 v{128+i}, a{CSV+i}"]
    T=228
    for r2 in range(8):
        for e in range(2):
            rho=2*r2+e
            ac,as_,bc,bs=[f"v{DD+16*i+rho}" for i in range(4)]
            p1,p2,q,r1,r2_,u=[f"v{x+rho}" for x in (CP1,CP2,CQ,CR1,CR2,CU)]
            p1b,p2b,qb=(f"v{CX}",f"v{CX+1}",f"v{CX+2}") if rho==0 else (p1,p2,q)
            o=[f"v{T+2*i+e}" for i in range(4)]
            c+=[f"v_mul_f32 {o[0]}, {ac}, {p1}", f"v_mul_f32 {o[1]}, {as_}, {p2}", f"v_mul_f32 {o[2]}, {bc}, {p1b}", f"v_mul_f32 {o[3]}, {bs}, {p2b}",
                f"v_fmac_f32 {o[0]}, {as_}, {q}", f"v_fma_f32 {o[1]}, -{ac}, {q}, {o[1]}", f"v_fmac_f32 {o[2]}, {bs}, {qb}", f"v_fma_f32 {o[3]}, -{bc}, {qb}, {o[3]}",
                f"v_fmac_f32 {o[0]}, {bc}, {r1}", f"v_fmac_f32 {o[1]}, {bs}, {r2_}", f"v_fma_f32 {o[2]}, -{ac}, {r1}, {o[2]}", f"v_fma_f32 {o[3]}, -{as_}, {r2_}, {o[3]}",
                f"v_fma_f32 {o[0]}, -{bs}, {u}, {o[0]}", f"v_fmac_f32 {o[1]}, {bc}, {u}", f"v_fmac_f32 {o[2]}, {as_}, {u}", f"v_fma_f32 {o[3]}, -{ac}, {u}, {o[3]}"]
        for i in range(4): c+=[f"v_cvt_pk_bf16_f32 v{ZP+8*i+r2}, v{T+2*i}, v{T+2*i+1}"]
    n=0
    for ab in range(2):
        for sg in range(2):
            for tau in range(2):
                for ct in range(2):
                    d=vr(DD+32*tau+16*ct,16)
                    c+=[MF32(d, vr(ZP+8*(2*ab+ct)+4*sg,4), ar(MIV+((ab*2+tau)*2+sg)*4,4), d if n else "0")]
            n+=1
    for sg in range(2):
        c+=[f"v_xor_b32 v{236+sg}, {(gam*2+sg)*2*16}, v238"]
    for tau in range(2):
        for ct in range(2):
            for sg in range(2):
                s=DD+32*tau+16*ct+8*sg; t=240+4*((2*ct+sg)%4)
                for i in range(4): c+=[f"v_cvt_pk_bf16_f32 v{t+i}, v{s+2*i}, v{s+2*i+1}"]
                c+=[f"ds_write_b128 v{236+sg}, {vr(t,4)} offset:{tau*256+ct*128} ;@ow"]
    return c
def p2():
    c=["L_p2:"]
    c+=flag_R()
    c+=wd_setup()
    c+=p2_consts()
    c+=p2_coefs(1)
    for i in range(99): c+=[f"v_accvgpr_write_b32 a{CSV+i}, v{128+i}"]
    c+=p2_coefs(0)
    c+=[f"s_and_b32 {sT1}, {sB}, 24", f"s_lshl_b32 {sT0}, {sW}, 1", f"s_add_u32 {sT1}, {sT1}, {sT0}", f"s_lshl_b32 {sT1}, {sT1}, 8",
        f"s_add_u32 {sT1}, {sT1}, {WS_FR}", f"v_lshl_add_u32 {vPA}, {vL}, 3, {sT1}", f"s_mov_b64 {sPM}, -1"]
    c+=["v_lshrrev_b32 v236, 3, v0","v_and_b32 v237, 7, v0","v_and_b32 v238, 2, v236","v_lshlrev_b32 v238, 1, v238","v_xor_b32 v237, v237, v238",
        "v_lshlrev_b32 v237, 4, v237","v_lshl_add_u32 v239, v236, 16, v237",
        "v_and_b32 v236, 31, v0","v_lshrrev_b32 v237, 5, v0","v_and_b32 v238, 7, v0","v_xor_b32 v237, v237, v238","v_lshlrev_b32 v237, 4, v237",
        "v_lshl_add_u32 v237, v236, 9, v237", f"s_add_u32 {sT1}, {sM16K}, {XB}", f"v_add_u32 v238, {sT1}, v237"]
    c+=stamp()
    c+=["s_barrier"]
    c+=poll_issue("pr")+poll_check("pr")
    c+=stamp()
    c+=[f"s_lshl_b32 {sT1}, {sB}, 8", f"s_add_u32 {sT1}, {sT1}, {sM16K}", f"s_add_u32 {sWDS}, {sT1}, {WS_R}"]
    for gam in range(2):
        for rg in range(8):
            c+=[f"s_add_u32 m0, {sM16K}, {XA+gam*8192+rg*1024}", f"s_add_u32 {sT0}, {sWDS}, {gam*8192+(rg%4)*8*65536+(rg//4)*128}",
                f"buffer_load_dwordx4 v239, {SWS}, {sT0} offen sc1 lds ;@RR{gam}"]
    c+=p2_group(0)+p2_group(1)
    c+=["v_bfe_u32 v228, v0, 4, 1", f"s_lshl_b32 {sT1}, {sB}, 1", f"v_add_u32 v229, {sT1}, v228", "v_xor_b32 v229, v229, v0", "v_and_b32 v229, 15, v229",
        "v_lshrrev_b32 v230, 5, v0", "v_xor_b32 v229, v229, v230", "v_lshlrev_b32 v229, 4, v229",
        "v_lshrrev_b32 v231, 4, v0", "v_lshl_add_u32 v229, v231, 8, v229", f"s_add_u32 {sT1}, {sM16K}, {XB}", f"v_add_u32 v229, {sT1}, v229"]
    for i in range(1,4): c+=[f"v_xor_b32 v{229+i*2}, {i*32}, v229"]
    c+=["v_and_b32 v236, 31, v0", "v_lshlrev_b32 v236, 4, v236", "v_lshl_add_u32 v236, v230, 16, v236",
        f"s_lshl_b32 {sT1}, {sB}, 9", f"s_add_u32 {sT1}, {sT1}, {sM16K}", f"s_add_u32 {sWDS}, {sT1}, {WS_RP}", "WAITLG all"]
    for i in range(16): c+=[f"ds_read_b128 {vr(32+4*i,4)}, v{229+2*(i%4)} offset:{i*1024} ;@or{i}"]
    for i in range(16):
        c+=[f"s_add_u32 {sT0}, {sWDS}, {i*131072}", f"WAITLG or{i}", f"buffer_store_dwordx4 {vr(32+4*i,4)}, v236, {SWS}, {sT0} offen sc1 ;@Pst"]
    c+=flat(dma_wd(0,XA))
    c+=[f"s_lshl_b32 {sT2}, {sW}, 5", f"s_add_u32 {sT2}, {sT2}, {sB}", f"s_lshl_b32 {sT2}, {sT2}, 3", f"s_add_u32 {sT2}, {sT2}, {WS_FP}",
        "WAITVM Pst", f"buffer_store_dwordx2 {vNON}, {vFO}, {SWS}, {sT2} offen sc1 ;@fl"]
    c+=stamp()
    c+=flat(dma_wd(1,XB))
    c+=pa_H()+poll_issue("ph")+["WAITVM all","s_branch L_g2"]
    return c

def tail():
    c=[]
    c+=["s_cmp_lg_u32 s2, 0","s_cbranch_scc1 L_noe", f"buffer_store_dwordx2 {vNON}, {vFO}, {SWS}, 0 offen sc1", "L_noe:"]
    if opt.stamps:
        c+=["s_waitcnt vmcnt(0)"]
        c+=["s_memtime s[98:99]","s_memrealtime s[96:97]","s_waitcnt lgkmcnt(0)",
            f"s_lshl_b32 {sT0}, s2, 2", f"s_add_u32 {sT0}, {sT0}, {sW}", f"s_lshl_b32 {sT0}, {sT0}, 7", f"s_add_u32 {sT0}, {sT0}, {WS_DBG}"]
        for i in range(16):
            c+=[f"v_mov_b32 v8, s{70+2*i}", f"buffer_store_dword v8, {vFO}, {SWS}, {sT0} offen offset:{4*i}"]
    if opt.hold:
        c+=["s_waitcnt vmcnt(0)","L_hold:","s_memrealtime s[96:97]","s_waitcnt lgkmcnt(0)","s_sub_u32 s96, s96, s100",f"s_cmp_lt_u32 s96, {opt.hold}","s_cbranch_scc1 L_hold"]
    if opt.dbg:
        c+=["s_waitcnt vmcnt(0)","s_load_dwordx2 s[8:9], s[0:1], 72","s_waitcnt lgkmcnt(0)","s_mov_b32 s10, 256","s_mov_b32 s11, 0x20000",
            "v_mov_b32 v8, s96", f"buffer_atomic_umax v8, {vFO}, s[8:11], 0 offen",
            "s_not_b32 s100, s100","v_mov_b32 v9, s100", f"buffer_atomic_umax v9, {vFO}, s[8:11], 0 offen offset:4",
            f"s_cmp_lg_u32 {sW}, 0","s_cbranch_scc1 L_end",
            "s_cmp_eq_u32 s2, 0","s_cbranch_scc1 L_d0","s_cmp_eq_u32 s2, 255","s_cbranch_scc0 L_end"]
        for n,i in enumerate((1,3,4,5,6,14)):
            c+=[f"s_sub_u32 {sT0}, s{70+2*i}, s70", f"v_mov_b32 v8, {sT0}", f"buffer_store_dword v8, {vFO}, s[8:11], 0 offen offset:{40+4*n}"]
        c+=["s_branch L_end","L_d0:"]
        for n,i in enumerate((1,2,3,5,6,7,8,14)):
            c+=[f"s_sub_u32 {sT0}, s{70+2*i}, s70", f"v_mov_b32 v8, {sT0}", f"buffer_store_dword v8, {vFO}, s[8:11], 0 offen offset:{8+4*n}"]
    c+=["L_end:","s_endpgm"]
    return c

def build():
    nstamp[0]=0; lab[0]=0
    a=prologue()+startup()+p0()
    n0=nstamp[0]
    br=[f"s_cmp_eq_u32 {sCG}, 7","s_cbranch_scc1 L_p2"]
    m=round0()+stamp()+round_n(1)+round_n(2)+stamp()+round_n(3)
    m+=flat(dma_wd(1,XB)[6:])+pa_H()+poll_issue("ph")+flat(flag_H(2))+set_hs(3)+epilogue(3)+flat(flag_H(3))+stamp()
    n1=nstamp[0]
    g2=["L_g2:"]+gemm2()+tail()
    n2=nstamp[0]
    nstamp[0]=n0
    pp=p2()
    assert nstamp[0]<=n1
    assert n2<=13
    main,ad1=finalize(a+br+m+g2)
    full,ad2=finalize(a+["L_mark:"]+pp)
    idx=[i for i,x in enumerate(full) if x.text=="L_mark:"][0]
    side=full[idx+1:]
    return main+side

HEAD = open("gated_mix__spectral_gfnet__glu_gated_geglu__prompt.s.ref").read().split("; Override launch")[0]
def emit(path):
    code=build()
    s=HEAD+"; @launch grid=(256,1,1) block=(256,1,1) lds=163840\n"
    s+='.amdgcn_target "amdgcn-amd-amdhsa--gfx950"\n.text\n'
    s+=f".globl {KNAME}\n.p2align 8\n.type {KNAME},@function\n{KNAME}:\n"
    for ins in code:
        t=ins.text.split(";")[0].rstrip()
        t=" ".join(t.split())
        s+=(t if ins.kind=="label" else "    "+t)+"\n"
    s+='.section .rodata,"a"\n.p2align 6\n'
    s+=f".amdhsa_kernel {KNAME}\n  .amdhsa_next_free_vgpr 512\n  .amdhsa_next_free_sgpr 102\n  .amdhsa_accum_offset 256\n"
    s+="  .amdhsa_group_segment_fixed_size 0\n  .amdhsa_kernarg_size 88\n  .amdhsa_user_sgpr_count 2\n  .amdhsa_user_sgpr_kernarg_segment_ptr 1\n"
    s+="  .amdhsa_system_sgpr_workgroup_id_x 1\n  .amdhsa_float_denorm_mode_32 3\n.end_amdhsa_kernel\n"
    open(path,"w").write(s)
    return code
if __name__=="__main__":
    out=sys.argv[1]
    for a in sys.argv[2:]:
        k,v=a.split("=")
        cur=getattr(opt,k)
        setattr(opt,k, (v=="1") if isinstance(cur,bool) else (int(v) if isinstance(cur,int) else v))
    code=emit(out)
    from collections import Counter
    print(len(code), Counter(i.kind for i in code))
```

```python
import sys, struct, math
from asmlib import *

KNAME = "gated_mix__spectral_gfnet__glu_gated_geglu__prompt_kernel"
def f2u(x): return "0x%08x" % struct.unpack("<I", struct.pack("<f", x))[0]

WS_E   = 0x0
WS_FR  = 0x1000
WS_FP  = 0x4000
WS_FH  = 0x8000
WS_R   = 0x100000
WS_RP  = 0x300000
WS_H   = 0x500000
WS_DBG = 0xD00000
WS_SIZE = 0x10000000
XA, XB, C0, C1 = 0, 65536, 131072, 147456
L_GW, L_G, L_RB = C1, C1+1024, C1+2048
SX,SWG,SWU,SWD,SWS,SOUT,SGW,SWR,SWI = [f"s[{i}:{i+3}]" for i in (4,8,12,16,20,24,28,32,36)]
sNON="s[40:41]"
sW,sB,sCG,sRES,sRB4,sFB,sP,sQ = "s42","s43","s44","s45","s46","s47","s48","s49"
sXS,sWS0,sM4K,sHS,sFHS,sWDS,sM16K = "s50","s51","s52","s53","s54","s55","s56"
sT0,sT1,sT2,sT3 = "s58","s59","s60","s61"
sGC0,sGC1="s62","s63"
sPM="s[64:65]"; sPT="s[66:67]"; sCNT="s68"
vL, vL16, vFO = "v0","v1","v2"
vG = ["v3","v4"]; vOMG=["v28","v29"]
vNON="v[6:7]"
vXO=[f"v{8+i}" for i in range(4)]
vXR=[f"v{12+i}" for i in range(8)]
vWO=[f"v{20+i}" for i in range(4)]
vWT=[f"v{24+i}" for i in range(4)]
vPOLL="v[30:31]"; vPA="v5"
def vr(a,n): return f"v[{a}:{a+n-1}]"
def ar(a,n): return f"a[{a}:{a+n-1}]"
ACC=32; XR=96; ET=128; HP=152

class Opt:
    stamps=False
    ldx=""
    ldw=""
    ldd=""
    stop=99
    dbg=False
    hold=0
    probe=-1
    inp2=False
    outf=''
opt=Opt()
nstamp=[0]
inp2=[False]
def stamp():
    i=nstamp[0]; nstamp[0]+=1
    if opt.probe==i and inp2[0]==opt.inp2: return ["s_memrealtime s[100:101]","s_waitcnt lgkmcnt(0)"]
    if not opt.stamps: return []
    assert i<16
    return [f"s_memtime s[{70+2*i}:{71+2*i}]","s_waitcnt lgkmcnt(0)"]

def MF32(d,a,b,c): return f"v_mfma_f32_32x32x16_bf16 {d}, {a}, {b}, {c}"
def MF16(d,a,b,c): return f"v_mfma_f32_16x16x32_bf16 {d}, {a}, {b}, {c}"

def dma_x(slot, kq, rnd, tag):
    g=[[f"s_add_u32 m0, {sM4K}, {slot+kq*16384}", f"s_add_u32 {sT0}, {sXS}, {kq*256}",
        f"buffer_load_dwordx4 {vXO[0]}, {SX}, {sT0} offen {opt.ldx} lds ;@{tag}"]]
    for j in range(1,4):
        g.append([f"buffer_load_dwordx4 {vXO[j]}, {SX}, {sT0} offen offset:{j*1024} {opt.ldx} lds ;@{tag}"])
    return g
def set_xs(rnd):
    return [f"s_add_u32 {sT1}, {sRES}, {rnd}", f"s_and_b32 {sT1}, {sT1}, 3", f"s_add_u32 {sT1}, {sT1}, {sRB4}",
            f"s_lshl_b32 {sT1}, {sT1}, 10", f"s_lshl_b32 {sXS}, {sW}, 19", f"s_add_u32 {sXS}, {sXS}, {sT1}"]
RING=[XB, XB+16384, XB+32768, XB+49152, C0]
def wslot(n): return RING[(n+2)%5]
def dma_w(i):
    tag=f"W{i}"
    g=[[f"s_add_u32 m0, {sM4K}, {wslot(i)}", f"s_add_u32 {sT0}, {sWS0}, {64*i*3584}",
        f"buffer_load_dwordx4 {vWO[0]}, {SWG}, {sT0} offen {opt.ldw} lds ;@{tag}"],
       [f"buffer_load_dwordx4 {vWO[1]}, {SWU}, {sT0} offen offset:1024 {opt.ldw} lds ;@{tag}"],
       [f"buffer_load_dwordx4 {vWO[2]}, {SWG}, {sT0} offen offset:2048 {opt.ldw} lds ;@{tag}"],
       [f"buffer_load_dwordx4 {vWO[3]}, {SWU}, {sT0} offen offset:3072 {opt.ldw} lds ;@{tag}"]]
    return g
def flat(g): return [i for x in g for i in (x if isinstance(x,list) else [x])]

def sprinkle(main, items, every, start=0):
    out=[]; items=list(items); main=mk(main)
    for n,ins in enumerate(main):
        if items and n>=start and (n-start)%every==0: out+=mk(items.pop(0))
        out.append(ins)
    for it in items: out+=mk(it)
    return out

def prologue():
    c=[]
    c+=["s_cmp_ge_u32 s2, 256","s_cbranch_scc1 L_end"]
    if opt.stamps or opt.hold: c+=["s_memrealtime s[100:101]"]
    c+=stamp()
    c+=["s_load_dwordx4 s[4:7], s[0:1], 0",
        "s_load_dwordx2 s[36:37], s[0:1], 16",
        "s_load_dwordx8 s[8:15], s[0:1], 32",
        "s_load_dwordx2 s[24:25], s[0:1], 64",
        "s_load_dwordx2 s[20:21], s[0:1], 80"]
    c+=["v_lshrrev_b32 v5, 6, v0","v_and_b32 v0, 63, v0",f"v_readfirstlane_b32 {sW}, v5",
        f"v_lshlrev_b32 {vL16}, 4, {vL}",
        f"s_and_b32 {sT0}, s2, 7", f"s_lshr_b32 {sT1}, s2, 3",
        f"s_and_b32 {sRES}, {sT0}, 3", f"s_lshr_b32 {sCG}, {sT1}, 2",
        f"s_and_b32 {sT0}, {sT0}, 4", f"s_and_b32 {sT1}, {sT1}, 3", f"s_add_u32 {sT0}, {sT0}, {sT1}",
        f"s_lshl_b32 {sRB4}, {sT0}, 2", f"s_add_u32 {sB}, {sRB4}, {sRES}",
        f"s_mul_i32 {sFB}, {sRES}, 7", f"s_add_u32 {sFB}, {sFB}, {sCG}",
        f"s_lshr_b32 {sP}, {sW}, 1", f"s_and_b32 {sQ}, {sW}, 1",
        f"s_lshl_b32 {sM4K}, {sW}, 12", f"s_lshl_b32 {sM16K}, {sW}, 14"]
    c+=set_xs(0)
    c+=["v_lshrrev_b32 v128, 4, v0", "v_and_b32 v129, 15, v0"]
    for j in range(4):
        c+=[f"v_add_u32 v130, {4*j}, v128", "v_xor_b32 v131, v129, v130", "v_lshlrev_b32 v131, 4, v131",
            "v_lshl_add_u32 v131, v130, 15, v131", f"v_subrev_u32 {vXO[j]}, {j*1024}, v131"]
    c+=["v_lshrrev_b32 v128, 3, v0", "v_and_b32 v129, 7, v0", "v_and_b32 v130, 2, v128",
        "v_xor_b32 v129, v129, v130", "v_mul_u32_u24 v128, 3584, v128",
        "v_lshl_add_u32 v131, v129, 4, v128",
        "v_xor_b32 v129, 4, v129", "v_lshl_add_u32 v132, v129, 4, v128",
        f"v_mov_b32 {vWO[0]}, v131", f"v_mov_b32 {vWO[1]}, v132",
        f"v_add_u32 {vWO[2]}, {8*3584-2048}, v131", f"v_add_u32 {vWO[3]}, {8*3584-2048}, v132"]
    c+=[f"s_mul_i32 {sWS0}, {sW}, {16*3584}", f"s_lshl_b32 {sT0}, {sFB}, 7", f"s_add_u32 {sWS0}, {sWS0}, {sT0}"]
    c+=["s_waitcnt lgkmcnt(0)"]
    c+=["s_mov_b32 s32, s6","s_mov_b32 s33, s7","s_mov_b32 s34, 1052672","s_mov_b32 s35, 0x20000",
        "s_mov_b32 s6, 0x200000","s_mov_b32 s7, 0x20000",
        "s_mov_b32 s38, 1052672","s_mov_b32 s39, 0x20000",
        "s_mov_b32 s28, s14","s_mov_b32 s29, s15","s_mov_b32 s30, 1024","s_mov_b32 s31, 0x20000",
        "s_mov_b32 s16, s12","s_mov_b32 s17, s13","s_mov_b32 s18, 1835008","s_mov_b32 s19, 0x20000",
        "s_sub_u32 s12, s10, 1024","s_subb_u32 s13, s11, 0",
        f"s_cmp_eq_u32 {sCG}, 7",
        "s_cselect_b32 s10, 0, 1835008","s_cselect_b32 s14, 0, 1836032",
        "s_mov_b32 s11, 0x20000","s_mov_b32 s15, 0x20000",
        f"s_mov_b32 s22, {WS_SIZE}","s_mov_b32 s23, 0x20000",
        "s_mov_b32 s26, 0x200000","s_mov_b32 s27, 0x20000"]
    return c

FF=160; HF=224; PAD=64
def gen_F():
    c=[]
    c+=["v_and_b32 v128, 15, v0", f"s_and_b32 {sT2}, {sW}, 1", f"s_lshl_b32 {sT2}, {sT2}, 4",
        f"s_lshl_b32 {sT3}, {sCG}, 5", f"s_add_u32 {sT2}, {sT2}, {sT3}",
        f"v_add_u32 v128, {sT2}, v128",
        f"v_cvt_f32_u32 v129, {sP}", f"v_mul_f32 v129, {f2u(-0.25)}, v129",
        f"s_lshl_b32 {sT3}, {sP}, 8", f"v_mov_b32 v130, {sT3}",
        "v_cmp_eq_u32 vcc, 0, v128", "v_cndmask_b32 v128, v128, v130, vcc", "v_cndmask_b32 v129, v129, 0, vcc",
        "v_cvt_f32_u32 v128, v128", f"v_mul_f32 v128, {f2u(1/512)}, v128",
        "v_lshrrev_b32 v130, 4, v0", "v_lshlrev_b32 v130, 3, v130", "v_cvt_f32_u32 v130, v130",
        "v_fma_f32 v129, v130, v128, v129",
        f"v_mul_f32 v130, {f2u(32.0)}, v128", "v_cos_f32 v130, v130", "v_add_f32 v130, v130, v130"]
    S0,S1=132,140
    for ks in range(2):
        S=S0 if ks==0 else S1
        for j in range(8):
            c+=[f"v_fmamk_f32 v{S+j}, v128, {f2u(32*ks+j)}, v129"]
        for j in range(8):
            c+=[f"v_cos_f32 v{S+j}, v{S+j}"]
        for j in range(4):
            c+=[f"v_cvt_pk_bf16_f32 v{FF+4*ks+j}, v{S+2*j}, v{S+2*j+1}"]
    for ks in range(2,16):
        P,Cu=(S0,S1) if ks%2==0 else (S1,S0)
        for j in range(8):
            c+=[f"v_fma_f32 v{P+j}, v130, v{Cu+j}, -v{P+j}"]
        for j in range(4):
            c+=[f"v_cvt_pk_bf16_f32 v{FF+4*ks+j}, v{P+2*j}, v{P+2*j+1}"]
    return c
def gen_H():
    c=[]
    AF=96
    c+=["v_lshrrev_b32 v128, 4, v0","v_lshlrev_b32 v128, 2, v128"]
    for t in range(4):
        c+=[f"s_add_u32 {sT2}, {sW}, {t}", f"s_and_b32 {sT2}, {sT2}, 3", f"s_lshl_b32 {sT2}, {sT2}, 4",
            f"v_add_u32 v129, {sT2}, v128", f"v_cvt_f32_u32 v{AF+4*t}, v129"]
        for i in range(1,4): c+=[f"v_add_f32 v{AF+4*t+i}, 1.0, v{AF+4*t+i-1}"]
    c+=["v_and_b32 v128, 15, v0","v_lshrrev_b32 v129, 1, v128","v_cvt_f32_u32 v129, v129",
        f"v_mul_f32 v129, {f2u(1/64)}, v129",
        "v_and_b32 v130, 1, v0","v_cvt_f32_u32 v130, v130",f"v_mul_f32 v130, {f2u(-0.25)}, v130",
        "v_cmp_eq_u32 vcc, 1, v128","v_mov_b32 v133, 0.5","v_cndmask_b32 v131, v129, v133, vcc","v_cndmask_b32 v132, v130, 0, vcc"]
    T=112
    for tj in range(4):
        cf,ph=("v131","v132") if tj==0 else ("v129","v130")
        if tj>0: c+=[f"v_add_f32 v129, {f2u(0.125)}, v129"]
        for e in range(16): c+=[f"v_fma_f32 v{T+e}, v{AF+e}, {cf}, {ph}"]
        for e in range(16): c+=[f"v_cos_f32 v{T+e}, v{T+e}"]
        for e in range(8):  c+=[f"v_cvt_pk_bf16_f32 v{HF+8*tj+e}, v{T+2*e}, v{T+2*e+1}"]
    return c
def gen_addr():
    c=[]
    c+=[f"v_mov_b32 v128, 0x40000000","v_cmp_eq_u32 vcc, 0, v0",f"v_cndmask_b32 {vFO}, v128, 0, vcc"]
    c+=["v_and_b32 v128, 15, v0","v_lshrrev_b32 v129, 4, v0"]
    for i in range(4):
        c+=[f"v_add_u32 v130, {4*i}, v129","v_xor_b32 v130, v130, v128","v_lshlrev_b32 v130, 4, v130",f"v_lshl_add_u32 v{132+i}, v128, 8, v130"]
    for t in range(4):
        c+=[f"s_add_u32 {sT2}, {sW}, {t}", f"s_and_b32 {sT2}, {sT2}, 3", f"s_lshl_b32 {sT2}, {sT2}, 12"]
        for i in range(4): c+=[f"v_add_u32 v{PAD+4*t+i}, {sT2}, v{132+i}"]
    c+=["v_lshlrev_b32 v80, 4, v129", f"v_add_u32 v80, {L_GW}, v80"]
    c+=["v_lshrrev_b32 v130, 1, v129", f"s_lshl_b32 {sT2}, {sW}, 1", f"v_add_u32 v130, {sT2}, v130",
        "v_and_b32 v131, 7, v0","v_xor_b32 v130, v130, v131","v_lshlrev_b32 v130, 4, v130","v_lshl_add_u32 v130, v128, 7, v130",
        "v_and_b32 v131, 1, v129","v_lshl_add_u32 v130, v131, 3, v130", f"v_add_u32 v81, {L_RB}, v130"]
    c+=["v_lshrrev_b32 v130, 3, v0","v_and_b32 v131, 7, v0","v_xor_b32 v131, v131, v130","v_lshlrev_b32 v131, 4, v131",
        "v_lshl_add_u32 v131, v130, 7, v131", f"s_lshl_b32 {sT2}, {sW}, 11", f"s_add_u32 {sT2}, {sT2}, {L_RB}", f"v_add_u32 v82, {sT2}, v131"]
    c+=[f"s_lshl_b32 {sT2}, {sW}, 6", f"s_add_u32 {sT2}, {sT2}, {L_G}", f"v_lshl_add_u32 v83, v128, 2, {sT2}",
        "v_and_b32 v130, 31, v0","v_lshlrev_b32 v130, 2, v130", f"v_add_u32 v84, {L_G}, v130"]
    c+=["v_and_b32 v130, 31, v0", f"s_lshl_b32 {sT2}, {sQ}, 13", f"v_lshl_add_u32 v130, v130, 8, {sT2}", "v_lshrrev_b32 v131, 5, v0"]
    for i in range(8):
        c+=[f"v_add_u32 v132, {2*i}, v131","v_xor_b32 v132, v132, v128",f"v_lshl_add_u32 {vXR[i]}, v132, 4, v130"]
    c+=["v_lshrrev_b32 v130, 4, v0","v_lshlrev_b32 v130, 10, v130",
        "v_bfe_u32 v131, v0, 2, 2","v_lshl_add_u32 v130, v131, 7, v130",
        "v_and_b32 v131, 3, v0","v_lshl_add_u32 v130, v131, 3, v130",
        "v_bfe_u32 v131, v0, 3, 2"]
    for tau in range(2):
        c+=[f"s_lshl_b32 {sT2}, {sP}, 1", f"s_add_u32 {sT2}, {sT2}, {tau}", f"v_xor_b32 v132, {sT2}, v131",
            "v_lshl_add_u32 v132, v132, 5, v130", f"v_add_u32 {vWT[tau]}, {XB}, v132", f"v_add_u32 {vWT[2+tau]}, {C0}, v132"]
    c+=[f"s_mov_b32 {sGC0}, {f2u(-2*math.sqrt(2/math.pi)*math.log2(math.e))}",
        f"s_mov_b32 {sGC1}, {f2u(-2*math.sqrt(2/math.pi)*math.log2(math.e)*0.044715)}"]
    return c

def startup():
    dm=[]
    for kq in range(4): dm+=dma_x(XA,kq,0,"x0")
    dm.insert(0,[f"s_mov_b32 m0, {L_GW}","v_mov_b32 v5, 0",f"buffer_load_dwordx4 {vL16}, {SGW}, 0 offen lds ;@x0"])
    dm.append([f"buffer_load_dwordx2 {vNON}, v5, {SWS}, 0 offen sc1 ;@x0"])
    main=gen_addr()+gen_F()+gen_H()
    c=sprinkle(main, dm, 16)
    return c

def p0():
    c=[]
    TA=32; GA=48; RA=32+20
    GF=144
    c+=["WAITVM x0","s_barrier"]
    c+=stamp()
    c+=["v_readfirstlane_b32 s40, v6","v_readfirstlane_b32 s41, v7",
        "s_mul_i32 s40, s40, 0x9E3779B1","s_add_u32 s40, s40, 0x7F4A7C15",
        "s_mul_i32 s41, s41, 0x85EBCA6D","s_add_u32 s41, s41, 0xC2B2AE35",
        "v_mov_b32 v6, s40","v_mov_b32 v7, s41"]
    def reads(ks):
        r=[]
        for t in range(4):
            r.append(f"ds_read_b128 {vr(XR+16*(ks%2)+4*t,4)}, v{PAD+4*t+ks%4} offset:{(ks//4)*16384} ;@p{ks}")
        r.append(f"ds_read_b128 {vr(GF+4*(ks%2),4)}, v80 offset:{ks*64} ;@p{ks}")
        return r
    wd=[]
    for i in range(5): wd+=dma_w(i)
    c+=reads(0)
    for ks in range(16):
        nx=reads(ks+1) if ks<15 else []
        mf=[]
        for t in range(4):
            mf.append(MF16(vr(TA+4*t,4), vr(XR+16*(ks%2)+4*t,4), vr(FF+4*ks,4), vr(TA+4*t,4) if ks else "0"))
        mf.append(MF16(vr(GA,4), vr(GF+4*(ks%2),4), vr(XR+16*(ks%2),4), vr(GA,4) if ks else "0"))
        c+=[f"WAITLG p{ks}"]
        for i in range(5):
            c+=[mf[i]]
            if nx: c+=[nx[i]]
            if i in (1,3) and wd and (i==1 or ks%4==0): c+=wd.pop(0)
    for g in wd: c+=g
    TP=128
    for t in range(4):
        c+=[f"v_cvt_pk_bf16_f32 v{TP+2*t}, v{TA+4*t}, v{TA+4*t+1}", f"v_cvt_pk_bf16_f32 v{TP+2*t+1}, v{TA+4*t+2}, v{TA+4*t+3}"]
    RA=96
    for sg in range(2):
        for tj in range(4):
            c+=[MF16(vr(RA+4*tj,4), vr(TP+4*sg,4), vr(HF+8*tj+4*sg,4), vr(RA+4*tj,4) if sg else "0")]
    c+=[f"v_mul_f32 v136, {f2u(-math.log2(math.e))}, v{GA}","v_exp_f32 v136, v136","v_add_f32 v136, 1.0, v136","v_rcp_f32 v136, v136",
        "ds_write_b32 v83, v136 ;@bw"]
    for tj in range(4):
        c+=[f"v_cvt_pk_bf16_f32 v{138+2*tj}, v{RA+4*tj}, v{RA+4*tj+1}", f"v_cvt_pk_bf16_f32 v{139+2*tj}, v{RA+4*tj+2}, v{RA+4*tj+3}",
            f"ds_write_b64 v81, {vr(138+2*tj,2)} offset:{tj*2048} ;@bw"]
    c+=["WAITLG all","WAITVM W0","s_barrier"]
    c+=stamp()
    c+=[f"ds_read_b128 {vr(128,4)}, v82 ;@br", f"ds_read_b128 {vr(132,4)}, v82 offset:1024 ;@br",
        f"ds_read_b32 {vG[0]}, v84 ;@br", f"ds_read_b32 {vG[1]}, v84 offset:128 ;@br",
        f"s_lshl_b32 {sT2}, {sB}, 3", f"s_add_u32 {sT2}, {sT2}, {sCG}", f"s_lshl_b32 {sT2}, {sT2}, 13",
        f"s_lshl_b32 {sT3}, {sW}, 11", f"s_add_u32 {sT2}, {sT2}, {sT3}", f"s_add_u32 {sT2}, {sT2}, {WS_R}",
        "WAITLG br",
        f"buffer_store_dwordx4 {vr(128,4)}, {vL16}, {SWS}, {sT2} offen sc1 ;@Rst",
        f"buffer_store_dwordx4 {vr(132,4)}, {vL16}, {SWS}, {sT2} offen offset:1024 sc1 ;@Rst",
        f"v_sub_f32 {vOMG[0]}, 1.0, {vG[0]}", f"v_sub_f32 {vOMG[1]}, 1.0, {vG[1]}"]
    return c
def flag_R():
    return [f"s_lshl_b32 {sT2}, {sW}, 3", f"s_add_u32 {sT2}, {sT2}, {sCG}", f"s_lshl_b32 {sT2}, {sT2}, 5", f"s_add_u32 {sT2}, {sT2}, {sB}",
            f"s_lshl_b32 {sT2}, {sT2}, 3", f"s_add_u32 {sT2}, {sT2}, {WS_FR}", "WAITVM Rst",
            f"buffer_store_dwordx2 {vNON}, {vFO}, {SWS}, {sT2} offen sc1 ;@fl"]

def wfrag(tau,ks): return 128*tau+4*ks
def xread(ks, tag):
    return f"ds_read_b128 {vr(XR+4*(ks%8),4)}, {vXR[ks%8]} offset:{(ks//8)*16384} ;@{tag}"
def g1_mf(rnd,ks):
    s=ACC+32*(rnd%2)
    return [MF32(vr(s+16*t,16), ar(wfrag(t,ks),4), vr(XR+4*(ks%8),4), vr(s+16*t,16) if ks else "0") for t in range(2)]
def xr_move(delta):
    if delta>=0: return [f"v_add_u32 {r}, {delta}, {r}" for r in vXR]
    return [f"v_subrev_u32 {r}, {-delta}, {r}" for r in vXR]
def set_hs(rnd):
    return [f"s_add_u32 {sT1}, {sRES}, {rnd}", f"s_and_b32 {sT1}, {sT1}, 3", f"s_add_u32 {sT1}, {sT1}, {sRB4}",
            f"s_mul_i32 {sHS}, {sT1}, 28", f"s_add_u32 {sHS}, {sHS}, {sFB}", f"s_lshl_b32 {sHS}, {sHS}, 1", f"s_add_u32 {sHS}, {sHS}, {sP}",
            f"s_lshl_b32 {sHS}, {sHS}, 2", f"s_add_u32 {sHS}, {sHS}, {sQ}", f"s_lshl_b32 {sHS}, {sHS}, 10", f"s_add_u32 {sHS}, {sHS}, {WS_H}"]
def flag_H(rnd):
    return [[f"s_add_u32 {sT1}, {sRES}, {rnd}", f"s_and_b32 {sT1}, {sT1}, 3", f"s_add_u32 {sT1}, {sT1}, {sRB4}"],
            [f"s_lshl_b32 {sT1}, {sT1}, 1", f"s_add_u32 {sT1}, {sT1}, {sP}", f"s_lshl_b32 {sT1}, {sT1}, 5"],
            [f"s_add_u32 {sT1}, {sT1}, {sFB}", f"s_lshl_b32 {sT1}, {sT1}, 1", f"s_add_u32 {sT1}, {sT1}, {sQ}"],
            [f"s_lshl_b32 {sT1}, {sT1}, 3", f"s_add_u32 {sFHS}, {sT1}, {WS_FH}"],
            [f"WAITVM h{rnd}", f"buffer_store_dwordx2 {vNON}, {vFO}, {SWS}, {sFHS} offen sc1 ;@fl"]]
def epilogue(rnd):
    s=ACC+32*(rnd%2); c=[]
    for t in range(2):
        for hh in range(2):
            g=[s+16*t+4*hh+i for i in range(4)]; u=[x+8 for x in g]
            A=ET+8*((2*t+hh)%2); Bq=A+4
            for i in range(4): c+=[f"v_mul_f32 v{A+i}, v{g[i]}, v{g[i]}"]
            for i in range(4): c+=[f"v_fma_f32 v{A+i}, v{A+i}, {sGC1}, v{ET+16}"]
            for i in range(4): c+=[f"v_mul_f32 v{A+i}, v{A+i}, v{g[i]}"]
            for i in range(4): c+=[f"v_exp_f32 v{A+i}, v{A+i}", f"v_mul_f32 v{Bq+i}, v{g[i]}, v{u[i]}"]
            for i in range(4): c+=[f"v_add_f32 v{A+i}, 1.0, v{A+i}"]
            for i in range(4): c+=[f"v_rcp_f32 v{A+i}, v{A+i}"]
            for i in range(4): c+=[f"v_mul_f32 v{Bq+i}, v{Bq+i}, v{A+i}"]
            c+=[f"v_cvt_pk_bf16_f32 v{HP+4*t+2*hh}, v{Bq}, v{Bq+1}", f"v_cvt_pk_bf16_f32 v{HP+4*t+2*hh+1}, v{Bq+2}, v{Bq+3}"]
        c+=[f"buffer_store_dwordx4 {vr(HP+4*t,4)}, {vL16}, {SWS}, {sHS} offen offset:{2048*t} sc1 ;@h{rnd}"]
    return c

def round0():
    c=[f"v_mov_b32 v{ET+16}, {sGC0}"]
    for i in range(9):
        fill=[]
        if 1<=i<=3: fill+=dma_w(i+4)
        if i==4: fill+=[set_xs(1)]
        if 4<=i<=7: fill+=dma_x(XB,i-4,1,f"x1q{i-4}")
        if i==5: fill+=[flag_R()]
        rd=[]
        if i<8:
            sl=wslot(i); base=(2,C0) if sl==C0 else (0,XB)
            for ks in range(4):
                for t in range(2):
                    for u in range(2):
                        rd.append(f"ds_read_b64_tr_b16 {ar(wfrag(t,4*i+ks)+2*u,2)}, {vWT[base[0]+t]} offset:{sl-base[1]+ks*4096+u*512} ;@r")
                rd.append(xread(4*i+ks,"r"))
        else:
            rd+=[xr_move(XB-XA)]+[xread(ks,"r") for ks in range(4)]
            fill+=[set_xs(2)]+dma_x(XA,0,2,"x2")
        if i==0:
            c+=flat(fill)+flat(rd)
        else:
            mf=[m for ks in range(4*(i-1),4*i) for m in g1_mf(0,ks)]
            gaps=[[] for _ in mf]
            spread(gaps,rd,0,7); spread(gaps,fill,0,8)
            c+=weave(mf,gaps)
        if i<7: c+=["WAITLG all",f"WAITVM W{i+1}","s_barrier"]
        elif i==7: c+=["WAITLG all","WAITVM x1q1","s_barrier"]
    return c

def wd_setup():
    c=["v_lshrrev_b32 v160, 3, v0","v_and_b32 v161, 7, v0","v_and_b32 v162, 2, v160","v_lshlrev_b32 v162, 1, v162",
       "v_xor_b32 v161, v161, v162","v_lshlrev_b32 v161, 4, v161",f"v_lshl_add_u32 {vWO[0]}, v160, 10, v161",
       f"v_add_u32 {vWO[1]}, {8192-1024}, {vWO[0]}", f"v_add_u32 {vWO[2]}, {65536-2048}, {vWO[0]}", f"v_add_u32 {vWO[3]}, {65536+8192-3072}, {vWO[0]}",
       "v_lshrrev_b32 v160, 5, v0","v_lshlrev_b32 v160, 9, v160","v_bfe_u32 v161, v0, 2, 2","v_lshl_add_u32 v160, v161, 7, v160",
       "v_bfe_u32 v161, v0, 4, 1","v_lshl_add_u32 v160, v161, 5, v160","v_and_b32 v161, 3, v0","v_lshl_add_u32 v160, v161, 3, v160",
       f"v_add_u32 v160, {sM16K}, v160","v_bfe_u32 v161, v0, 3, 1",
       f"v_lshl_add_u32 {vWT[0]}, v161, 6, v160","v_xor_b32 v161, 1, v161",f"v_lshl_add_u32 {vWT[1]}, v161, 6, v160",
       f"v_add_u32 {vWT[2]}, {XB}, {vWT[0]}", f"v_add_u32 {vWT[3]}, {XB}, {vWT[1]}"]
    return c
def set_cls(i, dst, mul):
    return [f"s_sub_u32 {dst}, {sRES}, {i}", f"s_and_b32 {dst}, {dst}, 3", f"s_mul_i32 {dst}, {dst}, {mul}"]
def dma_wd(i, region):
    tag=f"D{i}"
    g=[set_cls(i,sWDS,7*65536)+[f"s_add_u32 {sWDS}, {sWDS}, {sM16K}"],[f"s_lshl_b32 {sT1}, {sCG}, 7", f"s_add_u32 {sWDS}, {sWDS}, {sT1}"]]
    for pr in range(4):
        n=4 if pr<3 else 2
        for j in range(n):
            pre=[f"s_add_u32 m0, {sM16K}, {region+pr*4096}", f"s_add_u32 {sT0}, {sWDS}, {pr*131072}"] if j==0 else []
            g.append(pre+[f"buffer_load_dwordx4 {vWO[j]}, {SWD}, {sT0} offen offset:{j*1024} {opt.ldd} lds ;@{tag}"])
    return g
def dfrag(i,fb,dt): return 56*i+8*fb+4*dt
def tr_wd(i, region):
    o=0 if region==XA else 2
    return [f"ds_read_b64_tr_b16 {ar(dfrag(i,fb,dt)+2*u,2)}, {vWT[o+dt]} offset:{fb*2048+u*1024} ;@d{i}" for fb in range(7) for dt in range(2) for u in range(2)]

def round_n(r):
    mf=[m for ks in range(32) for m in g1_mf(r,ks)]
    gaps=[[] for _ in mf]; pre={}
    for k4 in range(8):
        ks=4*k4
        pre[2*ks]=["WAITLG r"]
        if k4<7:
            if r==1 and k4==3: pre[2*ks]+=["WAITVM x1q3","s_barrier"]
            spread(gaps,[xread(k,"r") for k in range(ks+4,ks+8)],2*ks,2*ks+7)
        else:
            if r<3:
                pre[2*ks]+=[f"WAITVM x{r+1}","s_barrier"]
                mv=xr_move(XA-XB if r%2 else XB-XA)
                spread(gaps,[mv[:4]],2*ks-1,2*ks);
                spread(gaps,[xread(k,"r") for k in range(4)],2*ks,2*ks+7)
                spread(gaps,[mv[4:6],mv[6:8]],2*ks+4,2*ks+8)
            else:
                pre[2*ks]+=["s_barrier"]
    ep=[set_hs(r-1)[:6],set_hs(r-1)[6:]]+epilogue(r-1)
    spread(gaps,ep,0,56)
    dm=[]
    if r==1:
        for kq in range(1,4): dm+=dma_x(XA,kq,2,"x2")
        spread(gaps,dm,0,28)
    if r==2:
        dm=[set_xs(3)]
        for kq in range(4): dm+=dma_x(XB,kq,3,"x3")
        spread(gaps,dm,0,34)
        spread(gaps,[[x] for x in wd_setup()],36,55)
    if r==3:
        spread(gaps,dma_wd(0,XA),0,34)
        spread(gaps,dma_wd(1,XB)[:6],56,64)
    if r>=2: spread(gaps,flag_H(r-2),14,24)
    return weave(mf,gaps,pre)

lab=[0]
def poll_issue(tag): return [f"buffer_load_dwordx2 {vPOLL}, {vPA}, {SWS}, 0 offen sc1 ;@{tag}"]
def poll_check(tag):
    lab[0]+=1; n=lab[0]
    c=[f"s_mov_b32 {sCNT}, 100000", f"WAITVM {tag}", f"s_branch L_pc{n}",
       f"L_pl{n}:", f"buffer_load_dwordx2 {vPOLL}, {vPA}, {SWS}, 0 offen sc1 ;@skip", "s_waitcnt vmcnt(0) ;@skip",
       f"L_pc{n}:", f"v_cmp_eq_u64 vcc, {sNON}, {vPOLL}", f"s_and_b64 {sPT}, vcc, {sPM}", f"s_cmp_eq_u64 {sPT}, {sPM}", f"s_cbranch_scc1 L_pd{n}",
       f"s_sub_u32 {sCNT}, {sCNT}, 1", f"s_cmp_lg_u32 {sCNT}, 0", f"s_cbranch_scc1 L_pl{n}", f"L_pd{n}:"]
    return c
def pa_H():
    return [f"s_lshl_b32 {sT1}, {sB}, 1", f"s_add_u32 {sT1}, {sT1}, {sP}", f"s_lshl_b32 {sT1}, {sT1}, 9", f"s_add_u32 {sT1}, {sT1}, {WS_FH}",
            f"v_lshl_add_u32 {vPA}, {vL}, 3, {sT1}"]
def mask_H(i):
    return set_cls(i,sT1,14)+[f"s_mov_b64 {sPM}, 0x3fff", f"s_lshl_b64 {sPM}, {sPM}, {sT1}"]
def pa_P():
    return [f"s_lshl_b32 {sT1}, {sW}, 8", f"s_add_u32 {sT1}, {sT1}, {WS_FP}", f"v_lshl_add_u32 {vPA}, {vL}, 3, {sT1}",
            "s_mov_b32 s64, -1", "s_mov_b32 s65, 0"]

HB=[128,192]
def h_loads(i):
    g=[set_cls(i,sHS,7*8192)+[f"s_mul_i32 {sT1}, {sB}, {28*8192}", f"s_add_u32 {sHS}, {sHS}, {sT1}"],
       [f"s_lshl_b32 {sT1}, {sW}, 11", f"s_add_u32 {sHS}, {sHS}, {sT1}", f"s_add_u32 {sHS}, {sHS}, {WS_H}"]]
    for fb in range(7):
        for at in range(2):
            pre=[f"s_add_u32 {sT0}, {sHS}, {fb*8192}"] if at==0 else []
            g.append(pre+[f"buffer_load_dwordx4 {vr(HB[i%2]+8*fb+4*at,4)}, {vL16}, {SWS}, {sT0} offen offset:{at*1024} sc1 ;@H{i}_{fb}"])
    return g
def acc2(dt,at): return ACC+32*dt+16*at
def g2_class(i, fill, lo=0, hi=28):
    mf=[]; pre={}
    for fb in range(7):
        pre[4*fb]=[f"WAITVM H{i}_{fb}"]
        if fb==0: pre[0]+=[f"WAITLG d{i}"]
        for at in range(2):
            for dt in range(2):
                d=vr(acc2(dt,at),16)
                mf.append(MF32(d, ar(dfrag(i,fb,dt),4), vr(HB[i%2]+8*fb+4*at,4), d if (i or fb) else "0"))
    gaps=[[] for _ in mf]
    for (items,l,h) in fill: spread(gaps,items,l,h)
    return weave(mf,gaps,pre)
TT=184
FI=0
GF2=224
def gen_Finv():
    c=[]
    c+=["v_and_b32 v252, 31, v0", f"s_lshl_b32 {sT1}, {sCG}, 6", f"v_add_u32 v252, {sT1}, v252", "v_cvt_f32_u32 v248, v252",
        f"v_mul_f32 v248, {f2u(1/512)}, v248", f"v_add_f32 v249, {f2u(32/512)}, v248",
        "v_lshrrev_b32 v253, 5, v0", "v_lshlrev_b32 v253, 2, v253", f"s_lshl_b32 {sT1}, {sW}, 6", f"v_add_u32 v253, {sT1}, v253",
        "v_cmp_eq_u32 vcc, 0, v253", "v_cvt_f32_u32 v253, v253",
        "v_mul_f32 v250, v253, v248", "v_mul_f32 v251, v253, v249",
        "v_and_b32 v252, 1, v0", "v_cvt_f32_u32 v252, v252", "v_fma_f32 v252, v252, -2.0, 1.0",
        "v_cndmask_b32 v252, 0, v252, vcc"]
    for gs in range(4):
        for dt in range(2):
            for j in range(8):
                c+=[f"v_fmamk_f32 v{TT+j}, v{248+dt}, {f2u(16*gs+8*(j//4)+j%4)}, v{250+dt}"]
            for ct in range(2):
                op="v_cos_f32" if ct==0 else "v_sin_f32"
                for j2 in range(4):
                    c+=[f"{op} v254, v{TT+2*j2}", f"{op} v255, v{TT+2*j2+1}"]
                    if ct==1 and gs==0 and j2==0: c+=["v_add_f32 v254, v254, v252"]
                    c+=[f"v_cvt_pk_bf16_f32 v254, v254, v255", f"v_accvgpr_write_b32 a{FI+((ct*4+gs)*2+dt)*4+j2}, v254"]
    return c
def gen_G():
    c=[]
    c+=["v_and_b32 v252, 31, v0", "v_cvt_f32_u32 v248, v252", f"v_mul_f32 v248, {f2u(1/64)}, v248", "v_add_f32 v249, 0.5, v248",
        "v_lshrrev_b32 v253, 5, v0", "v_cmp_eq_u32 vcc, 0, v253", "v_lshlrev_b32 v253, 1, v253", "v_cvt_f32_u32 v253, v253",
        "v_mul_f32 v250, v253, v248", "v_mul_f32 v251, v253, v249",
        "v_and_b32 v252, 1, v0", "v_cvt_f32_u32 v252, v252", "v_fma_f32 v252, v252, -2.0, 1.0", "v_cndmask_b32 v252, 0, v252, vcc"]
    for js in range(4):
        for at in range(2):
            for j2 in range(4):
                cc=8*js+4*(j2//2)+j2%2
                c+=[f"v_fmamk_f32 v{TT+j2}, v{248+at}, {f2u(cc)}, v{250+at}"]
            for j2 in range(4):
                c+=[f"v_cos_f32 v254, v{TT+j2}", f"v_sin_f32 v255, v{TT+j2}"]
                if js==0 and j2==0: c+=["v_add_f32 v255, v255, v252"]
                c+=[f"v_cvt_pk_bf16_f32 v254, v254, v255", f"v_accvgpr_write_b32 a{GF2+(js*2+at)*4+j2}, v254"]
    return c
def dma_rp(region):
    g=[[f"s_lshl_b32 {sT1}, {sB}, 16", f"s_add_u32 {sT1}, {sT1}, {sM16K}", f"s_add_u32 {sWDS}, {sT1}, {WS_RP}"]]
    for i in range(16):
        pre=[f"s_add_u32 m0, {sM16K}, {region+(i//4)*4096}", f"s_add_u32 {sT0}, {sWDS}, {(i//4)*4096}"] if i%4==0 else []
        g.append(pre+[f"buffer_load_dwordx4 {vL16}, {SWS}, {sT0} offen offset:{(i%4)*1024} sc1 lds ;@RP"])
    return g
def vpart(fill):
    U=HB[0]
    def rd(k): return [f"ds_read_b128 {vr(XR+8*(k%4)+4*jt,4)}, {vXR[k]} offset:{jt*8192} ;@u{k}" for jt in range(2)]
    c=["WAITVM RP"]+rd(0)+rd(1)+rd(2)
    mf=[]; pre={}
    for k in range(8):
        pre[4*k]=[f"WAITLG u{k}"]
        for jt in range(2):
            for dt in range(2):
                d=vr(U+32*jt+16*dt,16)
                mf.append(MF32(d, vr(XR+8*(k%4)+4*jt,4), ar(FI+(k*2+dt)*4,4), d if k else "0"))
    gaps=[[] for _ in mf]
    for k in range(3,8): spread(gaps,rd(k),4*(k-3)+1,4*(k-3)+3)
    for (items,l,h) in fill: spread(gaps,items,l,h)
    c+=weave(mf,gaps,pre)
    for jt in range(2):
        for dt in range(2):
            for e in range(8):
                c+=[f"v_cvt_pk_bf16_f32 v{XR+16*jt+8*dt+e}, v{U+32*jt+16*dt+2*e}, v{U+32*jt+16*dt+2*e+1}"]
    for js in range(4):
        for dt in range(2):
            for at in range(2):
                d=vr(U+32*dt+16*at,16)
                c+=[MF32(d, vr(XR+16*(js//2)+8*dt+4*(js%2),4), ar(GF2+(js*2+at)*4,4), d if js else "0")]
    return c
def final():
    Y=HB[0]; c=[]
    for dt in range(2):
        for at in range(2):
            for q in range(4):
                a=acc2(dt,at)+4*q; y=Y+32*dt+16*at+4*q
                for i in range(4): c+=[f"v_fma_f32 v{a+i}, v{a+i}, {vOMG[at]}, v{y+i}"]
                c+=[f"ds_write_b128 {vXR[4*dt+q]}, {vr(a,4)} offset:{at*8192} ;@fw"]
    c+=["v_lshrrev_b32 v96, 3, v0","v_and_b32 v97, 7, v0","v_lshlrev_b32 v98, 1, v97","v_xor_b32 v98, v98, v96",
        "v_lshlrev_b32 v98, 4, v98","v_lshl_add_u32 v98, v96, 8, v98", f"v_add_u32 v98, {sM4K}, v98",
        "v_xor_b32 v99, 16, v98", "v_xor_b32 v100, 0x880, v98", "v_xor_b32 v101, 0x890, v98",
        "v_lshlrev_b32 v102, 15, v96","v_lshl_add_u32 v102, v97, 4, v102",
        f"s_lshl_b32 {sT1}, {sW}, 19", f"s_lshl_b32 {sT0}, {sB}, 10", f"s_add_u32 {sT1}, {sT1}, {sT0}", f"s_lshl_b32 {sT0}, {sCG}, 7", f"s_add_u32 {sT1}, {sT1}, {sT0}",
        f"s_add_u32 {sT0}, {sT1}, {8*32768}"]
    c+=["WAITLG all","s_barrier"]
    for rho in range(2):
        for pw in range(4):
            for e in range(2):
                c+=[f"ds_read_b128 {vr(128+32*rho+8*pw+4*e,4)}, v{98+2*rho+e} offset:{pw*16384} ;@fr{rho}"]
    for rho in range(2):
        b=128+32*rho
        c+=[f"WAITLG fr{rho}"]
        for i in range(8): c+=[f"v_add_f32 v{b+i}, v{b+i}, v{b+8+i}", f"v_add_f32 v{b+16+i}, v{b+16+i}, v{b+24+i}"]
        for i in range(8): c+=[f"v_add_f32 v{b+i}, v{b+i}, v{b+16+i}"]
        for i in range(4): c+=[f"v_cvt_pk_bf16_f32 v{b+8+i}, v{b+2*i}, v{b+2*i+1}"]
        c+=[f"buffer_store_dwordx4 {vr(b+8,4)}, v102, {SOUT}, {sT1 if rho==0 else sT0} offen {opt.outf} ;@out"]
    return c

def xr_to_private():
    c=["v_and_b32 v252, 31, v0", f"v_lshl_add_u32 v252, v252, 8, {sM16K}", "v_lshrrev_b32 v253, 5, v0", "v_and_b32 v254, 15, v0"]
    for i in range(8):
        c+=[f"v_add_u32 v255, {2*i}, v253","v_xor_b32 v255, v255, v254",f"v_lshl_add_u32 {vXR[i]}, v255, 4, v252"]
    return c

def gemm2():
    one=lambda L: [[x] for x in L]
    c=[]
    c+=mask_H(0)+poll_check("ph")
    c+=flat(h_loads(0))
    c+=["WAITVM D0"]+tr_wd(0,XA)
    c+=mask_H(1)+poll_check("ph")
    c+=["WAITLG d0"]
    c+=flat(dma_wd(2,XA))
    c+=flat(h_loads(1))
    c+=["WAITVM D1"]+tr_wd(1,XB)
    c+=stamp()
    c+=g2_class(0,[(one(gen_G()),0,28)])
    c+=poll_issue("ph2")+["WAITLG d1"]+flat(dma_wd(3,XB))
    c+=mask_H(2)+poll_check("ph2")
    c+=flat(h_loads(2))
    c+=["WAITVM D2"]+tr_wd(2,XA)
    c+=g2_class(1,[(one(xr_to_private()),0,28)])
    c+=stamp()
    c+=pa_P()+poll_issue("pp")+["WAITLG d2"]+poll_check("pp")
    c+=flat(dma_rp(XA))
    c+=pa_H()+poll_issue("ph3")
    c+=["WAITVM D3"]+tr_wd(3,XB)
    fi=gen_Finv()
    c+=g2_class(2,[(one(fi[:110]),0,28)])
    c+=fi[110:]
    c+=stamp()
    c+=mask_H(3)+poll_check("ph3")
    c+=flat(h_loads(3))
    c+=vpart([])
    c+=stamp()
    sc=[f"v_mul_f32 v{HB[0]+32*dt+16*at+i}, {vG[at]}, v{HB[0]+32*dt+16*at+i}" for dt in range(2) for at in range(2) for i in range(16)]
    c+=g2_class(3,[(one(sc),4,28)])
    c+=stamp()
    c+=final()
    return c

MFW=0; MIV=32; BFR=64; CSV=96
CP1,CP2,CQ,CR1,CR2,CU=[128+16*i for i in range(6)]
CX=224
ZP=96
DD=32
def p2_consts():
    c=[]
    sC=sB
    c+=[f"s_cmp_eq_u32 {sC}, 0", f"s_cselect_b32 s69, -992, {sC}", f"s_cselect_b32 {sT3}, 1, 0"]
    c+=["v_and_b32 v228, 31, v0", "v_lshlrev_b32 v229, 6, v228", "v_cmp_gt_u32 vcc, 16, v228",
        "v_mov_b32 v230, s69", f"v_mov_b32 v231, {sC}", "v_cndmask_b32 v230, v230, v231, vcc", "v_add_u32 v229, v229, v230",
        "v_cvt_f32_u32 v232, v229", f"v_mul_f32 v232, {f2u(1/2048)}, v232",
        f"v_cvt_f32_u32 v236, {sT3}",
        "v_cndmask_b32 v234, v236, 0, vcc", "v_sub_f32 v233, 1.0, v234", "v_sub_f32 v235, 1.0, v236",
        "v_lshrrev_b32 v237, 5, v0", "v_lshlrev_b32 v237, 2, v237", "v_cvt_f32_u32 v237, v237", "v_mul_f32 v238, v237, v232",
        "v_cmp_eq_u32 vcc, 0, v229", "v_cndmask_b32 v239, 0, 1.0, vcc"]
    def blocks(base, idx, u0,u1,u2):
        o=[]
        for j2 in range(4):
            for blk in range(4):
                for e in range(2):
                    C=f"v{240+2*j2+e}"; S=f"v{248+2*j2+e}"; d=f"v{226+e}"
                    if blk==0: o+=[f"v_mul_f32 {d}, {u0}, {C}"]
                    if blk==1: o+=[f"v_mul_f32 {d}, {u1}, {C}", f"v_fma_f32 {d}, -{S}, {u2}, {d}"]
                    if blk==2: o+=[f"v_mul_f32 {d}, {u0}, {S}"]
                    if blk==3: o+=[f"v_mul_f32 {d}, {u2}, {C}", f"v_fma_f32 {d}, {S}, {u1}, {d}"]
                o+=["v_cvt_pk_bf16_f32 v226, v226, v227", f"v_accvgpr_write_b32 a{base+(blk*2+idx)*4+j2}, v226"]
        return o
    for kh in range(2):
        for j in range(8): c+=[f"v_fmamk_f32 v{248+j}, v232, {f2u(16*kh+8*(j//4)+j%4)}, v238"]
        for j in range(8): c+=[f"v_cos_f32 v{240+j}, v{248+j}", f"v_sin_f32 v{248+j}, v{248+j}"]
        for j in range(8): c+=[f"v_add_f32 v{248+j}, v{248+j}, v239" if j%2==0 else f"v_sub_f32 v{248+j}, v{248+j}, v239"]
        c+=blocks(MFW,kh,"v233","v234","v235")
    c+=["v_cvt_f32_u32 v232, v228", f"v_mul_f32 v232, {f2u(1/2048)}, v232", f"v_mul_f32 v229, {f2u(64.0)}, v232",
        "v_and_b32 v239, 1, v0", "v_cvt_f32_u32 v239, v239", "v_fma_f32 v239, v239, -2.0, 1.0", "v_mul_f32 v239, v239, v236",
        "v_cmp_gt_u32 vcc, 32, v0", "v_cndmask_b32 v239, 0, v239, vcc"]
    for sg in range(2):
        off = sC if sg==0 else "s69"
        c+=[f"v_cvt_f32_i32 v238, {off}", "v_mul_f32 v238, v238, v232", "v_fma_f32 v238, v237, v229, v238"]
        if sg==0: c+=["v_mov_b32 v233, 1.0","v_mov_b32 v234, 0"]
        else: c+=["v_mov_b32 v233, v235","v_mov_b32 v234, v236"]
        for j in range(8): c+=[f"v_fmamk_f32 v{248+j}, v229, {f2u(16*sg+8*(j//4)+j%4)}, v238"]
        for j in range(8): c+=[f"v_cos_f32 v{240+j}, v{248+j}", f"v_sin_f32 v{248+j}, v{248+j}"]
        if sg==0: c+=["v_add_f32 v248, v248, v239"]
        c+=blocks(MIV,sg,"v233","v234","v235")
    return c
def p2_coefs(gam):
    c=[]; sC=sB
    c+=["v_and_b32 v228, 31, v0", f"s_lshl_b32 {sT1}, {sW}, 6", f"s_add_u32 {sT1}, {sT1}, {32*gam}", f"v_add_u32 v228, {sT1}, v228",
        "v_cmp_eq_u32 vcc, 0, v228", "v_lshlrev_b32 v228, 1, v228", "v_mov_b32 v234, 512", "v_cndmask_b32 v229, v228, v234, vcc",
        f"v_mov_b32 v234, {f2u(2.0**-19)}", f"v_mov_b32 v235, {f2u(2.0**-20)}", "v_cndmask_b32 v230, v234, v235, vcc", "v_cndmask_b32 v231, v234, 0, vcc",
        "v_lshrrev_b32 v232, 5, v0", "v_lshlrev_b32 v232, 8, v232"]
    LD=32
    for half in range(2):
        for r8 in range(8):
            rho=8*half+r8; e0=8*(rho//4)+rho%4
            off = sC if half==0 else "s69"
            c+=[f"s_add_i32 {sT1}, {off}, {64*e0}", f"v_add_u32 v234, {sT1}, v232",
                "v_sub_u32 v235, 2048, v234", "v_and_b32 v235, 2047, v235"]
            if rho==0:
                c+=["v_cmp_eq_u32 vcc, 0, v234", "v_mov_b32 v236, 1024", "v_cndmask_b32 v235, v235, v236, vcc", "v_cndmask_b32 v233, 1.0, 0, vcc"]
            c+=["v_mul_u32_u24 v234, 514, v234", "v_mul_u32_u24 v235, 514, v235",
                "v_add_u32 v236, v234, v228", "v_add_u32 v237, v235, v228", "v_add_u32 v238, v234, v229", "v_add_u32 v239, v235, v229"]
            b=LD+8*r8
            for n,(a,srd) in enumerate([(236,SWR),(237,SWR),(236,SWI),(237,SWI),(238,SWR),(239,SWR),(238,SWI),(239,SWI)]):
                c+=[f"buffer_load_ushort v{b+n}, v{a}, {srd}, 0 offen ;@wl{r8}"]
            if r8==6: c+=["WAITVM wl0"]
        for r8 in range(8):
            rho=8*half+r8; b=LD+8*r8
            c+=[f"WAITVM wl{r8}"]
            for n in range(8): c+=[f"v_lshlrev_b32 v{b+n}, 16, v{b+n}"]
            rt,rm,it,im,rt2,rm2,it2,im2=[f"v{b+n}" for n in range(8)]
            if rho==0:
                c+=[f"v_fma_f32 v{CP1}, v233, {rm}, {rt}", f"v_fma_f32 v{CP2}, v233, {rm2}, {rt2}", f"v_fma_f32 v{CQ}, v233, {im}, {it}",
                    f"v_fma_f32 v{CX}, v233, {rt}, {rm}", f"v_fma_f32 v{CX+1}, v233, {rt2}, {rm2}", f"v_fma_f32 v{CX+2}, v233, {it}, {im}",
                    f"v_mul_f32 v{CX}, v230, v{CX}", f"v_mul_f32 v{CX+1}, v230, v{CX+1}", f"v_mul_f32 v{CX+2}, v231, v{CX+2}"]
            else:
                c+=[f"v_add_f32 v{CP1+rho}, {rt}, {rm}", f"v_add_f32 v{CP2+rho}, {rt2}, {rm2}", f"v_add_f32 v{CQ+rho}, {it}, {im}"]
            c+=[f"v_sub_f32 v{CR1+rho}, {it}, {im}", f"v_sub_f32 v{CR2+rho}, {it2}, {im2}", f"v_sub_f32 v{CU+rho}, {rt}, {rm}"]
            if rho==0:
                c+=[f"v_mul_f32 v{x}, v233, v{x}" for x in (CR1,CR2,CU)]
            c+=[f"v_mul_f32 v{x+rho}, v230, v{x+rho}" for x in (CP1,CP2,CR1,CR2)]
            c+=[f"v_mul_f32 v{x+rho}, v231, v{x+rho}" for x in (CQ,CU)]
    return c
def p2_group(gam):
    c=[]
    c+=[f"WAITVM RR{gam}"]
    for ks in range(4):
        for ct in range(2):
            for u in range(2):
                c+=[f"ds_read_b64_tr_b16 {ar(BFR+(ks*2+ct)*4+2*u,2)}, {vWT[ct]} offset:{gam*8192+ks*2048+u*1024} ;@b{ks}"]
    for ks in range(4):
        c+=[f"WAITLG b{ks}"]
        tau,kh=ks//2,ks%2
        for ab in range(2):
            for ct in range(2):
                d=vr(DD+32*ab+16*ct,16)
                c+=[MF32(d, ar(MFW+((ab*2+tau)*2+kh)*4,4), ar(BFR+(ks*2+ct)*4,4), d if ks else "0")]
    if gam==1:
        for i in range(99): c+=[f"v_accvgpr_read_b32 v{128+i}, a{CSV+i}"]
    T=228
    for r2 in range(8):
        for e in range(2):
            rho=2*r2+e
            ac,as_,bc,bs=[f"v{DD+16*i+rho}" for i in range(4)]
            p1,p2,q,r1,r2_,u=[f"v{x+rho}" for x in (CP1,CP2,CQ,CR1,CR2,CU)]
            p1b,p2b,qb=(f"v{CX}",f"v{CX+1}",f"v{CX+2}") if rho==0 else (p1,p2,q)
            o=[f"v{T+2*i+e}" for i in range(4)]
            c+=[f"v_mul_f32 {o[0]}, {ac}, {p1}", f"v_mul_f32 {o[1]}, {as_}, {p2}", f"v_mul_f32 {o[2]}, {bc}, {p1b}", f"v_mul_f32 {o[3]}, {bs}, {p2b}",
                f"v_fmac_f32 {o[0]}, {as_}, {q}", f"v_fma_f32 {o[1]}, -{ac}, {q}, {o[1]}", f"v_fmac_f32 {o[2]}, {bs}, {qb}", f"v_fma_f32 {o[3]}, -{bc}, {qb}, {o[3]}",
                f"v_fmac_f32 {o[0]}, {bc}, {r1}", f"v_fmac_f32 {o[1]}, {bs}, {r2_}", f"v_fma_f32 {o[2]}, -{ac}, {r1}, {o[2]}", f"v_fma_f32 {o[3]}, -{as_}, {r2_}, {o[3]}",
                f"v_fma_f32 {o[0]}, -{bs}, {u}, {o[0]}", f"v_fmac_f32 {o[1]}, {bc}, {u}", f"v_fmac_f32 {o[2]}, {as_}, {u}", f"v_fma_f32 {o[3]}, -{ac}, {u}, {o[3]}"]
        for i in range(4): c+=[f"v_cvt_pk_bf16_f32 v{ZP+8*i+r2}, v{T+2*i}, v{T+2*i+1}"]
    n=0
    for ab in range(2):
        for sg in range(2):
            for tau in range(2):
                for ct in range(2):
                    d=vr(DD+32*tau+16*ct,16)
                    c+=[MF32(d, vr(ZP+8*(2*ab+ct)+4*sg,4), ar(MIV+((ab*2+tau)*2+sg)*4,4), d if n else "0")]
            n+=1
    for sg in range(2):
        c+=[f"v_xor_b32 v{236+sg}, {(gam*2+sg)*2*16}, v238"]
    for tau in range(2):
        for ct in range(2):
            for sg in range(2):
                s=DD+32*tau+16*ct+8*sg; t=240+4*((2*ct+sg)%4)
                for i in range(4): c+=[f"v_cvt_pk_bf16_f32 v{t+i}, v{s+2*i}, v{s+2*i+1}"]
                c+=[f"ds_write_b128 v{236+sg}, {vr(t,4)} offset:{tau*256+ct*128} ;@ow"]
    return c
def p2():
    c=["L_p2:"]
    c+=flag_R()
    c+=wd_setup()
    c+=p2_consts()
    c+=p2_coefs(1)
    for i in range(99): c+=[f"v_accvgpr_write_b32 a{CSV+i}, v{128+i}"]
    c+=p2_coefs(0)
    c+=[f"s_and_b32 {sT1}, {sB}, 24", f"s_lshl_b32 {sT0}, {sW}, 1", f"s_add_u32 {sT1}, {sT1}, {sT0}", f"s_lshl_b32 {sT1}, {sT1}, 8",
        f"s_add_u32 {sT1}, {sT1}, {WS_FR}", f"v_lshl_add_u32 {vPA}, {vL}, 3, {sT1}", f"s_mov_b64 {sPM}, -1"]
    c+=["v_lshrrev_b32 v236, 3, v0","v_and_b32 v237, 7, v0","v_and_b32 v238, 2, v236","v_lshlrev_b32 v238, 1, v238","v_xor_b32 v237, v237, v238",
        "v_lshlrev_b32 v237, 4, v237","v_lshl_add_u32 v239, v236, 16, v237",
        "v_and_b32 v236, 31, v0","v_lshrrev_b32 v237, 5, v0","v_and_b32 v238, 7, v0","v_xor_b32 v237, v237, v238","v_lshlrev_b32 v237, 4, v237",
        "v_lshl_add_u32 v237, v236, 9, v237", f"s_add_u32 {sT1}, {sM16K}, {XB}", f"v_add_u32 v238, {sT1}, v237"]
    c+=stamp()
    c+=["s_barrier"]
    c+=poll_issue("pr")+poll_check("pr")
    c+=stamp()
    c+=[f"s_lshl_b32 {sT1}, {sB}, 8", f"s_add_u32 {sT1}, {sT1}, {sM16K}", f"s_add_u32 {sWDS}, {sT1}, {WS_R}"]
    for gam in range(2):
        for rg in range(8):
            c+=[f"s_add_u32 m0, {sM16K}, {XA+gam*8192+rg*1024}", f"s_add_u32 {sT0}, {sWDS}, {gam*8192+(rg%4)*8*65536+(rg//4)*128}",
                f"buffer_load_dwordx4 v239, {SWS}, {sT0} offen sc1 lds ;@RR{gam}"]
    c+=p2_group(0)+p2_group(1)
    c+=["v_bfe_u32 v228, v0, 4, 1", f"s_lshl_b32 {sT1}, {sB}, 1", f"v_add_u32 v229, {sT1}, v228", "v_xor_b32 v229, v229, v0", "v_and_b32 v229, 15, v229",
        "v_lshrrev_b32 v230, 5, v0", "v_xor_b32 v229, v229, v230", "v_lshlrev_b32 v229, 4, v229",
        "v_lshrrev_b32 v231, 4, v0", "v_lshl_add_u32 v229, v231, 8, v229", f"s_add_u32 {sT1}, {sM16K}, {XB}", f"v_add_u32 v229, {sT1}, v229"]
    for i in range(1,4): c+=[f"v_xor_b32 v{229+i*2}, {i*32}, v229"]
    c+=["v_and_b32 v236, 31, v0", "v_lshlrev_b32 v236, 4, v236", "v_lshl_add_u32 v236, v230, 16, v236",
        f"s_lshl_b32 {sT1}, {sB}, 9", f"s_add_u32 {sT1}, {sT1}, {sM16K}", f"s_add_u32 {sWDS}, {sT1}, {WS_RP}", "WAITLG all"]
    for i in range(16): c+=[f"ds_read_b128 {vr(32+4*i,4)}, v{229+2*(i%4)} offset:{i*1024} ;@or{i}"]
    for i in range(16):
        c+=[f"s_add_u32 {sT0}, {sWDS}, {i*131072}", f"WAITLG or{i}", f"buffer_store_dwordx4 {vr(32+4*i,4)}, v236, {SWS}, {sT0} offen sc1 ;@Pst"]
    c+=flat(dma_wd(0,XA))
    c+=[f"s_lshl_b32 {sT2}, {sW}, 5", f"s_add_u32 {sT2}, {sT2}, {sB}", f"s_lshl_b32 {sT2}, {sT2}, 3", f"s_add_u32 {sT2}, {sT2}, {WS_FP}",
        "WAITVM Pst", f"buffer_store_dwordx2 {vNON}, {vFO}, {SWS}, {sT2} offen sc1 ;@fl"]
    c+=stamp()
    c+=flat(dma_wd(1,XB))
    c+=pa_H()+poll_issue("ph")+["WAITVM all","s_branch L_g2"]
    return c

def tail():
    c=[]
    c+=["s_cmp_lg_u32 s2, 0","s_cbranch_scc1 L_noe", f"buffer_store_dwordx2 {vNON}, {vFO}, {SWS}, 0 offen sc1", "L_noe:"]
    if opt.stamps:
        c+=["s_waitcnt vmcnt(0)"]
        c+=["s_memtime s[98:99]","s_memrealtime s[96:97]","s_waitcnt lgkmcnt(0)",
            f"s_lshl_b32 {sT0}, s2, 2", f"s_add_u32 {sT0}, {sT0}, {sW}", f"s_lshl_b32 {sT0}, {sT0}, 7", f"s_add_u32 {sT0}, {sT0}, {WS_DBG}"]
        for i in range(16):
            c+=[f"v_mov_b32 v8, s{70+2*i}", f"buffer_store_dword v8, {vFO}, {SWS}, {sT0} offen offset:{4*i}"]
    if opt.hold:
        c+=["s_waitcnt vmcnt(0)","L_hold:","s_memrealtime s[96:97]","s_waitcnt lgkmcnt(0)","s_sub_u32 s96, s96, s100",f"s_cmp_lt_u32 s96, {opt.hold}","s_cbranch_scc1 L_hold"]
    if opt.dbg:
        c+=["s_waitcnt vmcnt(0)","s_load_dwordx2 s[8:9], s[0:1], 72","s_waitcnt lgkmcnt(0)","s_mov_b32 s10, 256","s_mov_b32 s11, 0x20000",
            "v_mov_b32 v8, s96", f"buffer_atomic_umax v8, {vFO}, s[8:11], 0 offen",
            "s_not_b32 s100, s100","v_mov_b32 v9, s100", f"buffer_atomic_umax v9, {vFO}, s[8:11], 0 offen offset:4",
            f"s_cmp_lg_u32 {sW}, 0","s_cbranch_scc1 L_end",
            "s_cmp_eq_u32 s2, 0","s_cbranch_scc1 L_d0","s_cmp_eq_u32 s2, 255","s_cbranch_scc0 L_end"]
        for n,i in enumerate((1,3,4,5,6,14)):
            c+=[f"s_sub_u32 {sT0}, s{70+2*i}, s70", f"v_mov_b32 v8, {sT0}", f"buffer_store_dword v8, {vFO}, s[8:11], 0 offen offset:{40+4*n}"]
        c+=["s_branch L_end","L_d0:"]
        for n,i in enumerate((1,2,3,5,6,7,8,14)):
            c+=[f"s_sub_u32 {sT0}, s{70+2*i}, s70", f"v_mov_b32 v8, {sT0}", f"buffer_store_dword v8, {vFO}, s[8:11], 0 offen offset:{8+4*n}"]
    c+=["L_end:","s_endpgm"]
    return c

def build():
    nstamp[0]=0; lab[0]=0
    a=prologue()+startup()+p0()
    n0=nstamp[0]
    br=[f"s_cmp_eq_u32 {sCG}, 7","s_cbranch_scc1 L_p2"]
    m=round0()+stamp()+round_n(1)+round_n(2)+stamp()+round_n(3)
    m+=flat(dma_wd(1,XB)[6:])+pa_H()+poll_issue("ph")+flat(flag_H(2))+set_hs(3)+epilogue(3)+flat(flag_H(3))+stamp()
    n1=nstamp[0]
    g2=["L_g2:"]+gemm2()+tail()
    n2=nstamp[0]
    nstamp[0]=n0
    inp2[0]=True
    pp=p2()
    inp2[0]=False
    assert nstamp[0]<=n1
    assert n2<=13
    main,ad1=finalize(a+br+m+g2)
    full,ad2=finalize(a+["L_mark:"]+pp)
    idx=[i for i,x in enumerate(full) if x.text=="L_mark:"][0]
    side=full[idx+1:]
    return main+side

HEAD = open("gated_mix__spectral_gfnet__glu_gated_geglu__prompt.s.ref").read().split("; Override launch")[0]
def emit(path):
    code=build()
    s=HEAD+"; @launch grid=(256,1,1) block=(256,1,1) lds=163840\n"
    s+='.amdgcn_target "amdgcn-amd-amdhsa--gfx950"\n.text\n'
    s+=f".globl {KNAME}\n.p2align 8\n.type {KNAME},@function\n{KNAME}:\n"
    for ins in code:
        t=ins.text.split(";")[0].rstrip()
        t=" ".join(t.split())
        s+=(t if ins.kind=="label" else "    "+t)+"\n"
    s+='.section .rodata,"a"\n.p2align 6\n'
    s+=f".amdhsa_kernel {KNAME}\n  .amdhsa_next_free_vgpr 512\n  .amdhsa_next_free_sgpr 102\n  .amdhsa_accum_offset 256\n"
    s+="  .amdhsa_group_segment_fixed_size 0\n  .amdhsa_kernarg_size 88\n  .amdhsa_user_sgpr_count 2\n  .amdhsa_user_sgpr_kernarg_segment_ptr 1\n"
    s+="  .amdhsa_system_sgpr_workgroup_id_x 1\n  .amdhsa_float_denorm_mode_32 3\n.end_amdhsa_kernel\n"
    open(path,"w").write(s)
    return code
if __name__=="__main__":
    out=sys.argv[1]
    for a in sys.argv[2:]:
        k,v=a.split("=")
        cur=getattr(opt,k)
        setattr(opt,k, (v=="1") if isinstance(cur,bool) else (int(v) if isinstance(cur,int) else v))
    code=emit(out)
    from collections import Counter
    print(len(code), Counter(i.kind for i in code))
```

```python
import re
TRANS = ("v_exp_f32","v_log_f32","v_rcp_f32","v_rsq_f32","v_sqrt_f32","v_sin_f32","v_cos_f32","v_rcp_iflag_f32")
_reg = re.compile(r"^(-|\|)?([vas])(\d+|\[(\d+):(\d+)\])\|?$")
def regs_of(op):
    op = op.strip()
    if op.startswith("abs(") : op = op[4:-1]
    if op in ("vcc",): return {"s106","s107"}
    if op == "vcc_lo": return {"s106"}
    if op == "vcc_hi": return {"s107"}
    if op == "exec": return {"exec"}
    if op == "m0": return {"m0"}
    m = _reg.match(op)
    if not m: return set()
    k = m.group(2)
    if m.group(4) is not None:
        return {f"{k}{i}" for i in range(int(m.group(4)), int(m.group(5))+1)}
    return {f"{k}{m.group(3)}"}

class I:
    def __init__(self, text, tag=None):
        self.text = text.strip(); self.tag = tag
        t = self.text.split(";")[0].strip()
        self.mn = t.split()[0] if t else ""
        rest = t[len(self.mn):].strip()
        ops = [o.strip() for o in rest.split(",")] if rest else []
        self.mods = ""
        if ops:
            p = ops[-1].split(None, 1)
            ops[-1] = p[0]
            if len(p) > 1: self.mods = p[1]
        self.ops = ops
        mn = self.mn
        self.kind = "other"
        self.rd = set(); self.wr = set(); self.srcC = set(); self.srcAB=set(); self.passes = 0
        self.data=set()
        if mn.endswith(":") or mn.startswith(".") or mn == "":
            self.kind = "label"
        elif mn in ("WAITVM","WAITLG"):
            self.kind = "symwait"
        elif mn.startswith("v_mfma"):
            self.kind = "mfma"
            self.wr = regs_of(ops[0]); self.srcAB = regs_of(ops[1]) | regs_of(ops[2]); self.srcC = regs_of(ops[3])
            self.rd = self.srcAB | self.srcC
            self.passes = 8 if "32x32x16" in mn else 4
        elif mn == "v_nop":
            self.kind = "valu"
        elif mn.startswith("v_"):
            self.kind = "trans" if mn.replace("_e32","").replace("_e64","") in TRANS else "valu"
            self.wr = regs_of(ops[0])
            for o in ops[1:]: self.rd |= regs_of(o)
            if mn.startswith(("v_fmac","v_pk_fmac","v_dot2c")): self.rd |= self.wr
            if mn.startswith(("v_add_co","v_sub_co","v_addc_co","v_subb_co")):
                self.wr |= regs_of(ops[1])
            if mn.startswith("v_permlane") and "swap" in mn:
                self.wr |= regs_of(ops[1]); self.rd |= regs_of(ops[0])
            if mn.startswith("v_writelane"): self.rd |= self.wr
        elif mn.startswith("ds_"):
            self.kind = "ds"
            if mn.startswith("ds_read") or mn.startswith("ds_bpermute") or mn.startswith("ds_swizzle"):
                self.wr = regs_of(ops[0])
                for o in ops[1:]: self.rd |= regs_of(o)
                if "d16" in mn: self.rd |= self.wr
            else:
                for o in ops: self.rd |= regs_of(o)
        elif mn.startswith(("buffer_","global_")):
            self.kind = "vmem"
            lds = "lds" in self.mods.split() or "_lds_" in mn
            self.lds = lds
            if "load" in mn and not lds:
                self.wr = regs_of(ops[0])
                for o in ops[1:]: self.rd |= regs_of(o)
                if "d16" in mn: self.rd |= self.wr
            else:
                for o in ops: self.rd |= regs_of(o)
                if "store" in mn:
                    self.data = regs_of(ops[0]) if mn.startswith("buffer_") else regs_of(ops[1])
            if lds: self.rd |= {"m0"}
        elif mn.startswith(("s_load","s_buffer_load","s_memtime","s_memrealtime")):
            self.kind = "smem"
            self.wr = regs_of(ops[0])
            for o in ops[1:]: self.rd |= regs_of(o)
        elif mn.startswith("s_"):
            self.kind = "salu"
            if mn.startswith(("s_cmp","s_cbranch","s_branch","s_waitcnt","s_barrier","s_nop","s_sleep","s_endpgm","s_setprio","s_bitcmp")):
                for o in ops: self.rd |= regs_of(o)
            else:
                if ops: self.wr = regs_of(ops[0])
                for o in ops[1:]: self.rd |= regs_of(o)
                if "saveexec" in mn: self.wr |= {"exec"}
    def states(self):
        if self.kind == "label": return 0
        if self.mn == "s_nop": return int(self.ops[0], 0) + 1
        return 1
    def isvalu(self): return self.kind in ("valu","trans")
    def __repr__(self): return self.text

def mk(x):
    out = []
    if isinstance(x, I): return [x]
    if isinstance(x, str):
        for ln in x.split("\n"):
            if ln.strip():
                tag=None
                m = re.search(r";@(\S+)", ln)
                if m: tag = m.group(1)
                out.append(I(ln, tag))
        return out
    for y in x: out += mk(y)
    return out

def resolve_waits(code, age=3, warn=None):
    vm = []; lg = []; out = []; nm = 0
    def emit(q, n, name, why):
        lim = 63 if name == "vmcnt" else 15
        n = min(n, lim)
        if name == "lgkmcnt" and n != 0 and any(p[0].kind == "smem" for p in q): n = 0
        del q[:len(q)-n]
        out.append(I(f"s_waitcnt {name}({n})  ; {why}"))
    for ins in code:
        if ins.tag == "skip" or ins.kind == "label":
            out.append(ins); continue
        if ins.kind == "symwait":
            q = vm if ins.mn == "WAITVM" else lg
            tags = ins.ops
            if tags == ["all"]: n = 0
            else:
                idx = -1
                for i, p in enumerate(q):
                    if p[0].tag in tags: idx = i
                if idx < 0: continue
                n = len(q) - 1 - idx
            if warn is not None and q is lg and q and nm - q[len(q)-1-n][1] < 2 and nm: warn.append(f"young LDS wait at mfma {nm}: {ins.text}")
            emit(q, n, "vmcnt" if ins.mn == "WAITVM" else "lgkmcnt", "wait " + ",".join(tags))
            continue
        if ins.mn == "s_waitcnt":
            t = ins.text.split(";")[0]
            m = re.search(r"vmcnt\((\d+)\)", t)
            if m and len(vm) > int(m.group(1)): del vm[:len(vm)-int(m.group(1))]
            m = re.search(r"lgkmcnt\((\d+)\)", t)
            if m and len(lg) > int(m.group(1)): del lg[:len(lg)-int(m.group(1))]
            out.append(ins); continue
        touched = ins.rd | ins.wr
        for q, name in ((vm, "vmcnt"), (lg, "lgkmcnt")):
            idx = -1
            for i, p in enumerate(q):
                if p[0].wr & touched: idx = i
            if idx >= 0:
                if warn is not None and q is lg and nm - q[idx][1] < 2: warn.append(f"young LDS use at mfma {nm}: {ins.text}")
                if q is lg:
                    while idx + 1 < len(q) and nm - q[idx+1][1] >= age: idx += 1
                emit(q, len(q) - 1 - idx, name, "auto")
        if ins.kind == "vmem": vm.append((ins, nm))
        elif ins.kind in ("ds", "smem"): lg.append((ins, nm))
        elif ins.kind == "mfma": nm += 1
        out.append(ins)
    return out

def merge_waits(code):
    out=[]
    for ins in code:
        if ins.mn=="s_waitcnt" and out and out[-1].mn=="s_waitcnt" and ins.tag!="skip" and out[-1].tag!="skip":
            def g(t,k):
                m=re.search(k+r"\((\d+)\)",t.split(";")[0]); return int(m.group(1)) if m else None
            a,b=out[-1].text,ins.text
            parts=[]
            for k in ("vmcnt","lgkmcnt"):
                v=[x for x in (g(a,k),g(b,k)) if x is not None]
                if v: parts.append(f"{k}({min(v)})")
            out[-1]=I("s_waitcnt "+" ".join(parts))
        else: out.append(ins)
    return out

def check_loads(code):
    vm=[]; lg=[]
    for n,ins in enumerate(code):
        if ins.kind=="label" or ins.tag=="skip": continue
        if ins.mn=="s_waitcnt":
            t=ins.text.split(";")[0]
            m=re.search(r"vmcnt\((\d+)\)",t)
            if m and len(vm)>int(m.group(1)): del vm[:len(vm)-int(m.group(1))]
            m=re.search(r"lgkmcnt\((\d+)\)",t)
            if m and len(lg)>int(m.group(1)): del lg[:len(lg)-int(m.group(1))]
            continue
        m=re.search(r";after (\S+)",ins.text)
        if m:
            for p in vm: assert p.tag not in m.group(1).split(","), f"'{ins.text}' reached with '{p.text}' outstanding"
        touched = ins.rd|ins.wr
        for q in (vm,lg):
            for p in q:
                hit = p.wr & touched
                if hit and not ("d16" in ins.mn and "d16" in p.mn):
                    raise Exception(f"load-use violation at #{n}: '{ins.text}' touches {sorted(hit)} pending from '{p.text}'")
        if ins.kind=="vmem": vm.append(ins)
        elif ins.kind in ("ds","smem"): lg.append(ins)

def need(prod, cons):
    n = 0
    pv = prod.isvalu()
    if pv:
        vw = {r for r in prod.wr if r[0] in "va"}
        sw = {r for r in prod.wr if r[0] == "s"}
        if cons.kind == "mfma" and vw & cons.rd: n = max(n, 2)
        if prod.kind == "trans" and cons.kind == "valu" and vw & cons.rd: n = max(n, 1)
        if prod.kind == "trans" and cons.kind in("ds","vmem") and vw & cons.rd: n = max(n, 1)
        if cons.mn.startswith(("v_readfirstlane","v_readlane")) and vw & cons.rd: n = max(n, 1)
        if cons.isvalu() and ("dpp" in cons.mn or "quad_perm" in cons.mods or "row_" in cons.mods or cons.mn.startswith("v_permlane")) and vw & cons.rd: n = max(n, 2)
        if sw:
            if cons.isvalu() and sw & cons.rd:
                n = max(n, 4 if cons.mn.startswith(("v_readlane","v_writelane")) else 2)
            if cons.kind == "vmem" and sw & cons.rd: n = max(n, 5)
            if cons.kind in("salu","smem") and sw & cons.rd: n = max(n, 1)
    if prod.kind == "mfma":
        big = prod.passes == 8
        if cons.kind == "mfma":
            if prod.wr & cons.srcAB: n = max(n, 12 if big else 8)
            if prod.wr & cons.srcC and not (prod.wr == cons.srcC and prod.passes == cons.passes): n = max(n, 10 if big else 6)
            if prod.wr & cons.wr and not (prod.wr & cons.srcC): n = max(n, 12 if big else 8)
        elif cons.isvalu() or cons.kind in ("ds","vmem"):
            if prod.wr & (cons.rd | cons.wr): n = max(n, 12 if big else 8)
            if cons.isvalu() and prod.srcC & cons.wr: n = max(n, 7 if big else 3)
    if prod.kind == "salu" and "m0" in prod.wr and cons.kind == "vmem" and "m0" in cons.rd: n = max(n, 1)
    if prod.kind == "vmem" and len(prod.data) >= 3 and prod.data & cons.wr: n = max(n, 2)
    return n

def pad_hazards(code, verbose=False):
    out = []; added = 0
    for ins in code:
        if ins.kind != "label":
            dist = 0; worst = 0
            for p in reversed(out):
                if dist >= 13: break
                r = need(p, ins)
                if r > dist: worst = max(worst, r - dist)
                dist += p.states()
            if worst:
                if verbose: print("pad", worst, "before", ins.text)
                out.append(I(f"s_nop {worst-1}")); added += worst
        out.append(ins)
    return out, added

def finalize(code, verbose=False):
    code = mk(code)
    w = []
    code = resolve_waits(code, warn=w)
    if verbose:
        for x in w: print(x)
    code = merge_waits(code)
    check_loads(code)
    code, added = pad_hazards(code, verbose)
    return code, added

def spread(gaps, items, lo, hi):
    n = len(items); m = hi - lo
    for i, it in enumerate(items):
        gaps[lo + (i * m) // n] += mk(it)

def weave(mf, gaps, pre=None):
    out = []
    for i, m in enumerate(mf):
        if pre and pre.get(i): out += mk(pre[i])
        out += mk(m); out += mk(gaps[i])
    return out

def icost(ins):
    if ins.kind == "label": return 0
    if ins.kind == "trans": return 2
    if ins.kind == "vmem": return 2
    if ins.kind == "ds" and ins.mn.startswith("ds_write_b128"): return 5
    if ins.kind == "ds" and ins.mn.startswith("ds_write"): return 2
    return 1
class Stream:
    def __init__(s, items, lo, hi, eager=False, prio=0, pace=None):
        its = []; mins = []; cur = lo
        for it in items:
            if isinstance(it, int): cur = max(cur, it); continue
            if not it: continue
            it = mk(it)
            if len(it) > 1 and it[-1].kind == "vmem" and all(i.kind == "salu" for i in it[:-1]) and "s59" not in it[-1].rd:
                its += [it[:-1], it[-1:]]; mins += [cur, cur]
            else: its.append(it); mins.append(cur)
        s.items = its; s.lo = lo; s.hi = hi; s.eager = eager; s.prio = prio; s.mins = mins
        s.c = [sum(icost(i) for i in it) for it in s.items]
        tot = sum(s.c) or 1; acc = 0; s.tgt = []
        t = lo
        for k, c in enumerate(s.c):
            if pace is None:
                s.tgt.append(max(mins[k], lo + acc * (hi - lo) / tot)); acc += c
            else:
                t = max(t, mins[k]); isv = any(i.kind == "vmem" for i in its[k])
                s.tgt.append(t if isv else max(mins[k], t - 1))
                if isv: t += pace
        s.pos = 0
        s.dl = [None]*len(s.items)
    def deadlines(s, use, W):
        idx = [k for k,it in enumerate(s.items) if it[-1].kind == "vmem" and it[-1].tag in use]
        eff = [use[s.items[k][-1].tag] for k in idx]
        for a in reversed(range(len(eff)-1)): eff[a] = min(eff[a], eff[a+1])
        for a,k in enumerate(idx):
            d = eff[max(0,a-W)] - 1
            d = max(d, s.mins[k]); assert d <= use[s.items[k][-1].tag] - 1, (s.items[k], d)
            s.dl[k] = d
        nxt = None
        for k in reversed(range(len(s.items))):
            if s.dl[k] is not None: nxt = s.dl[k] if nxt is None else min(nxt, s.dl[k])
            if nxt is not None: s.dl[k] = max(nxt, s.mins[k])
def lcost(ins):
    if ins.kind != "ds": return 0
    if ins.mn.startswith("ds_write"): return 32 if ("b128" in ins.mn or "2_b64" in ins.mn) else 16
    if "b128" in ins.mn: return 16
    if "2" in ins.mn.split("_")[1]: return 32 if "b64" in ins.mn else 16
    return 8
def schedule(mf, streams, pre=None, cap=6, report=None):
    pre = {k: mk(v) for k, v in (pre or {}).items()}
    out = []; loads = []
    n = len(mf)
    for g in range(n):
        out += pre.get(g, []); out += mk(mf[g])
        nx = pre.get(g + 1, [])
        room = cap - sum(icost(i) for i in nx)
        if any(i.mn == "s_barrier" for i in nx): room = min(room, 0)
        lroom = 32 if cap == 6 else 16
        fds = []; front = []; back = []; valu_used = set(); nonds = set(); hasv = False
        while True:
            cands = []
            for k, s in enumerate(streams):
                if s.pos >= len(s.items) or g < s.mins[s.pos]: continue
                it = s.items[s.pos]; isv = any(i.isvalu() for i in it)
                forced = (g >= min(s.hi, n) - 1 and not getattr(s,'carry',False)) or (s.dl[s.pos] is not None and g >= s.dl[s.pos])
                if not isv and k in valu_used and not forced: continue
                due = s.tgt[s.pos] <= g + 0.999
                if not (due or s.eager or forced): continue
                c = s.c[s.pos]; lc = sum(lcost(i) for i in it)
                ism = any(i.kind == "vmem" for i in it)
                if ism and (fds or hasv): c += 1
                if lc and hasv and not fds: c += 1
                if not forced:
                    if lc > lroom: continue
                    if c > room and not (c > cap and room >= cap - 1): continue
                cands.append((0 if forced else (1 if due else 2), -s.prio, s.tgt[s.pos], k, c, lc))
            if not cands: break
            _, _, _, k, c, lc = min(cands); s = streams[k]; it = s.items[s.pos]
            if any(i.isvalu() for i in it) or k in valu_used:
                back += it; valu_used.add(k)
            elif all(i.kind == "ds" for i in it) and k not in nonds: fds += it
            else: front += it; nonds.add(k)
            if any(i.kind == "vmem" for i in it): hasv = True
            room -= c; lroom -= lc; s.pos += 1
        out += fds + front + back; loads.append(sum(icost(i) for i in fds + front + back + nx))
    for s in streams: assert s.pos == len(s.items) or getattr(s,'carry',False), "unplaced items"
    if report is not None: report.append(loads)
    return out

def check_init(code):
    seen={"v0","s0","s1","s2","exec"}
    for ins in code:
        if ins.kind=="label": continue
        bad=[r for r in ins.rd if r not in seen]
        if bad and not ins.mn.startswith("v_mov_b32") : print("UNINIT", sorted(bad), "in", ins.text)
        seen|=ins.wr|set(bad)

def check_tags(code):
    code = mk(code); last = {}
    waited = {}
    seen = set()
    for n, ins in enumerate(code):
        if ins.tag == "skip": continue
        if ins.kind == "symwait" and ins.mn == "WAITVM":
            for t in ins.ops:
                if t != "all":
                    assert t in seen, f"wait on tag {t} never issued"
                    waited[t] = n
        if ins.kind == "vmem" and ins.tag:
            assert ins.tag not in waited, f"op issued after its wait: {ins.text}"
            seen.add(ins.tag)
        m = re.search(r";need (\S+)", ins.text)
        if m:
            have = {last.get(r) for r in ins.rd}
            for t in m.group(1).split(","):
                assert t in have, f"operand {t} not loaded before '{ins.text}'"
        for r in ins.wr: last[r] = ins.tag
```

```python
import sys, struct, math
from asmlib import *

KNAME = "gated_mix__spectral_gfnet__glu_gated_geglu__prompt_kernel"
def f2u(x): return "0x%08x" % struct.unpack("<I", struct.pack("<f", x))[0]

WS_G   = 0x10000
WS_FP  = 0x4000
WS_FR  = 0x8000
WS_FD  = 0x18000
WS_FH  = 0x80000
WS_R   = 0x100000
WS_RP  = 0x300000
WS_H   = 0x500000
WS_D   = 0xC00000
WS_DBG = 0xF00000
WS_SIZE = 0x10000000
XA, XB, C0, C1 = 0, 65536, 131072, 147456
L_T, L_H = C0+8192, C1
HS=136
L_NR=L_H+64*HS; L_GW=L_NR+1024; L_NY=L_GW+1024
SX,SWG,SWU,SWD,SWS,SOUT,SGW,SWR,SWI = [f"s[{i}:{i+3}]" for i in (4,8,12,16,20,24,28,32,36)]
sNON="s[40:41]"
sW,sB,sCG,sRES,sRB4,sFB,sP,sQ = "s42","s43","s44","s45","s46","s47","s48","s49"
sXS,sWS0,sM4K,sHS,sFHS,sLD,sM16K,sROT = "s50","s51","s52","s53","s54","s55","s56","s57"
sT0,sT1,sT2,sT3 = "s58","s59","s60","s61"
sGC1,sSWP="s62","s63"
sPM="s[64:65]"; sPT="s[66:67]"; sCNT="s68"; sOH="s69"
sB2="s57"; sFC="s69"; sCC=["s64","s65","s66","s67"]
sRR=["s16","s17","s18","s19"]; sXQ=["s28","s29","s30","s31"]
sDB,sHB,sH0,sFH0,sX0,sHS2,sWC = "s32","s33","s34","s35","s36","s37","s38"
vL, vL16, vFO = "v0","v1","v2"
vG = ["v3","v4"]; vPA="v5"; vNON="v[6:7]"
vXO=[f"v{8+i}" for i in range(4)]
vXR=[f"v{12+i}" for i in range(8)]
vWO=[f"v{20+i}" for i in range(4)]
vWT=[f"v{24+i}" for i in range(4)]
vOMG=[["v20","v21"],["v22","v23"]]
vPA2="v28"; vTP="v29"; vPOLL="v[30:31]"
def vr(a,n): return f"v[{a}:{a+n-1}]"
def ar(a,n): return f"a[{a}:{a+n-1}]"
ACC=32; XR=96; ET=128; HP=[144,152]; vGC0='v24'

class Opt:
    stamps=0; hold=0; probe=''; inp2=False; outf=""; cpf=True; verbose=False
    sel='start,x0/qx0,p0/qp0,r0/qprep,r2/qpoll,r3/qmain,g28,g56,g84,g108,gend'
    slp=4; nomem=0; drop=''
    q_ne=10; q_t='3.10.7.4'; q_nh=10; q_e=0; q_npre=9; q_sp=10; pdi=8; nd1=9; nd2=17; nd3=33; nd4=41; hb=46; fhg=40; seq='012v3'; hk1=8; hsp=9; hn1=3; hn2=10; f2g=24; p1g=60; p1c=70; ppg=36; ppc=48; pace2=17; win=11; dlead=4; id2=0; f0=24; f1=24; f3=20; f3i=12; hn3=1; nh3=0; hb1=44; hb2=44; hb3=40; nds='4.9.14.30.36'; plead=9; hmode=1; p0g=58; fbar=1; rsg=-1; dsg=21; xsplit=1; hpre=1; nth='011224'; x2g=100; prek=4; npre=21; p0d=0; pace0=30; pace1=21; b01=20; order='x0.e.x1.x2.x3.d.w0.w1.w2.w3'; pdb=24; nw1=11; sp1=8; sp2=8; st2=60
opt=Opt()
nstamp=[0]; inp2=[False]; rep=[]
def stamp(name):
    if inp2[0]: name="q"+name
    if opt.probe==name: return ["s_memrealtime s[100:101]","s_waitcnt lgkmcnt(0)"]
    if not opt.stamps: return []
    idx=None
    for i,grp in enumerate(opt.sel.split(",")):
        if name in grp.split("/"): idx=i
    if idx is None: return []
    assert idx<13
    return [f"{'s_memtime' if opt.stamps==1 else 's_memrealtime'} s[{70+2*idx}:{71+2*idx}]","s_waitcnt lgkmcnt(0)"]
def MF32(d,a,b,c): return f"v_mfma_f32_32x32x16_bf16 {d}, {a}, {b}, {c}"
def MF16(d,a,b,c): return f"v_mfma_f32_16x16x32_bf16 {d}, {a}, {b}, {c}"
def flat(g): return [i for x in g for i in (x if isinstance(x,list) else [x])]
def one(L): return [[x] for x in L]
def sprinkle(main, items, every, start=0):
    out=[]; items=list(items); main=mk(main); due=0
    for n,ins in enumerate(main):
        if n>=start and (n-start)%every==0: due+=1
        if items and due and not ins.mn.startswith(("s_cselect","s_subb","s_addc","s_cbranch")):
            out+=mk(items.pop(0)); due-=1
        out.append(ins)
    for it in items: out+=mk(it)
    return out

lab=[0]; outl=[]
def poll_issue(tag, pa=vPA, so="0"): return [f"buffer_load_dwordx2 {vPOLL}, {pa}, {SWS}, {so} offen sc1 ;@{tag}"]
def poll_check(tag, pa=vPA, so="0", mask=0x3fff):
    lab[0]+=1; n=lab[0]
    chk=[f"v_cmp_ne_u64 vcc, {sNON}, {vPOLL}", f"s_and_b32 {sCNT}, vcc_lo, {mask}"]
    outl.extend([f"L_pr{n}:", f"s_mov_b32 s3, 100000", f"L_pl{n}:", f"s_sleep {opt.slp}",
           f"buffer_load_dwordx2 {vPOLL}, {pa}, {SWS}, {so} offen sc1 ;@skip", f"s_sub_u32 s3, s3, 1", f"s_cbranch_scc1 L_pd{n}", "s_waitcnt vmcnt(0) ;@skip"]+chk+
           [f"s_cbranch_scc1 L_pl{n}", f"s_branch L_pd{n}"])
    return [f"WAITVM {tag}"]+chk+[f"s_cbranch_scc1 L_pr{n}", f"L_pd{n}:"]
def flag_store(soff): return f"buffer_store_dwordx2 {vNON}, {vFO}, {SWS}, {soff} offen sc1 ;@fl"

def dma4(vo, srds, tag, setup):
    g=[setup+[f"buffer_load_dwordx4 {vo[0]}, {srds[0]}, {sT0} offen lds ;@{tag}"]]
    for j in range(1,4): g.append([f"buffer_load_dwordx4 {vo[j]}, {srds[j]}, {sT0} offen offset:{j*1024} lds ;@{tag}"])
    return g
def dma_x(slot,kq,tag):
    return dma4(vXO,[SX]*4,tag,[f"s_add_u32 m0, {sM4K}, {slot+kq*16384}", f"s_add_u32 {sT0}, {sXS}, {sXQ[kq]}"])
def set_xs(r): return [f"s_lshl_b32 {sXS}, {sRR[r]}, 10", f"s_add_u32 {sXS}, {sXS}, {sX0}"]
def wslot(n): return (XB if n<4 else XA)+(n%4)*16384
def dma_w(i):
    su=[f"s_mul_i32 {sT0}, {sXQ[i//2]}, 1792", f"s_add_u32 m0, {sM4K}, {wslot(i)}", f"s_add_u32 {sT0}, {sT0}, {sWS0 if i%2==0 else sWC}"]
    return dma4(vWO,[SWG,SWU,SWG,SWU],f"W{i}",su)

def prologue():
    c=["s_cmp_ge_u32 s2, 256","s_cbranch_scc1 L_end"]
    if opt.stamps or opt.hold: c+=["s_memrealtime s[100:101]"]
    c+=stamp("start")
    c+=["s_load_dwordx4 s[4:7], s[0:1], 0",
        "s_load_dwordx8 s[8:15], s[0:1], 32",
        "s_load_dwordx2 s[20:21], s[0:1], 80",
        "s_load_dwordx2 s[36:37], s[0:1], 16",
        "s_load_dwordx2 s[24:25], s[0:1], 64"]
    c+=[f"s_lshr_b32 {sT1}, s2, 3"]
    if opt.cpf:
        c+=["s_getpc_b64 s[66:67]","L_pc:",f"s_lshl_b32 {sT0}, {sT1}, 11",f"v_lshl_add_u32 v8, v0, 7, {sT0}",
            "v_cmp_gt_u32 vcc, 16, v0","s_mov_b64 s[64:65], vcc","v_cmp_gt_u32 vcc, L_codeend-L_pc, v8","s_and_b64 vcc, vcc, s[64:65]",
            "v_mov_b32 v9, s67","s_and_saveexec_b64 s[64:65], vcc","s_cbranch_execz L_nopf",
            "v_add_co_u32 v8, vcc, s66, v8","v_addc_co_u32 v9, vcc, 0, v9, vcc","global_load_dword v255, v[8:9], off ;@skip","L_nopf:","s_mov_b64 exec, s[64:65]"]
    c+=["v_lshrrev_b32 v5, 6, v0","v_and_b32 v0, 63, v0",f"v_readfirstlane_b32 {sW}, v5",
        f"v_lshlrev_b32 {vL16}, 4, {vL}",
        f"s_and_b32 {sRES}, s2, 3", f"s_lshr_b32 {sCG}, {sT1}, 2", f"s_and_b32 {sT1}, {sT1}, 3", f"s_and_b32 {sT0}, s2, 4",
        f"s_add_u32 {sRB4}, {sT0}, {sT1}", f"s_lshl_b32 {sRB4}, {sRB4}, 2", f"s_add_u32 {sB}, {sRB4}, {sRES}",
        f"s_add_u32 {sROT}, {sT1}, {sCG}", f"s_and_b32 {sROT}, {sROT}, 3",
        f"s_lshr_b32 {sP}, {sW}, 1", f"s_and_b32 {sQ}, {sW}, 1", f"s_lshl_b32 {sM4K}, {sW}, 12", f"s_lshl_b32 {sM16K}, {sW}, 14",
        f"s_lshl_b32 {sXS}, {sW}, 19", f"s_lshl_b32 {sT0}, {sB}, 10", f"s_add_u32 {sXS}, {sXS}, {sT0}", f"s_lshl_b32 {sXQ[0]}, {sROT}, 8"]
    for kq in range(1,4): c+=[f"s_add_u32 {sXQ[kq]}, {sXQ[kq-1]}, 256", f"s_and_b32 {sXQ[kq]}, {sXQ[kq]}, 1023"]
    c+=["v_lshrrev_b32 v128, 4, v0", "v_and_b32 v129, 15, v0", "v_xor_b32 v131, v129, v128", "v_lshlrev_b32 v131, 4, v131", f"v_lshl_add_u32 {vXO[0]}, v128, 15, v131"]
    for j in range(1,4):
        c+=[f"v_xor_b32 v130, {64*j}, {vXO[0]}", f"v_add_u32 {vXO[j]}, {4*j*32768-j*1024}, v130"]
    c+=[f"s_cmp_eq_u32 {sCG}, 7","s_cbranch_scc1 L_p2"]
    return c
def srd_common():
    return [f"s_mov_b32 s6, {0 if opt.nomem&1 else 0x200000}","s_mov_b32 s7, 0x20000", f"s_mov_b32 s22, {WS_SIZE}","s_mov_b32 s23, 0x20000",
            "s_mov_b32 s26, 0x200000","s_mov_b32 s27, 0x20000"]
def cons_scalars():
    if opt.id2: c=[f"s_and_b32 {sB2}, s2, 7", f"s_lshl_b32 {sB2}, {sB2}, 2", f"s_bfe_u32 {sCC[0]}, s2, 0x20003", f"s_add_u32 {sB2}, {sB2}, {sCC[0]}"]
    else: c=[f"s_mov_b32 {sB2}, {sB}", f"s_mov_b32 {sCC[0]}, {sRES}"]
    for i in range(1,4): c+=[f"s_sub_u32 {sCC[i]}, {sCC[0]}, {i}", f"s_and_b32 {sCC[i]}, {sCC[i]}, 3"]
    c+=[f"s_lshl_b32 {sDB}, {sCG}, 2", f"s_add_u32 {sDB}, {sDB}, {sW}", f"s_mul_i32 {sDB}, {sDB}, 57344", f"s_add_u32 {sDB}, {sDB}, {WS_D}",
        f"s_lshl_b32 {sHB}, {sB2}, 2", f"s_add_u32 {sHB}, {sHB}, {sW}", f"s_mul_i32 {sHB}, {sHB}, 57344", f"s_add_u32 {sHB}, {sHB}, {WS_H}",
        f"s_and_b32 {sFC}, {sB2}, 28", f"s_lshl_b32 {sFC}, {sFC}, 1", f"s_add_u32 {sFC}, {sFC}, {sP}", f"s_mul_i32 {sFC}, {sFC}, {56*128}", f"s_add_u32 {sFC}, {sFC}, {WS_FH}"]
    return c

FF=64
vHA,vHB,vTW,vTR,vBW="v28","v29","v3","v4","v30"
def gen_F():
    c=["v_and_b32 v128, 3, v0", "v_bfe_u32 v129, v0, 3, 2", "v_lshl_add_u32 v128, v129, 2, v128", "v_bfe_u32 v129, v0, 2, 1", "v_lshl_add_u32 v128, v129, 4, v128",
       f"s_lshr_b32 {sT3}, {sCG}, 1", f"s_lshl_b32 {sT3}, {sT3}, 6", f"s_and_b32 {sT2}, {sCG}, 1", f"s_add_u32 {sT2}, {sT2}, {sT3}", f"v_lshl_add_u32 v128, v128, 1, {sT2}",
       f"v_cvt_f32_u32 v129, {sP}", f"v_mul_f32 v129, {f2u(-0.25)}, v129",
       f"s_lshl_b32 {sT3}, {sP}, 8", f"v_mov_b32 v130, {sT3}",
       "v_cmp_eq_u32 vcc, 0, v128", "v_lshrrev_b32 v131, 5, v0", f"s_lshl_b32 {sT3}, {sROT}, 7",
       "v_cndmask_b32 v128, v128, v130, vcc", "v_cndmask_b32 v129, v129, 0, vcc",
       "v_cvt_f32_u32 v128, v128", f"v_mul_f32 v128, {f2u(1/512)}, v128",
       f"v_lshl_add_u32 v131, v131, 3, {sT3}", "v_cvt_f32_u32 v131, v131", "v_fmac_f32 v129, v131, v128",
       f"v_mul_f32 v130, {f2u(16.0)}, v128"]
    S0,S1=132,140
    c+=[f"v_mov_b32 v{S0}, v129", f"v_add_f32 v{S1}, v130, v129", "v_cos_f32 v130, v130"]
    for j in range(1,8): c+=[f"v_add_f32 v{S0+j}, v128, v{S0+j-1}", f"v_add_f32 v{S1+j}, v128, v{S1+j-1}"]
    c+=["v_add_f32 v130, v130, v130","v_mov_b32 v131, v130"]
    for j in range(16): c+=[f"v_cos_f32 v{S0+j}, v{S0+j}"]
    for j in range(8): c+=[f"v_cvt_pk_bf16_f32 v{FF+j}, v{S0+2*j}, v{S0+2*j+1}"]
    for ks in range(2,16):
        P,Cu=(S0,S1) if ks%2==0 else (S1,S0)
        for j in range(4): c+=[f"v_pk_fma_f32 {vr(P+2*j,2)}, v[130:131], {vr(Cu+2*j,2)}, {vr(P+2*j,2)} neg_lo:[0,0,1] neg_hi:[0,0,1]"]
        for j in range(4): c+=[f"v_cvt_pk_bf16_f32 v{FF+4*ks+j}, v{P+2*j}, v{P+2*j+1}"]
    return c
def gen_H(B=128):
    r,cf,ad,t=[f"v{B+i}" for i in range(4)]; V=B+4
    c=[f"v_and_b32 {r}, 15, v0", f"s_lshl_b32 {sT1}, {sW}, 4", f"v_add_u32 {r}, {sT1}, {r}", f"v_and_b32 {t}, 1, v0", f"v_lshrrev_b32 {cf}, 1, {r}",
       f"v_cvt_f32_u32 {t}, {t}", f"v_cvt_f32_u32 {cf}, {cf}", f"v_cmp_eq_u32 vcc, 1, {r}", f"v_mul_f32 {t}, {f2u(-0.25)}, {t}", f"v_mul_f32 {cf}, {f2u(1/64)}, {cf}",
       f"v_and_b32 {ad}, 48, v0", f"v_cndmask_b32 {t}, {t}, 0, vcc", f"v_cndmask_b32 {cf}, {cf}, 0.5, vcc", f"v_cvt_f32_u32 v{V}, {ad}", f"v_mul_u32_u24 {r}, {HS}, {r}",
       f"v_fmac_f32 {t}, v{V}, {cf}", f"v_lshl_add_u32 {ad}, {ad}, 1, {r}", f"v_add_u32 {ad}, {L_H}, {ad}"]
    for hf in range(2):
        c+=[f"v_fmamk_f32 v{V+j}, {cf}, {f2u(8*hf+j)}, {t}" for j in range(8)]
        c+=[f"v_cos_f32 v{V+j}, v{V+j}" for j in range(8)]
        c+=[f"v_cvt_pk_bf16_f32 v{V+j}, v{V+2*j}, v{V+2*j+1}" for j in range(4)]
        c+=[f"ds_write2_b64 {ad}, {vr(V,2)}, {vr(V+2,2)} offset0:{2*hf} offset1:{2*hf+1} ;@hw"]
    return c
def xr_addr():
    c=["v_and_b32 v128, 15, v0","v_and_b32 v130, 31, v0", f"s_lshl_b32 {sT2}, {sQ}, 13", f"v_lshl_add_u32 v130, v130, 8, {sT2}", "v_lshrrev_b32 v131, 5, v0",
       "v_xor_b32 v131, v131, v128", f"v_lshl_add_u32 {vXR[0]}, v131, 4, v130"]
    return c+[f"v_xor_b32 {vXR[i]}, {32*i}, {vXR[0]}" for i in range(1,8)]
def p0_addr():
    return [["v_lshrrev_b32 v2, 4, v0"],["v_lshlrev_b32 v2, 28, v2"],["v_lshl_add_u32 v2, v0, 3, v2"],
        ["v_and_b32 v31, 31, v0"],[f"v_mul_u32_u24 {vHA}, {HS}, v31"],
        [f"s_xor_b32 {sT1}, {sW}, 1", f"s_lshl_b32 {sT1}, {sT1}, 11", f"s_add_u32 {sT1}, {sT1}, {L_T}", f"v_lshl_add_u32 {vBW}, v31, 6, {sT1}", f"v_add_u32 {vTR}, {sT1}, {vL16}"],
        [f"v_xor_b32 {vTW}, 2048, {vTR}"],
        ["v_lshrrev_b32 v31, 5, v0"],[f"v_lshl_add_u32 {vHA}, v31, 3, {vHA}"],[f"v_lshl_add_u32 {vBW}, v31, 5, {vBW}"],
        [f"s_mul_i32 {sT1}, {sQ}, {32*HS-64}", f"s_add_u32 {sT1}, {sT1}, {L_H+64}", f"v_add_u32 {vHB}, {sT1}, {vHA}"],
        [f"s_mul_i32 {sT1}, {sQ}, {32*HS+64}", f"s_add_u32 {sT1}, {sT1}, {L_H}", f"v_add_u32 {vHA}, {sT1}, {vHA}"],
        ["v_bfe_u32 v31, v0, 1, 2"],["v_lshlrev_b32 v31, 4, v31"],[f"v_xor_b32 {vBW}, v31, {vBW}"],[f"v_xor_b32 v31, 16, {vBW}"]]
def eload(): return [f"buffer_load_dwordx2 {vNON}, off, {SWS}, 0 sc1 ;@E"]

TA=32; TPK=96; TOT=104; HFA=232; D2=32; RPK=48; RBK=56
def nonce():
    return [["WAITVM E","v_readfirstlane_b32 s40, v6"],["v_readfirstlane_b32 s41, v7"],["s_mul_i32 s40, s40, 0x9E3779B1"],["s_add_u32 s40, s40, 0x7F4A7C15"],
           ["s_mul_i32 s41, s41, 0x85EBCA6D"],["s_add_u32 s41, s41, 0xC2B2AE35"],["v_mov_b32 v6, s40"],["v_mov_b32 v7, s41"],
           [f"s_and_b32 {sT3}, {sCG}, 1"],[f"s_lshl_b32 {sT3}, {sT3}, 31"],[f"s_or_b32 {sT3}, {sT3}, 0x3f800000"],
           [f"s_lshl_b32 {sT2}, {sB}, 3"],[f"s_add_u32 {sT2}, {sT2}, {sCG}"],[f"s_lshl_b32 {sT2}, {sT2}, 2"],[f"s_add_u32 {sT2}, {sT2}, {sW}"],
           [f"s_lshl_b32 {sT2}, {sT2}, 11"],[f"s_add_u32 {sT2}, {sT2}, {WS_R}"]]
def p0_mf(xf):
    return [MF32(vr(TA+16*(ks//16),16), xf(ks), vr(FF+4*(ks%16),4), vr(TA+16*(ks//16),16) if ks%16 else "0") for ks in range(32)]
def x0_reads(xf,kq): return [f"ds_read_b128 {xf(ks)}, {vXR[ks%8]} offset:{kq*16384} ;@r" for ks in range(8*kq,8*kq+8)]
def t_pack():
    c=[]
    for sg in range(2):
        c+=[f"v_pk_fma_f32 {vr(TA+8*sg+2*i,2)}, {vr(TA+16+8*sg+2*i,2)}, s[60:61], {vr(TA+8*sg+2*i,2)} op_sel:[0,1,0] op_sel_hi:[1,1,1]" for i in range(4)]
        c+=[f"v_cvt_pk_bf16_f32 v{TPK+4*sg+i}, v{TA+8*sg+2*i}, v{TA+8*sg+2*i+1}" for i in range(4)]
        c+=[f"ds_write_b128 {vTW}, {vr(TPK+4*sg,4)} offset:{1024*sg} ;@tw"]
    return c
def h_reads():
    return [f"ds_read_b128 {vr(TOT+4*sg,4)}, {vTR} offset:{1024*sg} ;@hr" for sg in range(2)]+\
           [f"ds_read2_b64 {ar(HFA+8*o+4*sg,4)}, {vHA if o==0 else vHB} offset0:{4*sg} offset1:{4*sg+2} ;@hr" for o in range(2) for sg in range(2)]
def h_mf(): return [MF32(vr(D2,16), vr(TPK+4*n,4), ar(HFA+4*n,4), vr(D2,16) if n else "0") for n in range(4)]
def r_pack():
    c=[]
    for e in range(2):
        c+=[f"v_cvt_pk_bf16_f32 v{RPK+4*e+i}, v{D2+8*e+2*i}, v{D2+8*e+2*i+1}" for i in range(4)]
        c+=[f"ds_write_b128 {vBW if e==0 else 'v31'}, {vr(RPK+4*e,4)} ;@bw"]
    return c
def r_back(): return [f"ds_read_b128 {vr(RBK+4*e,4)}, {vTR} offset:{1024*e} ;@br" for e in range(2)]
def r_store():
    return [["WAITLG br", f"buffer_store_dwordx4 {vr(RBK,4)}, {vL16}, {SWS}, {sT2} offen sc1 ;@Rst"],
            [f"buffer_store_dwordx4 {vr(RBK+4,4)}, {vL16}, {SWS}, {sT2} offen offset:1024 sc1 ;@Rst"]]
def flag_R_addr(sT2=sT2):
    return [[f"s_lshl_b32 {sT2}, {sCG}, 5", f"s_add_u32 {sT2}, {sT2}, {sB}"],[f"s_lshl_b32 {sT2}, {sT2}, 7", f"s_add_u32 {sT2}, {sT2}, {WS_FR}"],
            [f"s_cmp_eq_u32 {sW}, 0", f"s_cselect_b32 {sT2}, {sT2}, 0x40000000"]]

def g_start():
    wo=["v_lshrrev_b32 v150, 3, v0", "v_and_b32 v151, 7, v0", "v_and_b32 v152, 2, v150", "v_lshlrev_b32 v5, 1, v152", "v_xor_b32 v5, v5, v151", "v_lshlrev_b32 v5, 4, v5", "v_lshl_add_u32 v5, v150, 10, v5",
        "v_xor_b32 v151, v151, v152", "v_mul_u32_u24 v150, 3584, v150",
        f"v_lshl_add_u32 {vWO[0]}, v151, 4, v150", "v_xor_b32 v151, 4, v151", f"v_lshl_add_u32 {vWO[1]}, v151, 4, v150",
        f"v_add_u32 {vWO[2]}, {8*3584-2048}, {vWO[0]}", f"v_add_u32 {vWO[3]}, {8*3584-2048}, {vWO[1]}",
        f"s_mul_i32 {sFB}, {sRES}, 7", f"s_add_u32 {sFB}, {sFB}, {sCG}",
        f"s_mul_i32 {sWS0}, {sW}, {16*3584}", f"s_lshl_b32 {sWC}, {sFB}, 7", f"s_add_u32 {sWS0}, {sWS0}, {sWC}", f"s_add_u32 {sWC}, {sWS0}, {64*3584}",
        "s_mov_b32 s64, s12","s_mov_b32 s65, s13","s_mov_b32 s66, 1835008","s_mov_b32 s67, 0x20000",
        "s_sub_u32 s12, s10, 1024","s_subb_u32 s13, s11, 0",f"s_mov_b32 s10, {0 if opt.nomem&2 else 1835008}",f"s_mov_b32 s14, {0 if opt.nomem&2 else 1836032}","s_mov_b32 s11, 0x20000","s_mov_b32 s15, 0x20000"]
    gf=gen_F()
    k=[i for i,x in enumerate(wo) if x.startswith("s_mov_b32 s64")][0]
    c=wo[:k]+gf[:opt.prek]+["s_waitcnt lgkmcnt(0)"]+srd_common()+wo[k:]
    dm=start_dmas()[:opt.npre]
    rest=[f"s_lshr_b32 {sOH}, {sM4K}, 1", f"s_add_u32 {sOH}, {sOH}, {C0}", f"s_lshl_b32 {sCNT}, {sFB}, 16", f"s_add_u32 {sCNT}, {sCNT}, {sM16K}", f"s_lshl_b32 {sT1}, {sRB4}, 5", f"s_add_u32 {sCNT}, {sCNT}, {sT1}"]
    rest+=gf[opt.prek:]+xr_addr()+(gen_H() if opt.hpre else [])
    n1=opt.nw1*opt.sp1; n2=max(n1,len(rest)-(len(dm)-opt.nw1)*opt.sp2)
    c+=stamp("karg")+sprinkle(rest[:n2], dm[:opt.nw1], opt.sp1)+stamp("gen1")+sprinkle(rest[n2:], dm[opt.nw1:], opt.sp2)+stamp("gen")
    return c
SD="s[64:67]"
def start_dmas():
    dd=[[f"s_mov_b32 m0, {sOH}", f"s_add_u32 {sT0}, {sCNT}, {8192-1024}", f"buffer_load_dwordx4 v5, {SD}, {sCNT} offen lds ;@Wd"],
        [f"buffer_load_dwordx4 v5, {SD}, {sT0} offen offset:1024 lds ;@Wd"]]
    dm=[]
    for tok in opt.order.split("."):
        if tok[0]=="x": dm+=dma_x(XA,int(tok[1]),f"x0q{tok[1]}")
        elif tok[0]=="w": dm+=dma_w(int(tok[1]))
        elif tok=="e": dm+=[eload()]
        elif tok=="d": dm+=dd
    assert len(dm)==35
    assert all('@x0' not in it[-1] for it in dm[opt.npre:])
    for i in range(4,8): dm+=dma_w(i)
    return dm
def g_setup():
    c=["v_lshrrev_b32 v60, 4, v0","v_bfe_u32 v61, v0, 2, 2","v_and_b32 v62, 3, v0","v_bfe_u32 v63, v0, 3, 2", f"s_lshl_b32 {sT1}, {sP}, 1",
       "v_lshlrev_b32 v62, 3, v62", f"v_xor_b32 v63, {sT1}, v63", "v_lshl_add_u32 v62, v61, 7, v62",
       f"v_lshl_add_u32 {vWT[3]}, v60, 10, v62", "v_lshrrev_b32 v60, 5, v0", f"v_lshl_add_u32 {vWT[3]}, v63, 5, {vWT[3]}", "v_bfe_u32 v61, v0, 4, 1",
       f"v_add_u32 {vWT[0]}, {XB}, {vWT[3]}", "v_lshl_add_u32 v62, v60, 9, v62", "v_bfe_u32 v63, v0, 3, 1", f"v_xor_b32 {vWT[1]}, 32, {vWT[0]}",
       "v_lshl_add_u32 v62, v61, 5, v62", "v_lshl_add_u32 v62, v63, 6, v62",
       f"v_add_u32 {vWT[2]}, {sOH}, v62", f"v_xor_b32 {vWT[3]}, 64, {vWT[2]}",
       f"s_lshl_b32 {sLD}, {sRB4}, 1", f"s_and_b32 {sLD}, {sLD}, 24", f"s_add_u32 {sLD}, {sLD}, {sW}", f"s_mul_i32 {sLD}, {sLD}, 28", f"s_add_u32 {sLD}, {sLD}, {sFB}", f"s_lshl_b32 {sLD}, {sLD}, 1",
       f"s_lshr_b32 {sT1}, {sRB4}, 4", f"s_add_u32 {sLD}, {sLD}, {sT1}", f"s_lshl_b32 {sLD}, {sLD}, 10", f"s_add_u32 {sLD}, {sLD}, {WS_D}", f"s_add_u32 {sHS}, {sLD}, {4*57344}"]
    k=[i for i,x in enumerate(c) if x.startswith(f's_lshl_b32 {sLD}')][0]
    return c[:k], c[k:]
def g_scalars():
    c=[f"s_mov_b32 {sRR[0]}, {sRES}"]
    for r in range(1,4): c+=[f"s_add_u32 {sRR[r]}, {sRES}, {r}", f"s_and_b32 {sRR[r]}, {sRR[r]}, 3"]
    c+=[f"s_lshl_b32 {sX0}, {sW}, 9", f"s_add_u32 {sX0}, {sX0}, {sRB4}", f"s_lshl_b32 {sX0}, {sX0}, 10",
        f"s_lshl_b32 {sH0}, {sRB4}, 1", f"s_add_u32 {sH0}, {sH0}, {sP}", f"s_mul_i32 {sH0}, {sH0}, 56", f"s_add_u32 {sH0}, {sH0}, {sFB}",
        f"s_lshl_b32 {sH0}, {sH0}, 1", f"s_add_u32 {sH0}, {sH0}, {sQ}", f"s_lshl_b32 {sH0}, {sH0}, 10", f"s_add_u32 {sH0}, {sH0}, {WS_H}",
        f"s_lshl_b32 {sFH0}, {sRB4}, 1", f"s_add_u32 {sFH0}, {sFH0}, {sP}", f"s_mul_i32 {sFH0}, {sFH0}, 28", f"s_add_u32 {sFH0}, {sFH0}, {sFB}",
        f"s_lshl_b32 {sFH0}, {sFH0}, 1", f"s_add_u32 {sFH0}, {sFH0}, {sQ}", f"s_lshl_b32 {sFH0}, {sFH0}, 7", f"s_add_u32 {sFH0}, {sFH0}, {WS_FH}",
        f"s_mov_b32 {sGC1}, {f2u(-2*math.sqrt(2/math.pi)*math.log2(math.e)*0.044715)}"]
    return c
def pa_setup(t="v31"):
    return [[f"v_min_u32 {t}, 13, {vL}"],[f"v_lshl_add_u32 {vPA}, {t}, 7, {sFC}"],[f"v_lshrrev_b32 {t}, 4, {vL}"],[f"v_lshl_add_u32 {vPA}, {t}, 28, {vPA}"],
            [f"v_and_b32 {t}, 7, {vL}"],[f"s_lshr_b32 {sT1}, {sCG}, 1", f"s_lshl_b32 {sT1}, {sT1}, 2", f"s_add_u32 {sT1}, {sT1}, {sW}", f"s_lshl_b32 {sPO}, {sT1}, 7"],
            [f"s_add_u32 {sT1}, {sPO}, {WS_FD}", f"v_lshl_add_u32 {vPA2}, {t}, 12, {sT1}"],
            [f"v_bfe_u32 {t}, {vL}, 3, 1"],[f"v_lshl_add_u32 {vPA2}, {t}, 11, {vPA2}"],[f"v_lshrrev_b32 {t}, 4, {vL}"],[f"v_lshl_add_u32 {vPA2}, {t}, 28, {vPA2}"]]
sPO="s63"
def pa_P(t): return [f"s_lshl_b32 {sT1}, {sW}, 10", f"s_add_u32 {sT1}, {sT1}, {WS_FP}", f"v_lshl_add_u32 {vPA2}, {vL}, 7, {sT1}", f"v_lshrrev_b32 {t}, 3, {vL}", f"v_lshl_add_u32 {vPA2}, {t}, 28, {vPA2}"]
def hpoll(i): return [f"s_mul_i32 {sPO}, {sCC[i]}, {14*128}", f"s_add_u32 {sPO}, {sPO}, {i*112*128}"]+poll_issue(f"ph{i}",vPA,sPO)
def hcheck(i): return poll_check(f"ph{i}",vPA,sPO,mask=0xffff)
def hflag(r): return [f"s_add_u32 {sFA}, {sFH0}, {r*112*128}", f"WAITVM h{r}", flag_store(sFA)]

def wfrag(tau,ks): return 128*tau+4*ks
def xread(ks, tag="r"): return f"ds_read_b128 {vr(XR+4*(ks%8),4)}, {vXR[ks%8]} offset:{(ks//8)*16384} ;@{tag}"
def g1_mf(rnd,ks):
    s=ACC+32*((rnd+1)%2); x=vr(XR+4*(ks%8),4) if rnd else vr(128+4*ks,4)
    return [MF32(vr(s+16*t,16), ar(wfrag(t,ks),4), x, vr(s+16*t,16) if ks else "0") for t in range(2)]
def xr_flip(): return [f"v_xor_b32 {r}, {XB}, {r}" for r in vXR]
def h_stores(rnd):
    return [[f"s_mul_i32 {sHS}, {sRR[rnd]}, 229376", f"s_add_u32 {sHS}, {sHS}, {sH0}", f"s_add_u32 {sHS2}, {sHS}, 57344"]]+\
           [[f"buffer_store_dwordx4 {vr(HP[rnd%2]+4*t,4)}, {vL16}, {SWS}, {sHS if t==0 else sHS2} offen sc1 ;@h{rnd}"] for t in range(2)]
def epilogue(rnd):
    s=ACC+32*((rnd+1)%2); c=[]
    for t in range(2):
        for hh in range(2):
            g=[s+16*t+4*hh+i for i in range(4)]; u=[x+8 for x in g]
            A=ET+8*((2*t+hh)%2); Bq=A+4
            for i in range(4): c+=[f"v_mul_f32 v{A+i}, v{g[i]}, v{g[i]}"]
            for i in range(4): c+=[f"v_fma_f32 v{A+i}, v{A+i}, {sGC1}, {vGC0}"]
            for i in range(4): c+=[f"v_mul_f32 v{A+i}, v{A+i}, v{g[i]}"]
            for i in range(4): c+=[f"v_exp_f32 v{A+i}, v{A+i}", f"v_mul_f32 v{Bq+i}, v{g[i]}, v{u[i]}"]
            for i in range(4): c+=[f"v_add_f32 v{A+i}, 1.0, v{A+i}"]
            for i in range(4): c+=[f"v_rcp_f32 v{A+i}, v{A+i}"]
            for i in range(4): c+=[f"v_mul_f32 v{Bq+i}, v{Bq+i}, v{A+i}"]
            c+=[f"v_cvt_pk_bf16_f32 v{HP[rnd%2]+4*t+2*hh}, v{Bq}, v{Bq+1}", f"v_cvt_pk_bf16_f32 v{HP[rnd%2]+4*t+2*hh+1}, v{Bq+2}, v{Bq+3}"]
    return c

def aslot(n): return ar(128*(n%2)+4*(n//2),4)
def vslot(n): return vr(160+4*n,4)
HOME={}
def _homes():
    D=[(i,n) for i in range(4) for n in range(14)]
    for k,(i,n) in enumerate(D): HOME[('D',i,n)]=vslot(k) if k<24 else aslot(k-24)
    for n in range(14):
        HOME[('H',0,n)]=aslot(32+n); HOME[('H',1,n)]=aslot(46+n)
        HOME[('H',2,n)]=vslot(n)
        HOME[('H',3,n)]=vslot(14+n) if n<10 else aslot(n-10)
_homes()
def gload(kind,i,ns,order=None):
    base=sDB if kind=='D' else sHB
    g=[]; cur=None
    for n in ns:
        blk=n//4; pre=[]
        if cur is None: pre=[f"s_mul_i32 {sLD}, {sCC[i]}, 14336", f"s_add_u32 {sLD}, {sLD}, {base}"]+([f"s_add_u32 {sLD}, {sLD}, {blk*4096}"] if blk else [])
        elif blk>cur: pre=[f"s_add_u32 {sLD}, {sLD}, {(blk-cur)*4096}"]
        elif blk<cur: pre=[f"s_sub_u32 {sLD}, {sLD}, {(cur-blk)*4096}"]
        cur=blk
        if pre: g.append(pre)
        g.append([f"buffer_load_dwordx4 {HOME[(kind,i,n)]}, {vL16}, {SWS}, {sLD} offen offset:{(n%4)*1024} sc1 ;@{kind}{i}_{n}"])
    return g

def fuse(items):
    o=[]; cur=[]
    for it in items:
        cur+=it
        l=it[-1]; l=l if isinstance(l,str) else l.text
        if l.startswith("buffer"): o.append(cur); cur=[]
    if cur: o.append(cur)
    return o
def round0():
    xf=lambda ks: vr(128+4*ks,4)
    def trw(i):
        return [f"ds_read_b64_tr_b16 {ar(wfrag(t,4*i+ks)+2*u,2)}, {vWT[t]} offset:{(i%4)*16384+ks*4096+u*512} ;@t{i}" for ks in range(4) for t in range(2) for u in range(2)]
    xr=[f"ds_read_b128 {xf(ks)}, {vXR[ks%8]} offset:{(ks//8)*16384} ;@x" for ks in range(32)]
    E=lambda items,lo,hi,prio=3: Stream(items,lo,hi,eager=True,prio=prio)
    ch=lambda n: [m+f" ;need t{n}" for ks in range(4*n,4*n+4) for m in g1_mf(0,ks)]
    hr=h_reads(); no=nonce(); sd=start_dmas()
    if opt.xsplit:
        c=["WAITVM x0q0,x0q1","WAITLG all","s_barrier"]+stamp("x0")+xr[:6]
        pre={8:["WAITVM x0q2,x0q3","s_barrier"],20:["WAITLG x,hw","s_barrier"]+stamp("s1")}; bXA=20
        st=[E(one(xr[6:16]),0,7),E(one(xr[16:]),8,17)]
    else:
        c=["WAITVM x0q0,x0q1,x0q2,x0q3","WAITLG all","s_barrier"]+stamp("x0")+xr[:6]
        pre={17:["WAITLG x,hw","s_barrier"]+stamp("s1")}; bXA=17
        st=[E(one(xr[6:]),0,14)]
    def grp(L):
        out=[]; cur=[]
        for x in L:
            cur.append(x)
            if not (x.startswith("s_") and sT1 in x.split(",")[0]): out.append(cur); cur=[]
        return out
    gv,gsc=g_setup()
    st+=[E(([] if opt.hpre else grp(gen_H(48)))+grp(gv),0,15,1), E(grp(gsc),4,opt.dsg+2,1), E(p0_addr()+no[8:],8,27,0), E(one(hr[2:]),28,32)]
    dr=["WAITVM Wd"]+[f"ds_read_b64_tr_b16 {ar(248+4*i+2*u,2)}, {vWT[2+i]} offset:{u*1024} ;@dr" for i in range(2) for u in range(2)]
    ds=[f"buffer_store_dwordx4 a[248:251], {vL16}, {SWS}, {sLD} offen sc1 ;@Dst", f"buffer_store_dwordx4 a[252:255], {vL16}, {SWS}, {sHS} offen sc1 ;@Dst"]
    st+=[E([dr],opt.dsg,opt.dsg+1,4), Stream(one(ds),opt.dsg+3,opt.dsg+7,prio=4,pace=3)]
    D=Stream(sd[opt.npre:35]+[bXA]+sd[35:],opt.p0d,32,prio=2,pace=opt.pace0/10); D.carry=True; st.append(D)
    c+=schedule(p0_mf(xf),st,pre,report=rep)+stamp("s3")
    dm=fuse(D.items[D.pos:])
    def take(n):
        o=dm[:n]; del dm[:n]; return flat(o)
    k=[int(x) for x in opt.nth]
    rs=r_store(); rs[0]=rs[0][1:]
    hm=h_mf(); gs=g_scalars()
    c+=gs[:7]+take(k[0])+t_pack()+hm[:2]+take(k[1])+["WAITLG tw","s_barrier"]+hr[:2]+flat(no[:8])+take(k[2])+hm[2:]+xr_flip()+gs[7:10]+take(k[3])+r_pack()+r_back()+flat(flag_R_addr(sFHS))+take(k[4])
    late=opt.rsg>=0
    if not late: c+=flat(rs)
    c+=stamp("s4")+[f"s_add_u32 {sLD}, {sFHS}, {WS_FD-WS_FR}","WAITVM W0,W1,Dst","s_barrier"]+trw(0)+[flag_store(sLD)]+take(k[5])
    mf=[m for n in range(8) for m in ch(n)]
    b23,b45,b67,bx=7,23,39,55
    pre={0:stamp("s5"), b23:["WAITLG t1","WAITVM W2,W3","s_barrier"], b45:["WAITLG t3","WAITVM W4,W5","s_barrier"]+stamp("s6"),
         b67:["WAITLG t5","WAITVM W6,W7","s_barrier"]+stamp("s8"), bx:["WAITLG t7","WAITVM x1q0","s_barrier"]+stamp("s10")}
    st=[E(one(trw(1)),0,4)]
    for n,b in ((2,b23),(4,b45),(6,b67)): st+=[E(one(trw(n)),b,b+5), Stream(one(trw(n+1)),b+5,b+13,prio=3)]
    st+=[E(one([f"v_xor_b32 {vWT[t]}, {XB}, {vWT[t]}" for t in range(2)]),b23+13,b23+15,1), E(one([xread(k_) for k_ in range(4)]),bx+1,bx+5)]
    st.append(Stream(one(cons_scalars())+pa_setup(),8,58)); st.append(Stream(one(gs[10:]),8,60))
    if opt.fbar<8:
        fb=(b23,b45,b67,bx)[opt.fbar]
        pre[fb]=["WAITVM Rst"]+pre[fb]; st.append(E([[flag_store(sFHS)]],fb,fb+1,4))
    if late: st.append(Stream(rs,opt.rsg,opt.rsg+10,prio=4,pace=2))
    dm=dm+[set_xs(1),b23]+dma_x(XB,0,"x1q0")+dma_x(XB,1,"x1q1")+[b45]+dma_x(XB,2,"x1q2")+dma_x(XB,3,"x1q3")
    dm+=[set_xs(2),max(b67,opt.x2g)]+dma_x(XA,0,"x2")+dma_x(XA,1,"x2")+[bx]+dma_x(XA,2,"x2")+dma_x(XA,3,"x2")
    D=Stream(dm,0,64,prio=2,pace=opt.pace0/10); D.carry=True
    D.deadlines({"W2":b23-1,"W3":b23-1,"W4":b45-1,"W5":b45-1,"W6":b67-1,"W7":b67-1,"x1q0":bx-1,"x1q1":64,"x1q2":64,"x1q3":64},0); st.append(D)
    c+=schedule(mf,st,pre,report=rep)
    c+=[f"v_mov_b32 {vGC0}, {f2u(-2*math.sqrt(2/math.pi)*math.log2(math.e))}"]
    return c,D.items[D.pos:]

def dloads(a,b):
    o=[]
    for i in range(4):
        ns=[k-14*i for k in range(a,b) if 14*i<=k<14*i+14]
        if ns: o+=gload('D',i,ns)
    return o
def rounds(left):
    mf=[]; pre={}; st=[]
    for r in (1,2,3):
        o=64*(r-1)
        mf+=[m for ks in range(32) for m in g1_mf(r,ks)]
        for k4 in range(8):
            g0=o+8*k4
            if k4<7: st.append(Stream(one([xread(k) for k in range(4*k4+4,4*k4+8)]),g0,g0+4,prio=3))
            elif r<3:
                pre[g0]=["WAITLG r",f"WAITVM x{r+1}","s_barrier"]
                st.append(Stream(one(xr_flip()[:4]),o+46,o+55,prio=2))
                st.append(Stream(one([xread(k) for k in range(4)]),g0,g0+4,prio=3))
                st.append(Stream(one(xr_flip()[4:]),o+56,o+64,prio=2))
        st.append(Stream(one(epilogue(r-1)),o+2,o+{1:opt.hb1,2:opt.hb2,3:opt.hb3}[r],eager=True))
        if r>1: pre.setdefault(o,[]).extend(stamp(f"r{r-1}"))
    pre[8]=["WAITVM x1q1"]+(["WAITVM Rst"] if opt.fbar==8 else [])+["s_barrier"]
    pre[24]=["WAITVM x1q3"]+(["WAITVM Rst"] if opt.fbar==24 else [])+["s_barrier"]
    if opt.fbar in (8,24): st.append(Stream([[flag_store(sFHS)]],opt.fbar,opt.fbar+1,prio=4))
    pre[opt.pdb]=poll_check("pd",vPA2,mask=0x7f7f)+pre[opt.pdb]
    x3=[set_xs(3)]
    for kq in range(4): x3+=dma_x(XB,kq,"x3")
    n4=opt.nd4
    def mark(items,k0):
        o=[]; k=k0
        for it in items:
            if it[-1].startswith("buffer"):
                if k>=24: o.append(128+(k-24))
                k+=1
            o.append(it)
        return o
    left=list(left)
    a1,a2,a3,a4,a5=[int(x) for x in opt.nds.split(".")]
    h0=gload('H',0,range(opt.nh3))
    def markh(items):
        o=[]; k=32
        for it in items:
            if it[-1].startswith("buffer"): o.append(128+k); k+=1
            o.append(it)
        return o
    vm=left[:opt.pdi]+[poll_issue("pd",vPA2)]+left[opt.pdi:]+[opt.pdb]+dloads(0,a1)+[opt.hb1]+h_stores(0)+dloads(a1,a2)+[56]+x3+mark(dloads(a2,a3),a2)
    vm+=[64+opt.hb2]+h_stores(1)+mark(dloads(a3,a4),a3)
    if opt.nh3: vm+=[hpoll(0)]+mark(dloads(a4,a5),a4)+[hcheck(0)]+markh(h0)+[128+opt.hb3]+h_stores(2)+mark(dloads(a5,n4),a5)
    else: vm+=[128+opt.hb3]+h_stores(2)+mark(dloads(a4,a5),a4)+[hpoll(0)]+mark(dloads(a5,n4),a5)
    st.append(Stream(vm,0,192,prio=1,pace=opt.pace1/10))
    for r,gp in ((0,64+opt.f0),(1,128+opt.f1)): st.append(Stream([hflag(r)],gp-1,gp,prio=4))
    return schedule(mf,st,pre,report=rep)

sFA,sFB2="s39","s29"
A2={(0,0):64,(1,0):80,(0,1):96,(1,1):112}
FI=128; UA=[32,48]; YA=[32,144]; PK=["v[8:11]","v[24:27]","v[128:131]","v[132:135]"]; PKR=[8,24,128,132]
def gslot(js,at): return 128*((2*js+at)%2)+4*((32+2*js+at)//2)
RSL=list(range(40,46))+list(range(60,64))+list(range(46,52))
def gen_Finv():
    T=64; S=72
    c=["v_and_b32 v56, 31, v0", f"s_lshl_b32 {sT2}, {sCG}, 5", f"v_add_u32 v56, {sT2}, v56", "v_cvt_f32_u32 v56, v56", f"v_mul_f32 v56, {f2u(1/512)}, v56",
       "v_lshrrev_b32 v57, 5, v0", f"s_lshl_b32 {sT2}, {sP}, 7", f"s_add_u32 {sT2}, {sT2}, {sQ}", f"v_lshl_add_u32 v57, v57, 3, {sT2}",
       "v_and_b32 v58, 1, v0", "v_cvt_f32_u32 v58, v58", "v_fma_f32 v58, v58, -2.0, 1.0", "v_min_u32 v59, 1, v57", "v_cvt_f32_u32 v59, v59",
       "v_cvt_f32_u32 v57, v57", "v_fma_f32 v58, -v59, v58, v58", "v_mul_f32 v57, v57, v56",
       f"v_mul_f32 v59, {f2u(32.0)}, v56", "v_cos_f32 v59, v59"]
    for half in range(2):
        Cc=[32,36]; Ss=[40,44]; An=48
        for s in range(2):
            for i in range(4): c+=[f"v_fmamk_f32 v{An+i}, v56, {f2u(32*s+16*half+2*i)}, v57"]
            for i in range(4): c+=[f"v_cos_f32 v{Cc[s]+i}, v{An+i}", f"v_sin_f32 v{Ss[s]+i}, v{An+i}"]
        if half==0: c+=["v_add_f32 v59, v59, v59", f"v_add_f32 v52, v{Ss[0]}, v58"]
        for s in range(4):
            cur=s%2
            if s>=2:
                for X in (Cc,Ss):
                    for i in range(4): c+=[f"v_fma_f32 v{X[cur]+i}, v59, v{X[1-cur]+i}, -v{X[cur]+i}"]
            for ct,X in enumerate((Cc,Ss)):
                kap=4*(s//2)+2*ct+s%2
                for i in range(2):
                    lo=f"v{X[cur]+2*i}"
                    if half==0 and s==0 and ct==1 and i==0: lo="v52"
                    c+=[f"v_cvt_pk_bf16_f32 v{FI+4*kap+2*half+i}, {lo}, v{X[cur]+2*i+1}"]
    return c
def tr_pattern(dst, tmp, base):
    return [f"v_lshrrev_b32 {dst}, 5, v0", f"v_lshlrev_b32 {dst}, 9, {dst}", f"v_bfe_u32 {tmp}, v0, 2, 2", f"v_lshl_add_u32 {dst}, {tmp}, 7, {dst}",
            f"v_bfe_u32 {tmp}, v0, 4, 1", f"v_lshl_add_u32 {dst}, {tmp}, 5, {dst}", f"v_and_b32 {tmp}, 3, v0", f"v_lshl_add_u32 {dst}, {tmp}, 3, {dst}",
            f"v_bfe_u32 {tmp}, v0, 3, 1", f"v_lshl_add_u32 {dst}, {tmp}, 6, {dst}", f"v_add_u32 {dst}, {base}, {dst}"]
def xr_private():
    c=["v_and_b32 v8, 31, v0", f"v_lshl_add_u32 v8, v8, 8, {sM16K}", "v_lshrrev_b32 v9, 5, v0", "v_and_b32 v10, 15, v0", "v_xor_b32 v9, v9, v10", f"v_lshl_add_u32 {vXR[0]}, v9, 4, v8"]
    return c+[f"v_xor_b32 {vXR[i]}, {32*i}, {vXR[0]}" for i in range(1,8)]
def dma_rp():
    g=[[f"s_lshl_b32 {sT0}, {sB2}, 16", f"s_add_u32 {sT0}, {sT0}, {sM16K}", f"s_add_u32 {sT0}, {sT0}, {WS_RP}", f"s_mov_b32 m0, {sM16K}"]]
    for i in range(16):
        if i and i%4==0: g.append([f"s_add_u32 m0, m0, 4096", f"s_add_u32 {sT0}, {sT0}, 4096"])
        g.append([f"buffer_load_dwordx4 {vL16}, {SWS}, {sT0} offen offset:{(i%4)*1024} sc1 lds ;@RP{i//8}"])
    return g
GH={}
def gemm2():
    mf=[]; pre={}; P={}
    def addpre(i,x): pre.setdefault(i,[]).extend(x)
    use={}
    for seg in opt.seq:
        P[seg]=len(mf)
        if seg=="v":
            for jt in range(2):
                for k in range(8):
                    d=vr(UA[jt],16); mf.append(MF32(d, aslot(RSL[8*jt+k]), vr(FI+4*k,4), d if k else "0")+f" ;need u{jt}")
            for js in range(4):
                for at in range(2):
                    d=vr(YA[at],16); mf.append(MF32(d, PK[js], ar(gslot(js,at),4), d if js else "0")+" ;need gr")
            continue
        i=int(seg)
        order=[(fb,at) for at in range(2) for fb in range(7)] if seg==opt.seq[-1] else [(fb,at) for fb in range(7) for at in range(2)]
        for fb,at in order:
            for dt in range(2):
                for t in (f"D{i}_{2*fb+dt}",f"H{i}_{2*fb+at}"): use.setdefault(t,len(mf))
                d=vr(A2[dt,at],16); mf.append(MF32(d, HOME[('D',i,2*fb+dt)], HOME[('H',i,2*fb+at)], "0" if (i==0 and fb==0) else d)+f" ;need D{i}_{2*fb+dt},H{i}_{2*fb+at}")
    N=len(mf); U0=P["v"]; Y0=U0+16
    def grp(L):
        out=[]; cur=[]
        for x in L:
            cur.append(x)
            if not x.startswith("s_"): out.append(cur); cur=[]
        return out
    ep=epilogue(3)
    dre=fuse(dloads(opt.nd4,56)); h0=fuse(gload('H',0,range(opt.nh3,14)))
    k1=opt.hk1; nd=min(len(dre),opt.hn3)
    head=ep[:k1]+([] if opt.nh3 else hcheck(0))+stamp("gh0")+sprinkle(ep[k1:],h0,opt.hsp)+hpoll(1)+flat(h_stores(3))+hflag(2)+stamp("ghd")
    GH['h']=fuse(gload('H',0,range(14)))
    c=head+["L_g2:"]
    st=[]
    gl=[[f"s_lshl_b32 {sLD}, {sB2}, 9", f"s_add_u32 {sLD}, {sLD}, {WS_G}"],[f"buffer_load_dword {vG[0]}, v11, {SWS}, {sLD} offen sc1 ;@g"],[f"buffer_load_dword {vG[1]}, v11, {SWS}, {sLD} offen offset:256 sc1 ;@g"]]
    dleft=list(range(opt.nd4+nd,56))
    def gl1(kind,i,n): return flat(gload(kind,i,[n]))
    def cls(i,last):
        ns=list(range(0,14,2))+list(range(1,14,2)) if last else list(range(14))
        dn=[k-14*i for k in dleft if k//14==i]
        if not dn: return fuse(gload('H',i,ns)),[]
        return None,(ns,dn)
    def merged(i,last):
        ns=list(range(0,14,2))+list(range(1,14,2)) if last else list(range(14))
        hs=fuse(gload('H',i,ns)); dn=[k-14*i for k in dleft if k//14==i]
        ds_=[[x.replace(sLD,sHS2) for x in it] for it in fuse(gload('D',i,dn))] if dn else []
        both=[(use[f"H{i}_{n}"],1,it) for n,it in zip(ns,hs)]+[(use[f"D{i}_{n}"],0,it) for n,it in zip(dn,ds_)]
        pre_=[it for u,k,it in both if k==0][:opt.dlead]
        return pre_,[it for u,k,it in sorted(both,key=lambda t:t[:2]) if it not in pre_]
    b0=dre[:nd]+[hcheck(1)]+merged(1,False)[1]
    b0=b0[:opt.f3i]+[opt.f3,[f"s_add_u32 {sFA}, {sFA}, {112*128}","WAITVM h3",flag_store(sFA)]]+b0[opt.f3i:]
    blocks=[b0]; polls=[]
    for seg in opt.seq[2:]:
        if seg=="v": polls.append((poll_issue("pp",vPA2),poll_check("pp",vPA2,mask=0xff)+["s_barrier"],14)); blocks.append(fuse(dma_rp()+gl))
        else:
            i=int(seg); p_,m_=merged(i,seg==opt.seq[-1]); blocks[-1]=blocks[-1]+p_
            polls.append((hpoll(i),hcheck(i),28*(i-1))); blocks.append(m_)
    vm=[]
    for n,b in enumerate(blocks):
        if n<len(polls):
            k=max(0,len(b)-opt.plead); vm+=b[:k]+[14,polls[n][0]]+b[k:]+[polls[n][2],polls[n][1]]
        else: vm+=b
    use["RP0"]=U0-4; use["RP1"]=U0+2; use["g"]=Y0
    V=Stream(vm,0,N-4,prio=2,pace=opt.pace2/10); V.deadlines(use,opt.win); st.append(V)
    setup=xr_private()+pa_P('v9')+["v_and_b32 v11, 31, v0","v_and_b32 v10, 16, v0","v_add_u32 v11, v11, v10","v_lshlrev_b32 v11, 2, v11"]+["v_lshrrev_b32 v9, 5, v0","v_bfe_u32 v10, v0, 2, 2","v_lshl_add_u32 v9, v9, 2, v10",f"v_mul_u32_u24 {vTP}, {HS}, v9","v_bfe_u32 v9, v0, 4, 1",f"v_lshl_add_u32 {vTP}, v9, 5, {vTP}",
       "v_and_b32 v9, 3, v0",f"v_lshl_add_u32 {vTP}, v9, 3, {vTP}",f"v_add_u32 {vTP}, {L_H}, {vTP}"]
    grd=[f"ds_read_b64_tr_b16 {ar(gslot(js,at)+2*u,2)}, {vTP} offset:{(16*js+8*u)*HS+64*at} ;@gr" for js in range(4) for at in range(2) for u in range(2)]
    st.append(Stream(grp(setup),0,14,eager=True,prio=1))
    st.append(Stream(one(grd),30,44))
    st.append(Stream(grp(gen_Finv()),4,54,eager=True))
    for jt in range(2):
        rd=[f"ds_read_b128 {aslot(RSL[8*jt+k])}, {vXR[k]} offset:{jt*8192} ;@u{jt}" for k in range(8)]
        lo=U0-4+8*jt-2*jt
        st.append(Stream([[f"WAITVM RP{jt}",rd[0]]]+one(rd[1:]),lo,lo+4,eager=True,prio=3))
    for jt in range(2):
        cv=[f"v_cvt_pk_bf16_f32 v{PKR[2*jt+e//4]+e%4}, v{UA[jt]+2*e}, v{UA[jt]+2*e+1}" for e in range(8)]
        lo=U0+8*jt+10-jt
        st.append(Stream(one(cv),lo,lo+2,eager=True,prio=3))
    om=[[f"s_lshl_b32 {sT2}, {sQ}, 31"]]+one([f"v_sub_f32 {vOMG[0][at]}, 1.0, {vG[at]}" for at in range(2)]+[f"v_xor_b32 {vOMG[1][at]}, {sT2}, {vOMG[0][at]}" for at in range(2)])
    st.append(Stream(om,Y0+4,Y0+8))
    sc=[f"v_mul_f32 v{YA[at]+i}, {vG[at]}, v{YA[at]+i}" for at in range(2) for i in range(16)]
    vlast=opt.seq[-1]=="v"
    if not vlast: st.append(Stream(one(sc),Y0+10,Y0+20,eager=True))
    def fin(at):
        o=[]
        for dt in range(2):
            for q in range(4):
                a=A2[dt,at]+4*q; y=YA[at]+4*q
                o+=[f"v_fma_f32 v{a+i}, v{a+i}, {vOMG[dt][at]}, v{y+i}" for i in range(4)]
                o+=[f"ds_write_b128 {vXR[4*dt+q]}, {vr(a,4)} offset:{at*8192} ;@fw"]
        return o
    fa=["v_lshrrev_b32 v160, 3, v0","v_and_b32 v161, 7, v0","v_lshlrev_b32 v162, 1, v161","v_xor_b32 v162, v162, v160",
        "v_lshlrev_b32 v162, 4, v162","v_lshl_add_u32 v162, v160, 8, v162", f"v_add_u32 v162, {sM4K}, v162",
        "v_xor_b32 v163, 16, v162", "v_xor_b32 v164, 0x880, v162", "v_xor_b32 v165, 0x890, v162",
        "v_lshlrev_b32 v166, 15, v160","v_and_b32 v167, 3, v0","v_lshl_add_u32 v166, v167, 4, v166","v_bfe_u32 v167, v0, 2, 1","v_lshl_add_u32 v166, v167, 9, v166",
        "v_lshlrev_b32 v167, 31, v167","v_or_b32 v167, 1.0, v167",
        f"s_lshl_b32 {sT1}, {sW}, 19", f"s_lshl_b32 {sT0}, {sB2}, 10", f"s_add_u32 {sT1}, {sT1}, {sT0}", f"s_lshl_b32 {sT0}, {sCG}, 6", f"s_add_u32 {sT1}, {sT1}, {sT0}",
        f"s_add_u32 {sT0}, {sT1}, {8*32768}"]
    if not vlast: st.append(Stream(one(fin(0)),N-12,N,eager=True))
    for k,nm in ((28,"g28"),(56,"g56"),(P[opt.seq[3]],"g84"),(P[opt.seq[4]],"g108")): addpre(k,stamp(nm))
    c+=schedule(mf,st,pre,report=rep)
    c+=stamp("gend")
    c+=fa+((sc+fin(0)) if vlast else [])+fin(1)+["WAITLG all","s_barrier"]+stamp("red")
    for rho in range(2):
        for pw in range(4):
            for e in range(2):
                c+=[f"ds_read_b128 {vr(176+32*rho+8*pw+4*e,4)}, v{162+2*rho+e} offset:{pw*16384} ;@fr{rho}"]
    for rho in range(2):
        b=176+32*rho
        c+=[f"WAITLG fr{rho}"]
        for i in range(4): c+=[f"v_pk_add_f32 {vr(b+2*i,2)}, {vr(b+2*i,2)}, {vr(b+16+2*i,2)}", f"v_pk_add_f32 {vr(b+8+2*i,2)}, {vr(b+8+2*i,2)}, {vr(b+24+2*i,2)}"]
        for i in range(8): c+=[f"v_fmac_f32 v{b+i}, v167, v{b+8+i}"]
        for i in range(4): c+=[f"v_cvt_pk_bf16_f32 v{b+8+i}, v{b+2*i}, v{b+2*i+1}"]
        c+=[f"buffer_store_dwordx4 {vr(b+8,4)}, v166, {SOUT}, {sT1 if rho==0 else sT0} offen {opt.outf} ;@out"]
    return c

MS=list(range(20,32))+list(range(60,64)); XS=list(range(20))+list(range(32,44))
def areg(n): return 128*(n%2)+4*(n//2)
def csv(i): return f'a{areg(32+i//4)+i%4}'
CP1,CQ,CR1,CU,CP2,CR2=[128+16*i for i in range(6)]
CX=224
ZP=96; DD=32; RAW=192
def pk(op,d,a,b,cc=None,nega=False,negb=False):
    s=f"v_pk_{op}_f32 {vr(d,2)}, {vr(a,2)}, {vr(b,2)}"+(f", {vr(cc,2)}" if cc is not None else "")
    n=3 if cc is not None else 2
    if nega or negb:
        m="["+",".join(["1" if nega else "0","1" if negb else "0","0"][:n])+"]"
        s+=f" neg_lo:{m} neg_hi:{m}"
    return s
def p2_wloads():
    sST,sBH,sCU="s16","s17","s18"
    su=[f"s_cmp_eq_u32 {sP}, 0", "s_cselect_b32 s8, s32, s36", "s_cselect_b32 s9, s33, s37", "s_mov_b32 s10, 1052672", "s_mov_b32 s11, 0x20000",
        f"s_sub_i32 {sCU}, 1984, {sB}", f"s_sub_i32 {sBH}, {1984-1024}, {sOH}", f"s_add_i32 {sT1}, {sOH}, 1024",
        f"s_cmp_eq_u32 {sQ}, 0", f"s_cselect_b32 {sCU}, {sB}, {sCU}", f"s_cselect_b32 {sBH}, {sT1}, {sBH}", f"s_cselect_b32 {sST}, 1, -1",
        f"s_mul_i32 {sCU}, {sCU}, 514", f"s_mul_i32 {sBH}, {sBH}, 514", f"s_add_u32 {sCU}, {sCU}, 2", f"s_and_b32 {sCU}, {sCU}, -4", f"s_add_u32 {sBH}, {sBH}, 2", f"s_and_b32 {sBH}, {sBH}, -4", f"s_mul_i32 {sST}, {sST}, 65792",
        "v_lshrrev_b32 v153, 5, v0", f"v_or_b32 v20, {sB}, v153", "v_min_u32 v20, 1, v20", "v_xor_b32 v20, 1, v20",
        f"v_xor_b32 v153, {sQ}, v153", "v_mul_u32_u24 v153, 32896, v153", "v_and_b32 v152, 31, v0", "v_lshl_add_u32 v152, v152, 4, v153",
        f"s_mul_i32 {sT1}, {sQ}, {1024*514}", f"v_mul_lo_u32 v153, v20, {sT1}", f"v_add_u32 v154, {sCU}, v152", "v_sub_u32 v154, v154, v153"]
    g=[[f"s_add_u32 m0, {sM16K}, {XB}", "s_nop 0", f"buffer_load_dwordx4 v154, {SWG}, 0 offen lds ;@wf"]]
    for i in range(1,16):
        g.append([f"s_add_u32 m0, {sM16K}, {XB+i*1024}", f"s_add_u32 {sCU}, {sCU}, {sST}" if i!=8 else f"s_mov_b32 {sCU}, {sBH}", f"buffer_load_dwordx4 v152, {SWG}, {sCU} offen lds ;@wf"])
    g.append(["v_and_b32 v154, 31, v0", "v_lshrrev_b32 v155, 4, v154", f"s_sub_i32 {sT1}, {sOH}, {sB}", f"v_mul_i32_i24 v155, {sT1}, v155", "v_lshl_add_u32 v154, v154, 6, v155",
              f"v_add_u32 v157, {sB}, v154", "v_sub_u32 v155, 2048, v157", "v_lshrrev_b32 v21, 11, v155", "v_lshrrev_b32 v155, v21, v155",
              "v_sub_u32 v155, v155, v157", "v_lshrrev_b32 v154, 5, v0", "v_mul_i32_i24 v155, v155, v154", "v_add_u32 v155, v155, v157",
              "v_mul_u32_u24 v155, 514, v155", f"s_lshl_b32 {sT1}, {sQ}, 9", f"buffer_load_ushort v8, v155, {SWG}, {sT1} offen ;@wf"])
    return su,g
def p2_consts():
    Cc,Ss,O=132,136,140
    c=[f"s_cmp_eq_u32 {sB}, 0", f"s_cselect_b32 {sHS2}, 1.0, 0",
       "v_and_b32 v128, 31, v0", "v_lshrrev_b32 v129, 4, v128", f"s_sub_i32 {sHS}, {sOH}, {sB}", f"v_mul_i32_i24 v130, {sHS}, v129", "v_lshl_add_u32 v130, v128, 6, v130",
       f"v_add_u32 v130, {sB}, v130",
       "v_cmp_eq_u32 vcc, 0, v130", "v_cvt_f32_u32 v130, v130", f"v_mul_f32 v130, {f2u(1/2048)}, v130",
       "v_cvt_f32_u32 v129, v129", f"v_mul_f32 v149, {sHS2}, v129", "v_sub_f32 v148, 1.0, v149", f"v_sub_f32 v150, 1.0, {sHS2}",
       "v_cndmask_b32 v151, 0, 1.0, vcc",
       "v_lshrrev_b32 v131, 5, v0", f"s_lshl_b32 {sHS}, {sW}, 3", f"v_lshl_add_u32 v129, v131, 1, {sHS}", "v_cvt_f32_u32 v129, v129", "v_mul_f32 v129, v129, v130",
       ]
    def blocks(fwd):
        o=[]; O=164 if fwd else 172
        for j in range(4):
            C,S=f"v{Cc+j}",f"v{Ss+j}"
            o+=[f"v_mul_f32 v160, v148, {C}", f"v_mul_f32 v161, v149, {C}", f"v_mul_f32 v162, v148, {S}", f"v_mul_f32 v163, v150, {C}",
                f"v_fma_f32 v161, -{S}, v150, v161", f"v_fmac_f32 v163, v149, {S}"]
            if fwd: o+=[f"v_cvt_pk_bf16_f32 v{O+j}, v160, v161", f"v_cvt_pk_bf16_f32 v{O+4+j}, v162, v163"]
            else:   o+=[f"v_cvt_pk_bf16_f32 v{O+j}, v160, v162", f"v_cvt_pk_bf16_f32 v{O+4+j}, v161, v163"]
        return o
    for j in range(4): c+=[f"v_fmamk_f32 v{Ss+j}, v130, {f2u(4*(j//2)+j%2)}, v129"]
    for j in range(4): c+=[f"v_cos_f32 v{Cc+j}, v{Ss+j}", f"v_sin_f32 v{Ss+j}, v{Ss+j}"]
    for j in range(4): c+=[f"v_add_f32 v{Ss+j}, v{Ss+j}, v151" if j%2==0 else f"v_sub_f32 v{Ss+j}, v{Ss+j}, v151"]
    c+=blocks(True)
    c+=[f"s_cmp_ge_u32 {sW}, 2", f"s_cselect_b32 {sHS}, {sOH}, {sB}", f"s_cselect_b32 {sLD}, {sHS2}, 0", f"v_mov_b32 v149, {sLD}",
        f"s_lshl_b32 {sLD}, {sW}, 9", f"s_add_i32 {sHS}, {sHS}, {sLD}", f"v_lshl_add_u32 v129, v131, 8, {sHS}",
        "v_cmp_eq_u32 vcc, 0, v129", "v_cvt_f32_u32 v129, v129", "v_cvt_f32_u32 v130, v128", f"v_mul_f32 v130, {f2u(1/2048)}, v130", "v_mul_f32 v129, v129, v130",
        "v_and_b32 v151, 1, v0", "v_cvt_f32_u32 v151, v151", "v_fma_f32 v151, v151, -2.0, 1.0", "v_cndmask_b32 v151, 0, v151, vcc",
        "v_sub_f32 v148, 1.0, v149"]+[f"v_mul_f32 v{r}, {f2u(2.0**-19)}, v{r}" for r in (148,149,150)]
    for j in range(4): c+=[f"v_fmamk_f32 v{Ss+j}, v130, {f2u(64*j)}, v129"]
    for j in range(4): c+=[f"v_cos_f32 v{Cc+j}, v{Ss+j}", f"v_sin_f32 v{Ss+j}, v{Ss+j}"]
    c+=[f"v_add_f32 v{Ss}, v{Ss}, v151"]
    c+=blocks(False)
    return c
def p2_raw(gam):
    return [f"ds_read_u16_d16_hi v{RAW+16*arr+rho}, v122 offset:{arr*16384+(8*(rho//4)+rho%4)*512+2*gam} ;@raw" for r2 in range(8) for arr in range(4) for rho in (2*r2,2*r2+1)]
def p2_coefs(gam):
    X=104; c=[]
    for r2 in range(8):
        rt,rm,it,im=[RAW+16*a+2*r2 for a in range(4)]
        c+=[pk("add",CP1+2*r2,rt,rm), pk("add",CU+2*r2,rt,rm,negb=True), pk("add",CQ+2*r2,it,im), pk("add",CR1+2*r2,it,im,negb=True)]
        if r2==0:
            c+=[f"v_fma_f32 v{CP1}, v121, v{rm}, v{rt}", f"v_fma_f32 v{CQ}, v121, v{im}, v{it}", f"v_mul_f32 v{CR1}, v121, v{CR1}", f"v_mul_f32 v{CU}, v121, v{CU}",
                f"v_fma_f32 v{X}, v121, v{rt}, v{rm}", f"v_mov_b32 v{X+1}, v{CP1+1}", f"v_fma_f32 v{X+2}, v121, v{it}, v{im}", f"v_mov_b32 v{X+3}, v{CQ+1}"]
    if gam==1:
        return c, [f"v_accvgpr_write_b32 {csv(i)}, v{128+i}" for i in range(64)]+[f"v_accvgpr_write_b32 {csv(64+i)}, v{X+i}" for i in range(4)]
    mv=lambda d,s_: f"v_mov_b64 {vr(d,2)}, {vr(s_,2)}"
    c+=[mv(CX,X),mv(CX+2,X+2),mv(CX+4,X)]+[mv(CP2+2*i,CP1+2*i) for i in range(8)]+[mv(CR2+2*i,CR1+2*i) for i in range(8)]
    lab[0]+=1; n=lab[0]
    c+=[f"s_cmp_lg_u32 {sW}, 0", f"s_cbranch_scc1 L_nr{n}"]
    NY=L_NY; NR=L_NR
    s=["v_and_b32 v100, 31, v0","v_lshlrev_b32 v100, 2, v100", f"v_add_u32 v101, {NR}, v100", f"v_add_u32 v100, {NY}, v100"]
    s+=[f"ds_read2_b32 {vr(108+2*w_,2)}, v101 offset0:{64*w_} offset1:{64*w_+32}" for w_ in range(4)]
    s+=["v_cvt_f32_u32 v96, v21","v_sub_f32 v96, 1.0, v96","s_waitcnt lgkmcnt(0)"]
    for o,(re_,im_) in enumerate(((110,114),(108,112))):
        s+=[f"v_fma_f32 v97, v96, v{re_+1}, v{re_}", f"v_fma_f32 v98, v96, v{re_}, v{re_+1}", f"v_sub_f32 v99, v{im_}, v{im_+1}", "v_mul_f32 v99, v96, v99",
            f"ds_write_b32 v100, v97 offset:{384*o}", f"ds_write_b32 v100, v99 offset:{384*o+128}", f"ds_write_b32 v100, v98 offset:{384*o+256}"]
    s+=["v_lshrrev_b32 v100, 5, v0","v_lshlrev_b32 v100, 4, v100",f"v_add_u32 v100, {NY}, v100","s_mov_b32 exec_lo, 1","s_mov_b32 exec_hi, 1"]
    for o,(P,R,Xx) in enumerate(((CP2,CR2,CX+4),(CP1,CR1,CX))):
        for q in range(4): s+=[f"ds_read_b128 {vr(P+4*q,4)}, v100 offset:{384*o+32*q}", f"ds_read_b128 {vr(R+4*q,4)}, v100 offset:{384*o+128+32*q}"]
        s+=[f"ds_read_b64 {vr(Xx,2)}, v100 offset:{384*o+256}"]
    s+=[f"v_mov_b64 {vr(x+2*i,2)}, 0" for x in (CQ,CU) for i in range(8)]+[f"v_mov_b64 {vr(CX+2,2)}, 0"]
    s+=["s_waitcnt lgkmcnt(0)","s_mov_b64 exec, -1", f"L_nr{n}:"]
    return c+s
def p2_ny():
    return [f"s_lshl_b32 {sT1}, {sW}, 8", f"s_add_u32 {sT1}, {sT1}, {L_H+64*HS}", f"v_lshl_add_u32 v100, v0, 2, {sT1}", "v_lshlrev_b32 v8, 16, v8", "v_mul_f32 v8, 0.5, v8", "ds_write_b32 v100, v8 ;@ny"]
def p2_fwd(gam, streams):
    rd=[f"ds_read_b64_tr_b16 {vr(ZP+(ks*2+ct)*4+2*u,2)}, {vWT[2+ct]} offset:{gam*8192+ks*2048+u*1024} ;@b{ks}" for ks in range(4) for ct in range(2) for u in range(2)]
    mf=[]; pre={}
    for ks in range(4):
        pre[4*ks]=[f"WAITLG b{ks}"]
        for ab in range(2):
            for ct in range(2):
                d=vr(DD+32*ab+16*ct,16)
                mf.append(MF32(d, aslot(MS[ks*4+ab]), vr(ZP+(ks*2+ct)*4,4), d if ks else "0"))
    return rd, schedule(mf,streams,pre)
def p2_point(gam):
    c=[]; T=232
    for r2 in range(8):
        r=2*r2
        ac,as_,bc,bs=[DD+16*i+r for i in range(4)]
        p1,q,r1,u=[x+r for x in (CP1,CQ,CR1,CU)]
        p2,r2_=(CP2+r,CR2+r) if gam==0 else (p1,r1)
        p1b,qb,p2b=(CX,CX+2,CX+4 if gam==0 else CX) if r2==0 else (p1,q,p2)
        o=[T+8*(r2%2)+2*i for i in range(4)]
        c+=[pk("mul",o[0],ac,p1), pk("mul",o[1],as_,p2), pk("mul",o[2],bc,p1b), pk("mul",o[3],bs,p2b),
            pk("fma",o[0],as_,q,o[0]), pk("fma",o[1],ac,q,o[1],nega=True), pk("fma",o[2],bs,qb,o[2]), pk("fma",o[3],bc,qb,o[3],nega=True),
            pk("fma",o[0],bc,r1,o[0]), pk("fma",o[1],bs,r2_,o[1]), pk("fma",o[2],ac,r1,o[2],nega=True), pk("fma",o[3],as_,r2_,o[3],nega=True),
            pk("fma",o[0],bs,u,o[0],nega=True), pk("fma",o[1],bc,u,o[1]), pk("fma",o[2],as_,u,o[2]), pk("fma",o[3],ac,u,o[3],nega=True)]
        for ct in range(2):
            for e in range(2): c+=[f"v_cvt_pk_bf16_f32 v{ZP+16*ct+r+e}, v{o[ct]+e}, v{o[2+ct]+e}"]
    return c
def p2_inv(gam, streams):
    mf=[]; st=list(streams); tiles=[(tau,ct) for tau in range(2) for ct in range(2)]
    def pack(tau,ct):
        o=[]
        for sg in range(2):
            s=DD+32*tau+16*ct+8*sg; t=248+4*sg
            o+=[f"v_cvt_pk_bf16_f32 v{t+i}, v{s+2*i}, v{s+2*i+1}" for i in range(4)]
            o+=[f"ds_write_b128 {vXR[2*ct+sg]}, {vr(t,4)} offset:{gam*8192+tau*128} ;@ow"]
        return o
    for n,(tau,ct) in enumerate(tiles):
        d=vr(DD+32*tau+16*ct,16); k=0
        for ks in range(4):
            mf.append(MF32(d, vr(ZP+16*ct+4*ks,4), aslot(MS[ks*4+2+tau]), d if ks else "0"))
        if n<3: st.append(Stream(one(pack(tau,ct)),4*n+5,min(4*n+9,16),eager=True,prio=2))
    return schedule(mf,st),pack(1,1)
def p2_out(gam, base):
    rd=[f"ds_read_b128 {vr(base+4*i,4)}, {vXR[4+i%2]} offset:{gam*8192+i*1024} ;@or{i}" for i in range(8)]
    stn=[]
    for i in range(8):
        stn.append([f"s_add_u32 {sT0}, s39, {gam*16384+i*262144}", f"WAITLG or{i}", f"buffer_store_dwordx4 {vr(base+4*i,4)}, {vXR[6]}, {SWS}, {sT0} offen sc1 ;@P{gam}"])
    return rd,stn
def p2():
    c=["L_p2:"]
    wo=["s_mov_b32 s34, 1052672","s_mov_b32 s35, 0x20000","s_mov_b32 s38, 1052672","s_mov_b32 s39, 0x20000", f"s_cmp_eq_u32 {sB}, 0", f"s_cselect_b32 {sOH}, -992, {sB}"]
    gf=gen_F()
    c+=gf[:opt.prek]+["s_waitcnt lgkmcnt(0)","s_mov_b32 s32, s6","s_mov_b32 s33, s7"]+srd_common()+wo
    dm=[]
    for kq in range(4): dm+=dma_x(XA,kq,f"x0q{kq}")
    su,wl=p2_wloads()
    gw=["s_mov_b32 s12, s14","s_mov_b32 s13, s15","s_mov_b32 s14, 1024","s_mov_b32 s15, 0x20000",
        f"v_add_u32 v156, {sXQ[0]}, {vL16}", "v_and_b32 v156, 1023, v156", f"s_mov_b32 m0, {L_GW}", "s_nop 0", f"buffer_load_dwordx4 v156, {SWU}, 0 offen lds ;@x0q3"]
    dm=dm[:4]+wl[:opt.q_e]+dm[4:12]+[eload(),gw]+dm[12:]+wl[opt.q_e:opt.q_npre]
    rest=su+gf[opt.prek:]+xr_addr()+gen_H()
    c+=sprinkle(rest, dm, opt.q_sp)+stamp("gen")
    xf=lambda ks: aslot(XS[ks])
    xr=[f"ds_read_b128 {xf(ks)}, {vXR[ks%8]} offset:{(ks//8)*16384} ;@x" for ks in range(32)]
    c+=["WAITVM x0q3","WAITLG all","s_barrier"]+stamp("x0")+xr[:6]
    def grp(L):
        out=[]
        for x in L:
            if x.startswith("s_cselect") and out: out[-1].append(x)
            else: out.append([x])
        return out
    hr=h_reads(); hm=h_mf(); co=grp(p2_consts())
    CO=Stream(co,10,32,eager=True); CO.carry=True
    st=[Stream(one(xr[6:]),0,14,eager=True,prio=3),Stream(p0_addr()+nonce(),0,24,eager=True,prio=1),Stream(one(hr[2:]),26,31,eager=True,prio=3),CO]
    c+=schedule(p0_mf(xf),st,{},report=rep)+stamp("p0l")
    co=flat(CO.items[CO.pos:])
    c+=t_pack()+hm[:2]+["WAITLG tw","s_barrier"]+hr[:2]+hm[2:]+r_pack()+r_back()+flat(r_store())+stamp("p0")
    c+=flat(wl[opt.q_npre:])+flat(flag_R_addr())+co
    c+=[f"s_lshr_b32 {sWC}, {sM4K}, 1", f"s_add_u32 {sT1}, {sWC}, {C0}", f"v_add_u32 v158, {sT1}, {vL16}", f"v_add_u32 v159, {C0}, {vL16}",
        "ds_write_b128 v158, v[164:167] ;@mw", "ds_write_b128 v158, v[168:171] offset:1024 ;@mw", f"ds_write_b128 {vTR}, v[172:175] ;@mw", f"ds_write_b128 {vTR}, v[176:179] offset:1024 ;@mw"]
    mrd=[f"ds_read_b128 {aslot(MS[n])}, v159 offset:{((n//4)*2048 if n%4<2 else 8192+((n//4)^1)*2048)+(n%2)*1024} ;@raw" for n in range(16)]
    c+=tr_pattern(vWT[2],"v136",sM16K)+[f"v_xor_b32 {vWT[3]}, 64, {vWT[2]}"]
    c+=["v_lshrrev_b32 v22, 4, v0", "v_and_b32 v137, 15, v0", "v_xor_b32 v23, v22, v137", "v_lshlrev_b32 v23, 4, v23", "v_lshl_add_u32 v23, v137, 8, v23", f"v_add_u32 v23, {sM4K}, v23",
        "v_lshlrev_b32 v22, 4, v22", f"v_add_u32 v22, {L_GW}, v22"]
    c+=[f"s_lshl_b32 {sT1}, {sW}, 13", f"s_add_u32 {sT1}, {sT1}, {WS_FR}", f"v_lshl_add_u32 {vPA}, {vL}, 7, {sT1}",
        f"v_xor_b32 v96, {sB}, v0", "v_and_b32 v96, 3, v96", "v_lshlrev_b32 v96, 4, v96", "v_bfe_u32 v97, v0, 3, 1", "v_lshl_add_u32 v96, v97, 6, v96",
        "v_lshrrev_b32 v99, 4, v0", "v_lshrrev_b32 v98, 2, v0", "v_xor_b32 v98, v98, v99", "v_and_b32 v98, 1, v98", "v_lshl_add_u32 v96, v98, 12, v96", "v_lshl_add_u32 v29, v99, 16, v96",
        f"s_mov_b32 {sT3}, {sM16K}",
        "v_and_b32 v96, 31, v0","v_lshrrev_b32 v100, 5, v0","v_and_b32 v98, 7, v0","v_xor_b32 v100, v100, v98","v_lshlrev_b32 v100, 4, v100",
        "v_lshl_add_u32 v100, v96, 8, v100", f"v_add_u32 {vXR[0]}, {sT3}, v100"]+[f"v_xor_b32 {vXR[i]}, {32*i}, {vXR[0]}" for i in range(1,4)]
    c+=[f"s_lshl_b32 {sT1}, {sB}, 1", f"v_add_u32 v96, {sT1}, v97",
        "v_xor_b32 v96, v96, v0", "v_xor_b32 v96, v96, v99", "v_and_b32 v96, 7, v96", "v_lshlrev_b32 v96, 4, v96",
        "v_lshrrev_b32 v100, 3, v0", "v_lshl_add_u32 v96, v100, 7, v96", f"v_add_u32 {vXR[4]}, {sT3}, v96", f"v_xor_b32 {vXR[5]}, 64, {vXR[4]}",
        "v_lshlrev_b32 v98, 4, v98", "v_lshl_add_u32 v98, v97, 8, v98", f"v_lshl_add_u32 {vXR[6]}, v99, 16, v98"]
    c+=[f"v_xor_b32 v{100+i}, {64*i}, v23" for i in range(4)]
    for hf in range(2):
        for ks in range(8*hf,8*hf+8):
            c+=[f"ds_read_b128 {vr(192+8*(ks%8),4)}, v{100+ks%4} offset:{(ks//4)*16384} ;@ga{ks}", f"ds_read_b128 {vr(196+8*(ks%8),4)}, v22 offset:{ks*64} ;@ga{ks}"]
        for ks in range(8*hf,8*hf+8):
            c+=[f"WAITLG ga{ks}", MF16("v[108:111]", vr(196+8*(ks%8),4), vr(192+8*(ks%8),4), "v[108:111]" if ks else "0")]
    c+=["v_and_b32 v112, 31, v0","v_lshlrev_b32 v112, 2, v112", f"s_lshl_b32 {sT0}, {sB}, 2", f"s_add_u32 {sT0}, {sT0}, {sW}", f"s_lshl_b32 {sT0}, {sT0}, 7", f"s_add_u32 {sT0}, {sT0}, {WS_G}",
        f"v_mul_f32 v108, {f2u(-math.log2(math.e))}, v108","v_exp_f32 v108, v108","v_add_f32 v108, 1.0, v108","v_rcp_f32 v108, v108",
        "WAITVM Rst","WAITLG mw","s_barrier",flag_store(sT2),f"buffer_store_dword v108, v112, {SWS}, {sT0} offen sc1 ;@Gst"]+stamp("fr")+mrd
    c+=["v_lshrrev_b32 v96, 5, v0","v_and_b32 v97, 31, v0","v_lshlrev_b32 v97, 2, v97","v_lshl_add_u32 v96, v96, 11, v97", f"s_lshl_b32 {sT1}, {sW}, 7", f"s_add_u32 {sT1}, {sT1}, {XB}",
        f"s_and_b32 {sT0}, {sB}, 1", f"s_lshl_b32 {sT0}, {sT0}, 1", f"s_sub_u32 {sT1}, {sT1}, {sT0}",
        f"v_add_u32 v122, {sT1}, v96","v_cvt_f32_u32 v121, v20","v_sub_f32 v121, 1.0, v121"]+[f"v_mov_b64 {vr(RAW+2*i,2)}, 0" for i in range(32)]+p2_ny()
    c+=["v_mov_b32 v9, v5"]+cons_scalars()+flat(pa_setup("v96"))
    c+=["WAITVM wf","WAITLG ny","s_barrier"]+stamp("wl")+poll_issue("pd",vPA2)
    c1,park=p2_coefs(1)
    pf=[]
    for n in range(17):
        i,m=(0,n) if n<14 else (1,n-14)
        pre=[]
        if m==0: pre+=[f"s_mul_i32 {sHS}, {sCC[i]}, 14336", f"s_add_u32 {sHS}, {sHS}, {sDB}"]
        m0=f"s_add_u32 m0, {sM16K}, {XB+n*1024}" if n<16 else f"s_add_u32 m0, {sWC}, {C0}"
        pf.append(pre+[m0, f"s_add_u32 {sT2}, {sHS}, {m*1024}", f"buffer_load_dwordx4 {vL16}, {SWS}, {sT2} offen sc1 lds ;@pf"])
    assert opt.nd4<=44
    dl=fuse(dloads(24,opt.nd4)); ne=opt.q_ne
    c+=p2_raw(1)+c1+poll_check("pd",vPA2,mask=0x7f7f)+["s_barrier"]+sprinkle(park,dl[:ne],9)+stamp("prep")
    sRO="s39"
    c+=[f"s_bfe_u32 {sT1}, {sB}, 0x10002", f"s_xor_b32 {sT1}, {sT1}, {sQ}", f"s_lshl_b32 {sT1}, {sT1}, 7", f"s_lshl_b32 {sRO}, {sP}, 15", f"s_add_u32 {sRO}, {sRO}, {sT1}",
        f"s_lshl_b32 {sT1}, {sB}, 9", f"s_add_u32 {sRO}, {sRO}, {sT1}", f"s_add_u32 {sRO}, {sRO}, {WS_RP}",
        f"s_lshl_b32 {sFHS}, {sB}, 7", f"s_add_u32 {sFHS}, {sFHS}, {WS_FP}", f"s_cmp_eq_u32 {sW}, 0", f"s_cselect_b32 {sFHS}, {sFHS}, 0x40000000",
        f"s_mov_b32 {sH0}, 0x40000000",
        f"s_lshl_b32 {sHS2}, {sB}, 7", f"s_add_u32 {sHS2}, {sHS2}, {sM16K}", f"s_add_u32 {sHS2}, {sHS2}, {WS_R}"]
    c+=[f"s_mov_b32 {sCNT}, 100000","L_prl:", f"buffer_load_dwordx2 {vPOLL}, v9, {SWS}, 0 offen sc1", f"s_sub_u32 {sCNT}, {sCNT}, 1", "s_cbranch_scc1 L_prd", "s_waitcnt vmcnt(0)",
        f"v_cmp_ne_u64 vcc, {sNON}, {vPOLL}", "s_and_b64 exec, exec, vcc", "s_cbranch_scc0 L_prd", "s_sleep 2", "s_branch L_prl", "L_prd:", "s_mov_b64 exec, -1", "s_waitcnt vmcnt(0)"]+stamp("poll")
    rr=[[f"s_add_u32 m0, {sT3}, {gam*8192+rg*1024}", f"s_add_u32 {sT0}, {sHS2}, {gam*8192+rg*262144}", f"buffer_load_dwordx4 v29, {SWS}, {sT0} offen sc1 lds ;@RR{gam}"] for gam in range(2) for rg in range(8)]
    r0_=p2_raw(0); c0=p2_coefs(0); k=[i for i,x in enumerate(c0) if x.startswith("s_cmp_lg")][0]
    for i in range(8): c+=rr[i]+r0_[8*i:8*i+8]
    c+=sprinkle(c0[:k],rr[8:12],14)+c0[k:]+["WAITLG raw","s_barrier"]+stamp("con")
    q=dl[ne:]+pf
    def take(n):
        o=q[:n]; del q[:n]; return o
    t=[int(x) for x in opt.q_t.split(".")]
    rd0,f0=p2_fwd(0,[Stream(rr[12:]+take(t[0]),0,16,pace=2)])
    c+=["WAITVM RR0"]+stamp("rr0")+rd0+f0+stamp("f0")+sprinkle(p2_point(0),take(t[1]),14,2)+stamp("pt0")
    rest=[f"v_accvgpr_read_b32 v{128+i}, {csv(i)}" for i in range(64)]+[f"v_accvgpr_read_b32 v{CX+i}, {csv(64+i)}" for i in range(4)]
    o_rd,o_st=p2_out(0,192)
    i0,pk0=p2_inv(0,[Stream(one(rest[:24]),0,16),Stream(take(t[2]),0,16,pace=2.2)])
    rd1,f1=p2_fwd(1,[Stream(o_st[:5],1,16,prio=1,pace=3),Stream(one(rest[24:]),0,16,eager=True)])
    c+=["WAITVM RR1"]+i0+rd1+pk0+stamp("i0")+o_rd+f1+stamp("f1")
    c+=sprinkle(p2_point(1),o_st[5:]+take(t[3])+[hpoll(0)],15,2)+stamp("pt1")
    assert not q
    i1,pk1=p2_inv(1,[])
    o_rd,o_st=p2_out(1,128)
    c+=i1+pk1+o_rd+flat(o_st)+stamp("main")
    c+=[f"s_add_u32 {sT1}, {sWC}, {C0}", f"v_add_u32 v9, {sT1}, {vL16}", f"s_add_u32 {sT1}, {sM16K}, {XB}", f"v_add_u32 v8, {sT1}, {vL16}","WAITVM pf"]
    c+=[f"ds_read_b128 {vslot(n)}, {'v8' if n<16 else 'v9'} offset:{(n%16)*1024} ;@D{n//14}_{n%14}" for n in range(17)]
    h=GH['h']; nh=opt.q_nh
    c+=hcheck(0)+flat(h[:nh])+["WAITVM P1","s_barrier ;after P1,P0,Gst",flag_store(sFHS)]+stamp("join")
    c+=flat(h[nh:])+hpoll(1)+flat(dloads(17,24))+[f"s_mov_b32 {sFA}, 0x40000000","WAITLG all",f"s_waitcnt vmcnt({opt.joinvm})","s_branch L_g2"]
    return c
Opt.joinvm=63

def tail():
    c=["s_cmp_lg_u32 s2, 0","s_cbranch_scc1 L_noe", f"buffer_store_dwordx2 {vNON}, {vFO}, {SWS}, 0 offen sc1", "L_noe:"]
    if opt.stamps:
        c+=["s_waitcnt vmcnt(0)",("s_memtime" if opt.stamps==1 else "s_memrealtime")+" s[98:99]","s_memrealtime s[96:97]","s_waitcnt lgkmcnt(0)",
            f"s_lshl_b32 {sT0}, s2, 2", f"s_add_u32 {sT0}, {sT0}, {sW}", f"s_lshl_b32 {sT0}, {sT0}, 7", f"s_add_u32 {sT0}, {sT0}, {WS_DBG}"]
        c+=["v_min_u32 v2, 1, v0","v_lshlrev_b32 v2, 30, v2"]
        for i in range(16): c+=[f"v_mov_b32 v8, s{70+2*i}", f"buffer_store_dword v8, {vFO}, {SWS}, {sT0} offen offset:{4*i}"]
    if opt.hold:
        c+=["s_waitcnt vmcnt(0)","L_hold:","s_memrealtime s[96:97]","s_waitcnt lgkmcnt(0)","s_sub_u32 s96, s96, s100",f"s_cmp_lt_u32 s96, {opt.hold}","s_cbranch_scc1 L_hold"]
    return c+["L_end:","s_endpgm"]

def build():
    a=prologue(); n0=nstamp[0]
    r0c,nx2=round0()
    m=g_start()+r0c+stamp("r0")+rounds(nx2)+stamp("r3")
    n1=nstamp[0]
    g2=gemm2()+tail()
    nstamp[0]=n0; inp2[0]=True
    pp=p2(); inp2[0]=False
    check_tags(a+m+g2); check_tags(a+pp)
    main,ad1=finalize(a+m+g2,opt.verbose)
    full,ad2=finalize(a+["L_mark:"]+pp)
    idx=[i for i,x in enumerate(full) if x.text=="L_mark:"][0]
    side=full[idx+1:]
    gi=[i for i,x in enumerate(main) if x.text=="L_g2:"][0]
    check_loads(full+main[gi:]); check_tags(full+main[gi:])
    check_init(main); check_init(full)
    ol,_=pad_hazards(mk(outl))
    print("nops main",ad1,"p2",ad2)
    if opt.drop:
        r0e=[i for i,x in enumerate(main) if x.text.startswith(f"v_mov_b32 {vGC0}, 0x")][0]
        x0s=[i for i,x in enumerate(main) if x.mn=="s_barrier"][0]
        def keep(i,x):
            if not (x0s<i<r0e): return True
            if 's' in opt.drop and x.mn.startswith("buffer_store_dwordx4"): return False
            if 'l' in opt.drop and x.kind=="vmem" and x.mn.startswith("buffer_load"): return False
            if 'w' in opt.drop and x.mn.startswith("ds_write"): return False
            if 't' in opt.drop and x.mn.startswith("ds_read"): return False
            if 'v' in opt.drop and x.mn=="s_waitcnt" and "vmcnt" in x.text: return False
            return True
        main=[x for i,x in enumerate(main) if keep(i,x)]
    return main+side+ol+mk(["L_codeend:","s_endpgm"])

HEAD = open("gated_mix__spectral_gfnet__glu_gated_geglu__prompt.s.ref").read().split("; Override launch")[0]
def emit(path):
    code=build()
    s=HEAD+"; @launch grid=(256,1,1) block=(256,1,1) lds=163840\n"
    s+='.amdgcn_target "amdgcn-amd-amdhsa--gfx950"\n.text\n'
    s+=f".globl {KNAME}\n.p2align 8\n.type {KNAME},@function\n{KNAME}:\n"
    for ins in code:
        t=" ".join(ins.text.split(";")[0].split())
        s+=(t if ins.kind=="label" else "    "+t)+"\n"
    s+='.section .rodata,"a"\n.p2align 6\n'
    s+=f".amdhsa_kernel {KNAME}\n  .amdhsa_next_free_vgpr 512\n  .amdhsa_next_free_sgpr 102\n  .amdhsa_accum_offset 256\n"
    s+="  .amdhsa_group_segment_fixed_size 0\n  .amdhsa_kernarg_size 88\n  .amdhsa_user_sgpr_count 2\n  .amdhsa_user_sgpr_kernarg_segment_ptr 1\n"
    s+="  .amdhsa_system_sgpr_workgroup_id_x 1\n  .amdhsa_float_denorm_mode_32 3\n.end_amdhsa_kernel\n"
    open(path,"w").write(s)
    return code
if __name__=="__main__":
    out=sys.argv[1]
    for a in sys.argv[2:]:
        k,v=a.split("=")
        cur=getattr(opt,k)
        setattr(opt,k, (v=="1") if isinstance(cur,bool) else (int(v) if isinstance(cur,int) else v))
    code=emit(out)
    from collections import Counter
    print(len(code), dict(Counter(i.kind for i in code)))
    if opt.verbose:
        for r in rep: print(len(r), sum(r), "".join("%x"%min(x,15) for x in r))
```

```python
import re
TRANS = ("v_exp_f32","v_log_f32","v_rcp_f32","v_rsq_f32","v_sqrt_f32","v_sin_f32","v_cos_f32","v_rcp_iflag_f32")
_reg = re.compile(r"^(-|\|)?([vas])(\d+|\[(\d+):(\d+)\])\|?$")
def regs_of(op):
    op = op.strip()
    if op.startswith("abs(") : op = op[4:-1]
    if op in ("vcc",): return {"s106","s107"}
    if op == "vcc_lo": return {"s106"}
    if op == "vcc_hi": return {"s107"}
    if op == "exec": return {"exec"}
    if op == "m0": return {"m0"}
    m = _reg.match(op)
    if not m: return set()
    k = m.group(2)
    if m.group(4) is not None:
        return {f"{k}{i}" for i in range(int(m.group(4)), int(m.group(5))+1)}
    return {f"{k}{m.group(3)}"}

class I:
    def __init__(self, text, tag=None):
        self.text = text.strip(); self.tag = tag
        t = self.text.split(";")[0].strip()
        self.mn = t.split()[0] if t else ""
        rest = t[len(self.mn):].strip()
        ops = [o.strip() for o in rest.split(",")] if rest else []
        self.mods = ""
        if ops:
            p = ops[-1].split(None, 1)
            ops[-1] = p[0]
            if len(p) > 1: self.mods = p[1]
        self.ops = ops
        mn = self.mn
        self.kind = "other"
        self.rd = set(); self.wr = set(); self.srcC = set(); self.srcAB=set(); self.passes = 0
        self.data=set()
        if mn.endswith(":") or mn.startswith(".") or mn == "":
            self.kind = "label"
        elif mn in ("WAITVM","WAITLG"):
            self.kind = "symwait"
        elif mn.startswith("v_mfma"):
            self.kind = "mfma"
            self.wr = regs_of(ops[0]); self.srcAB = regs_of(ops[1]) | regs_of(ops[2]); self.srcC = regs_of(ops[3])
            self.rd = self.srcAB | self.srcC
            self.passes = 8 if "32x32x16" in mn else 4
        elif mn == "v_nop":
            self.kind = "valu"
        elif mn.startswith("v_"):
            self.kind = "trans" if mn.replace("_e32","").replace("_e64","") in TRANS else "valu"
            self.wr = regs_of(ops[0])
            for o in ops[1:]: self.rd |= regs_of(o)
            if mn.startswith(("v_fmac","v_pk_fmac","v_dot2c")): self.rd |= self.wr
            if mn.startswith(("v_add_co","v_sub_co","v_addc_co","v_subb_co")):
                self.wr |= regs_of(ops[1])
            if mn.startswith("v_permlane") and "swap" in mn:
                self.wr |= regs_of(ops[1]); self.rd |= regs_of(ops[0])
            if mn.startswith("v_writelane"): self.rd |= self.wr
        elif mn.startswith("ds_"):
            self.kind = "ds"
            if mn.startswith("ds_read") or mn.startswith("ds_bpermute") or mn.startswith("ds_swizzle"):
                self.wr = regs_of(ops[0])
                for o in ops[1:]: self.rd |= regs_of(o)
                if "d16" in mn: self.rd |= self.wr
            else:
                for o in ops: self.rd |= regs_of(o)
        elif mn.startswith(("buffer_","global_")):
            self.kind = "vmem"
            lds = "lds" in self.mods.split() or "_lds_" in mn
            self.lds = lds
            if "load" in mn and not lds:
                self.wr = regs_of(ops[0])
                for o in ops[1:]: self.rd |= regs_of(o)
                if "d16" in mn: self.rd |= self.wr
            else:
                for o in ops: self.rd |= regs_of(o)
                if "store" in mn:
                    self.data = regs_of(ops[0]) if mn.startswith("buffer_") else regs_of(ops[1])
            if lds: self.rd |= {"m0"}
        elif mn.startswith(("s_load","s_buffer_load","s_memtime","s_memrealtime")):
            self.kind = "smem"
            self.wr = regs_of(ops[0])
            for o in ops[1:]: self.rd |= regs_of(o)
        elif mn.startswith("s_"):
            self.kind = "salu"
            if mn.startswith(("s_cmp","s_cbranch","s_branch","s_waitcnt","s_barrier","s_nop","s_sleep","s_endpgm","s_setprio","s_bitcmp")):
                for o in ops: self.rd |= regs_of(o)
            else:
                if ops: self.wr = regs_of(ops[0])
                for o in ops[1:]: self.rd |= regs_of(o)
                if "saveexec" in mn: self.wr |= {"exec"}
    def states(self):
        if self.kind == "label": return 0
        if self.mn == "s_nop": return int(self.ops[0], 0) + 1
        return 1
    def isvalu(self): return self.kind in ("valu","trans")
    def __repr__(self): return self.text

def mk(x):
    out = []
    if isinstance(x, I): return [x]
    if isinstance(x, str):
        for ln in x.split("\n"):
            if ln.strip():
                tag=None
                m = re.search(r";@(\S+)", ln)
                if m: tag = m.group(1)
                out.append(I(ln, tag))
        return out
    for y in x: out += mk(y)
    return out

def resolve_waits(code, age=3, warn=None):
    vm = []; lg = []; out = []; nm = 0
    def emit(q, n, name, why):
        lim = 63 if name == "vmcnt" else 15
        n = min(n, lim)
        if name == "lgkmcnt" and n != 0 and any(p[0].kind == "smem" for p in q): n = 0
        del q[:len(q)-n]
        out.append(I(f"s_waitcnt {name}({n})  ; {why}"))
    for ins in code:
        if ins.tag == "skip" or ins.kind == "label":
            out.append(ins); continue
        if ins.kind == "symwait":
            q = vm if ins.mn == "WAITVM" else lg
            tags = ins.ops
            if tags == ["all"]: n = 0
            else:
                idx = -1
                for i, p in enumerate(q):
                    if p[0].tag in tags: idx = i
                if idx < 0: continue
                n = len(q) - 1 - idx
            if warn is not None and q is lg and q and nm - q[len(q)-1-n][1] < 2 and nm: warn.append(f"young LDS wait at mfma {nm}: {ins.text}")
            emit(q, n, "vmcnt" if ins.mn == "WAITVM" else "lgkmcnt", "wait " + ",".join(tags))
            continue
        if ins.mn == "s_waitcnt":
            t = ins.text.split(";")[0]
            m = re.search(r"vmcnt\((\d+)\)", t)
            if m and len(vm) > int(m.group(1)): del vm[:len(vm)-int(m.group(1))]
            m = re.search(r"lgkmcnt\((\d+)\)", t)
            if m and len(lg) > int(m.group(1)): del lg[:len(lg)-int(m.group(1))]
            out.append(ins); continue
        touched = ins.rd | ins.wr
        for q, name in ((vm, "vmcnt"), (lg, "lgkmcnt")):
            idx = -1
            for i, p in enumerate(q):
                if p[0].wr & touched: idx = i
            if idx >= 0:
                if warn is not None and q is lg and nm - q[idx][1] < 2: warn.append(f"young LDS use at mfma {nm}: {ins.text}")
                if q is lg:
                    while idx + 1 < len(q) and nm - q[idx+1][1] >= age: idx += 1
                emit(q, len(q) - 1 - idx, name, "auto")
        if ins.kind == "vmem": vm.append((ins, nm))
        elif ins.kind in ("ds", "smem"): lg.append((ins, nm))
        elif ins.kind == "mfma": nm += 1
        out.append(ins)
    return out

def merge_waits(code):
    out=[]
    for ins in code:
        if ins.mn=="s_waitcnt" and out and out[-1].mn=="s_waitcnt" and ins.tag!="skip" and out[-1].tag!="skip":
            def g(t,k):
                m=re.search(k+r"\((\d+)\)",t.split(";")[0]); return int(m.group(1)) if m else None
            a,b=out[-1].text,ins.text
            parts=[]
            for k in ("vmcnt","lgkmcnt"):
                v=[x for x in (g(a,k),g(b,k)) if x is not None]
                if v: parts.append(f"{k}({min(v)})")
            out[-1]=I("s_waitcnt "+" ".join(parts))
        else: out.append(ins)
    return out

def check_loads(code):
    vm=[]; lg=[]
    for n,ins in enumerate(code):
        if ins.kind=="label" or ins.tag=="skip": continue
        if ins.mn=="s_waitcnt":
            t=ins.text.split(";")[0]
            m=re.search(r"vmcnt\((\d+)\)",t)
            if m and len(vm)>int(m.group(1)): del vm[:len(vm)-int(m.group(1))]
            m=re.search(r"lgkmcnt\((\d+)\)",t)
            if m and len(lg)>int(m.group(1)): del lg[:len(lg)-int(m.group(1))]
            continue
        m=re.search(r";after (\S+)",ins.text)
        if m:
            for p in vm: assert p.tag not in m.group(1).split(","), f"'{ins.text}' reached with '{p.text}' outstanding"
        touched = ins.rd|ins.wr
        for q in (vm,lg):
            for p in q:
                hit = p.wr & touched
                if hit and not ("d16" in ins.mn and "d16" in p.mn):
                    raise Exception(f"load-use violation at #{n}: '{ins.text}' touches {sorted(hit)} pending from '{p.text}'")
        if ins.kind=="vmem": vm.append(ins)
        elif ins.kind in ("ds","smem"): lg.append(ins)

def need(prod, cons):
    n = 0
    pv = prod.isvalu()
    if pv:
        vw = {r for r in prod.wr if r[0] in "va"}
        sw = {r for r in prod.wr if r[0] == "s"}
        if cons.kind == "mfma" and vw & cons.rd: n = max(n, 2)
        if prod.kind == "trans" and cons.kind == "valu" and vw & cons.rd: n = max(n, 1)
        if prod.kind == "trans" and cons.kind in("ds","vmem") and vw & cons.rd: n = max(n, 1)
        if cons.mn.startswith(("v_readfirstlane","v_readlane")) and vw & cons.rd: n = max(n, 1)
        if cons.isvalu() and ("dpp" in cons.mn or "quad_perm" in cons.mods or "row_" in cons.mods or cons.mn.startswith("v_permlane")) and vw & cons.rd: n = max(n, 2)
        if sw:
            if cons.isvalu() and sw & cons.rd:
                n = max(n, 4 if cons.mn.startswith(("v_readlane","v_writelane")) else 2)
            if cons.kind == "vmem" and sw & cons.rd: n = max(n, 5)
            if cons.kind in("salu","smem") and sw & cons.rd: n = max(n, 1)
    if prod.kind == "mfma":
        big = prod.passes == 8
        if cons.kind == "mfma":
            if prod.wr & cons.srcAB: n = max(n, 12 if big else 8)
            if prod.wr & cons.srcC and not (prod.wr == cons.srcC and prod.passes == cons.passes): n = max(n, 10 if big else 6)
            if prod.wr & cons.wr and not (prod.wr & cons.srcC): n = max(n, 12 if big else 8)
        elif cons.isvalu() or cons.kind in ("ds","vmem"):
            if prod.wr & (cons.rd | cons.wr): n = max(n, 12 if big else 8)
            if cons.isvalu() and prod.srcC & cons.wr: n = max(n, 7 if big else 3)
    if prod.kind == "salu" and "m0" in prod.wr and cons.kind == "vmem" and "m0" in cons.rd: n = max(n, 1)
    if prod.kind == "vmem" and len(prod.data) >= 3 and prod.data & cons.wr: n = max(n, 2)
    return n

def pad_hazards(code, verbose=False):
    out = []; added = 0
    for ins in code:
        if ins.kind != "label":
            dist = 0; worst = 0
            for p in reversed(out):
                if dist >= 13: break
                r = need(p, ins)
                if r > dist: worst = max(worst, r - dist)
                dist += p.states()
            if worst:
                if verbose: print("pad", worst, "before", ins.text)
                out.append(I(f"s_nop {worst-1}")); added += worst
        out.append(ins)
    return out, added

def finalize(code, verbose=False):
    code = mk(code)
    w = []
    code = resolve_waits(code, warn=w)
    if verbose:
        for x in w: print(x)
    code = merge_waits(code)
    check_loads(code)
    code, added = pad_hazards(code, verbose)
    return code, added

def spread(gaps, items, lo, hi):
    n = len(items); m = hi - lo
    for i, it in enumerate(items):
        gaps[lo + (i * m) // n] += mk(it)

def weave(mf, gaps, pre=None):
    out = []
    for i, m in enumerate(mf):
        if pre and pre.get(i): out += mk(pre[i])
        out += mk(m); out += mk(gaps[i])
    return out

def icost(ins):
    if ins.kind == "label": return 0
    if ins.kind == "trans": return 2
    if ins.kind == "vmem": return 2
    if ins.kind == "ds" and ins.mn.startswith("ds_write_b128"): return 5
    if ins.kind == "ds" and ins.mn.startswith("ds_write"): return 2
    return 1
class Stream:
    def __init__(s, items, lo, hi, eager=False, prio=0, pace=None):
        its = []; mins = []; cur = lo
        for it in items:
            if isinstance(it, int): cur = max(cur, it); continue
            if not it: continue
            it = mk(it)
            if len(it) > 1 and it[-1].kind == "vmem" and all(i.kind == "salu" for i in it[:-1]) and "s59" not in it[-1].rd:
                its += [it[:-1], it[-1:]]; mins += [cur, cur]
            else: its.append(it); mins.append(cur)
        s.items = its; s.lo = lo; s.hi = hi; s.eager = eager; s.prio = prio; s.mins = mins
        s.c = [sum(icost(i) for i in it) for it in s.items]
        tot = sum(s.c) or 1; acc = 0; s.tgt = []
        t = lo
        for k, c in enumerate(s.c):
            if pace is None:
                s.tgt.append(max(mins[k], lo + acc * (hi - lo) / tot)); acc += c
            else:
                t = max(t, mins[k]); isv = any(i.kind == "vmem" for i in its[k])
                s.tgt.append(t if isv else max(mins[k], t - 1))
                if isv: t += pace
        s.pos = 0; s.pace = pace; s.next = lo
        s.dl = [None]*len(s.items)
    def deadlines(s, use, W):
        idx = [k for k,it in enumerate(s.items) if it[-1].kind == "vmem" and it[-1].tag in use]
        eff = [use[s.items[k][-1].tag] for k in idx]
        for a in reversed(range(len(eff)-1)): eff[a] = min(eff[a], eff[a+1])
        for a,k in enumerate(idx):
            d = eff[max(0,a-W)] - 1
            d = max(d, s.mins[k]); assert d <= use[s.items[k][-1].tag] - 1, (s.items[k], d)
            s.dl[k] = d
        nxt = None
        for k in reversed(range(len(s.items))):
            if s.dl[k] is not None: nxt = s.dl[k] if nxt is None else min(nxt, s.dl[k])
            if nxt is not None: s.dl[k] = max(nxt, s.mins[k])
def lcost(ins):
    if ins.kind != "ds": return 0
    if ins.mn.startswith("ds_write"): return 32 if ("b128" in ins.mn or "2_b64" in ins.mn) else 16
    if "b128" in ins.mn: return 16
    if "2" in ins.mn.split("_")[1]: return 32 if "b64" in ins.mn else 16
    return 8
def schedule(mf, streams, pre=None, cap=6, report=None):
    pre = {k: mk(v) for k, v in (pre or {}).items()}
    out = []; loads = []
    n = len(mf)
    for g in range(n):
        out += pre.get(g, []); out += mk(mf[g])
        nx = pre.get(g + 1, [])
        room = cap - sum(icost(i) for i in nx)
        if any(i.mn == "s_barrier" for i in nx): room = min(room, 0)
        lroom = 32 if cap == 6 else 16
        fds = []; front = []; back = []; valu_used = set(); nonds = set(); hasv = False
        while True:
            cands = []
            for k, s in enumerate(streams):
                if s.pos >= len(s.items) or g < s.mins[s.pos]: continue
                it = s.items[s.pos]; isv = any(i.isvalu() for i in it)
                forced = (g >= min(s.hi, n) - 1 and not getattr(s,'carry',False)) or (s.dl[s.pos] is not None and g >= s.dl[s.pos])
                if not isv and k in valu_used and not forced: continue
                if s.pace is None: due = s.tgt[s.pos] <= g + 0.999
                else: due = s.next - (0 if any(i.kind == "vmem" for i in it) else 1) <= g + 0.5
                if not (due or s.eager or forced): continue
                c = s.c[s.pos]; lc = sum(lcost(i) for i in it)
                ism = any(i.kind == "vmem" for i in it)
                if ism and (fds or hasv): c += 1
                if lc and hasv and not fds: c += 1
                if not forced:
                    if lc > lroom: continue
                    if c > room and not (c > cap and room >= cap - 1): continue
                cands.append((0 if forced else (1 if due else 2), -s.prio, s.tgt[s.pos], k, c, lc))
            if not cands: break
            _, _, _, k, c, lc = min(cands); s = streams[k]; it = s.items[s.pos]
            if any(i.isvalu() for i in it) or k in valu_used:
                back += it; valu_used.add(k)
            elif all(i.kind == "ds" for i in it) and k not in nonds: fds += it
            else: front += it; nonds.add(k)
            if any(i.kind == "vmem" for i in it):
                hasv = True
                if s.pace is not None: s.next = (s.next if (-getattr(s,'slip',1) <= s.next - g <= 1) else g) + s.pace
            room -= c; lroom -= lc; s.pos += 1
        out += fds + front + back; loads.append(sum(icost(i) for i in fds + front + back + nx))
    for s in streams: assert s.pos == len(s.items) or getattr(s,'carry',False), "unplaced items"
    if report is not None: report.append(loads)
    return out

def check_init(code):
    seen={"v0","s0","s1","s2","exec"}
    for ins in code:
        if ins.kind=="label": continue
        bad=[r for r in ins.rd if r not in seen]
        if bad and not ins.mn.startswith("v_mov_b32") : print("UNINIT", sorted(bad), "in", ins.text)
        seen|=ins.wr|set(bad)

def check_tags(code):
    code = mk(code); last = {}
    waited = {}
    seen = set()
    for n, ins in enumerate(code):
        if ins.tag == "skip": continue
        if ins.kind == "symwait" and ins.mn == "WAITVM":
            for t in ins.ops:
                if t != "all":
                    assert t in seen, f"wait on tag {t} never issued"
                    waited[t] = n
        if ins.kind == "vmem" and ins.tag:
            assert ins.tag not in waited, f"op issued after its wait: {ins.text}"
            seen.add(ins.tag)
        m = re.search(r";need (\S+)", ins.text)
        if m:
            have = {last.get(r) for r in ins.rd}
            for t in m.group(1).split(","):
                assert t in have, f"operand {t} not loaded before '{ins.text}'"
        for r in ins.wr: last[r] = ins.tag
```

```python
import sys, struct, math
from asmlib import *

KNAME = "gated_mix__spectral_gfnet__glu_gated_geglu__prompt_kernel"
def f2u(x): return "0x%08x" % struct.unpack("<I", struct.pack("<f", x))[0]

WS_G   = 0x10000
WS_FP  = 0x4000
WS_FR  = 0x8000
WS_FD  = 0x18000
WS_FH  = 0x80000
WS_R   = 0x100000
WS_RP  = 0x300000
WS_H   = 0x500000
WS_D   = 0xC00000
WS_DBG = 0xF00000
WS_SIZE = 0x10000000
XA, XB, C0, C1 = 0, 65536, 131072, 147456
L_T, L_H = C0+8192, C1
HS=136
L_NR=L_H+64*HS; L_GW=L_NR+1024; L_NY=L_GW+1024
SX,SWG,SWU,SWD,SWS,SOUT,SGW,SWR,SWI = [f"s[{i}:{i+3}]" for i in (4,8,12,16,20,24,28,32,36)]
sNON="s[40:41]"
sW,sB,sCG,sRES,sRB4,sFB,sP,sQ = "s42","s43","s44","s45","s46","s47","s48","s49"
sXS,sWS0,sM4K,sHS,sFHS,sLD,sM16K,sROT = "s50","s51","s52","s53","s54","s55","s56","s57"
sT0,sT1,sT2,sT3 = "s58","s59","s60","s61"
sGC1,sSWP="s62","s63"
sPM="s[64:65]"; sPT="s[66:67]"; sCNT="s68"; sOH="s69"
sB2="s57"; sFC="s69"; sCC=["s64","s65","s66","s67"]
sRR=["s16","s17","s18","s19"]; sXQ=["s28","s29","s30","s31"]
sDB,sHB,sH0,sFH0,sX0,sHS2,sWC = "s32","s33","s34","s35","s36","s47","s38"
vL, vL16, vFO = "v0","v1","v2"
vG = ["v3","v4"]; vPA="v5"; vNON="v[6:7]"
vXO=[f"v{8+i}" for i in range(4)]
vXR=[f"v{12+i}" for i in range(8)]
vWO=[f"v{20+i}" for i in range(4)]
vWT=[f"v{24+i}" for i in range(4)]
vOMG=[["v20","v21"],["v22","v23"]]
vPA2="v28"; vTP="v29"; vPOLL="v[30:31]"
def vr(a,n): return f"v[{a}:{a+n-1}]"
def ar(a,n): return f"a[{a}:{a+n-1}]"
ACC=32; XR=96; ET=128; HP=[144,152]; vGC0='v24'

class Opt:
    stamps=0; hold=0; probe=''; inp2=False; outf="nt"; cpf=True; verbose=False
    sel='start,x0/qx0,p0/qp0,r0/qprep,r2/qpoll,r3/qmain,g28,g56,g84,g108,gend'
    slp=4; nomem=0; nopoll=''; plainst=0; drop=''
    rot7=0; fmode=0; dropp=0; q_pe=1; q_t='2.10.7.6'; q_nh=9; q_e=3; q_npre=11; q_sp=10; pdi=4; nd1=9; nd2=17; nd3=33; nd4=41; hb=46; fhg=40; seq='012v3'; hk1=8; hsp=9; hn1=3; hn2=10; f2g=24; p1g=60; p1c=70; ppg=36; ppc=48; pace2=15; win=11; dlead=4; f2i=0; p1i=6; dfill=4; id2=0; map2=0; f0=24; f1=24; f3=20; f3i=12; hn3=1; nh3=0; hb1=44; hb2=44; hb3=38; nds='4.9.14.33.33'; plead=9; hmode=1; p0g=58; fbar=1; rsg=-1; dsg=16; xsplit=1; hpre=1; gpre=0; nth='011224'; x2g=100; prek=4; npre=21; p0d=0; pace0=30; pace1=21; b01=20; order='x0.e.x1.x2.x3.d.w0.w1.w2.w3'; pdb=24; nw1=11; sp1=8; sp2=8; st2=60
opt=Opt()
nstamp=[0]; inp2=[False]; rep=[]
def stamp(name):
    if inp2[0]: name="q"+name
    if opt.probe==name: return ["s_memrealtime s[100:101]","s_waitcnt lgkmcnt(0)"]
    if not opt.stamps: return []
    idx=None
    for i,grp in enumerate(opt.sel.split(",")):
        if name in grp.split("/"): idx=i
    if idx is None: return []
    assert idx<13
    return [f"{'s_memtime' if opt.stamps==1 else 's_memrealtime'} s[{70+2*idx}:{71+2*idx}]","s_waitcnt lgkmcnt(0)"]
def MF32(d,a,b,c): return f"v_mfma_f32_32x32x16_bf16 {d}, {a}, {b}, {c}"
def MF16(d,a,b,c): return f"v_mfma_f32_16x16x32_bf16 {d}, {a}, {b}, {c}"
def flat(g): return [i for x in g for i in (x if isinstance(x,list) else [x])]
def one(L): return [[x] for x in L]
def sprinkle(main, items, every, start=0):
    out=[]; items=list(items); main=mk(main); due=0
    for n,ins in enumerate(main):
        if n>=start and (n-start)%every==0: due+=1
        if items and due and not ins.mn.startswith(("s_cselect","s_subb","s_addc","s_cbranch")):
            out+=mk(items.pop(0)); due-=1
        out.append(ins)
    for it in items: out+=mk(it)
    return out

lab=[0]; outl=[]
def poll_issue(tag, pa=vPA, so="0"):
    if opt.dropp and tag in opt.nopoll.split(","): return [f"buffer_load_dwordx2 {vPOLL}, off, {SWS}, 0 sc1 ;@{tag}"]
    return [f"buffer_load_dwordx2 {vPOLL}, {pa}, {SWS}, {so} offen sc1 ;@{tag}"]
def poll_check(tag, pa=vPA, so="0", mask=0x3fff):
    if tag in opt.nopoll.split(","): mask=0
    lab[0]+=1; n=lab[0]
    chk=[f"v_cmp_ne_u64 vcc, {sNON}, {vPOLL}", f"s_and_b32 {sCNT}, vcc_lo, {mask}"]
    outl.extend([f"L_pr{n}:", f"s_mov_b32 s3, 100000", f"L_pl{n}:", f"s_sleep {opt.slp}",
           f"buffer_load_dwordx2 {vPOLL}, {pa}, {SWS}, {so} offen sc1 ;@skip", f"s_sub_u32 s3, s3, 1", f"s_cbranch_scc1 L_pd{n}", "s_waitcnt vmcnt(0) ;@skip"]+chk+
           [f"s_cbranch_scc1 L_pl{n}", f"s_branch L_pd{n}"])
    return [f"WAITVM {tag}"]+chk+[f"s_cbranch_scc1 L_pr{n}", f"L_pd{n}:"]
def flag_store(soff): return f"buffer_store_dwordx2 {vNON}, {vFO}, {SWS}, {soff} offen sc1 ;@fl"

def dma4(vo, srds, tag, setup):
    g=[setup+[f"buffer_load_dwordx4 {vo[0]}, {srds[0]}, {sT0} offen lds ;@{tag}"]]
    for j in range(1,4): g.append([f"buffer_load_dwordx4 {vo[j]}, {srds[j]}, {sT0} offen offset:{j*1024} lds ;@{tag}"])
    return g
def dma_x(slot,kq,tag):
    return dma4(vXO,[SX]*4,tag,[f"s_add_u32 m0, {sM4K}, {slot+kq*16384}", f"s_add_u32 {sT0}, {sXS}, {sXQ[kq]}"])
def set_xs(r): return [f"s_lshl_b32 {sXS}, {sRR[r]}, 10", f"s_add_u32 {sXS}, {sXS}, {sX0}"]
def wslot(n): return (XB if n<4 else XA)+(n%4)*16384
def dma_w(i):
    su=[f"s_mul_i32 {sT0}, {sXQ[i//2]}, 1792", f"s_add_u32 m0, {sM4K}, {wslot(i)}", f"s_add_u32 {sT0}, {sT0}, {sWS0 if i%2==0 else sWC}"]
    return dma4(vWO,[SWG,SWU,SWG,SWU],f"W{i}",su)

def prologue():
    c=["s_cmp_ge_u32 s2, 256","s_cbranch_scc1 L_end"]
    if opt.stamps or opt.hold: c+=["s_memrealtime s[100:101]"]
    c+=stamp("start")
    c+=["s_load_dwordx4 s[4:7], s[0:1], 0",
        "s_load_dwordx8 s[8:15], s[0:1], 32",
        "s_load_dwordx2 s[20:21], s[0:1], 80",
        "s_load_dwordx2 s[36:37], s[0:1], 16",
        "s_load_dwordx2 s[24:25], s[0:1], 64"]
    c+=[f"s_lshr_b32 {sT1}, s2, 3"]
    if opt.cpf:
        c+=["s_getpc_b64 s[66:67]","L_pc:",f"s_lshl_b32 {sT0}, {sT1}, 11",f"v_lshl_add_u32 v8, v0, 7, {sT0}",
            "v_cmp_gt_u32 vcc, 16, v0","s_mov_b64 s[64:65], vcc","v_cmp_gt_u32 vcc, L_codeend-L_pc, v8","s_and_b64 vcc, vcc, s[64:65]",
            "v_mov_b32 v9, s67","s_and_saveexec_b64 s[64:65], vcc","s_cbranch_execz L_nopf",
            "v_add_co_u32 v8, vcc, s66, v8","v_addc_co_u32 v9, vcc, 0, v9, vcc","global_load_dword v255, v[8:9], off ;@skip","L_nopf:","s_mov_b64 exec, s[64:65]"]
    c+=["v_lshrrev_b32 v5, 6, v0","v_and_b32 v0, 63, v0",f"v_readfirstlane_b32 {sW}, v5",
        f"v_lshlrev_b32 {vL16}, 4, {vL}",
        f"s_and_b32 {sRES}, s2, 3", f"s_and_b32 {sT0}, s2, 4"]+([f"s_lshr_b32 {sCG}, {sT1}, 3", f"s_add_u32 {sCG}, {sCG}, {sT0}", f"s_and_b32 {sT1}, {sT1}, 7", f"s_lshl_b32 {sRB4}, {sT1}, 2"] if opt.map2 else
        [f"s_lshr_b32 {sCG}, {sT1}, 2", f"s_and_b32 {sT1}, {sT1}, 3", f"s_add_u32 {sRB4}, {sT0}, {sT1}", f"s_lshl_b32 {sRB4}, {sRB4}, 2"])+[ f"s_add_u32 {sB}, {sRB4}, {sRES}",
        f"s_add_u32 {sROT}, {sT1}, {sCG}", f"s_and_b32 {sROT}, {sROT}, 3",
        f"s_lshr_b32 {sP}, {sW}, 1", f"s_and_b32 {sQ}, {sW}, 1", f"s_lshl_b32 {sM4K}, {sW}, 12", f"s_lshl_b32 {sM16K}, {sW}, 14",
        f"s_lshl_b32 {sXS}, {sW}, 19", f"s_lshl_b32 {sT0}, {sB}, 10", f"s_add_u32 {sXS}, {sXS}, {sT0}", f"s_lshl_b32 {sXQ[0]}, {sROT}, 8"]
    for kq in range(1,4): c+=[f"s_add_u32 {sXQ[kq]}, {sXQ[kq-1]}, 256", f"s_and_b32 {sXQ[kq]}, {sXQ[kq]}, 1023"]
    c+=["v_lshrrev_b32 v128, 4, v0", "v_and_b32 v129, 15, v0", "v_xor_b32 v131, v129, v128", "v_lshlrev_b32 v131, 4, v131", f"v_lshl_add_u32 {vXO[0]}, v128, 15, v131"]
    for j in range(1,4):
        c+=[f"v_xor_b32 v130, {64*j}, {vXO[0]}", f"v_add_u32 {vXO[j]}, {4*j*32768-j*1024}, v130"]
    c+=[f"s_cmp_eq_u32 {sCG}, 7","s_cbranch_scc1 L_p2"]
    return c
def srd_common():
    return [f"s_mov_b32 s6, {0 if opt.nomem&1 else 0x200000}","s_mov_b32 s7, 0x20000", f"s_mov_b32 s22, {WS_SIZE}","s_mov_b32 s23, 0x20000",
            "s_mov_b32 s26, 0x200000","s_mov_b32 s27, 0x20000"]
def cons_scalars():
    if opt.id2: c=[f"s_and_b32 {sB2}, s2, 7", f"s_lshl_b32 {sB2}, {sB2}, 2", f"s_bfe_u32 {sCC[0]}, s2, 0x20003", f"s_add_u32 {sB2}, {sB2}, {sCC[0]}"]
    elif opt.map2==1: c=[f"s_and_b32 {sB2}, s2, 4", f"s_bfe_u32 {sCC[0]}, s2, 0x20003", f"s_add_u32 {sB2}, {sB2}, {sCC[0]}", f"s_lshl_b32 {sB2}, {sB2}, 2", f"s_add_u32 {sB2}, {sB2}, {sRES}", f"s_mov_b32 {sCC[0]}, {sRES}"]
    else: c=[f"s_mov_b32 {sB2}, {sB}", f"s_mov_b32 {sCC[0]}, {sRES}"]
    if opt.map2==1: c+=[f"s_lshr_b32 {sCG}, s2, 5"]
    for i in range(1,4): c+=[f"s_sub_u32 {sCC[i]}, {sCC[0]}, {i}", f"s_and_b32 {sCC[i]}, {sCC[i]}, 3"]
    c+=[f"s_lshl_b32 {sDB}, {sCG}, 2", f"s_add_u32 {sDB}, {sDB}, {sW}", f"s_mul_i32 {sDB}, {sDB}, 57344", f"s_add_u32 {sDB}, {sDB}, {WS_D}",
        f"s_lshl_b32 {sHB}, {sB2}, 2", f"s_add_u32 {sHB}, {sHB}, {sW}", f"s_mul_i32 {sHB}, {sHB}, 57344", f"s_add_u32 {sHB}, {sHB}, {WS_H}",
        f"s_and_b32 {sFC}, {sB2}, 28", f"s_lshl_b32 {sFC}, {sFC}, 1", f"s_add_u32 {sFC}, {sFC}, {sP}", f"s_mul_i32 {sFC}, {sFC}, {56*128}", f"s_add_u32 {sFC}, {sFC}, {WS_FH}"]
    return c

FF=64
vHA,vHB,vTW,vTR,vBW="v28","v29","v3","v4","v30"
def gen_F():
    c=["v_and_b32 v128, 3, v0", "v_bfe_u32 v129, v0, 3, 2", "v_lshl_add_u32 v128, v129, 2, v128", "v_bfe_u32 v129, v0, 2, 1", "v_lshl_add_u32 v128, v129, 4, v128",
       f"s_lshr_b32 {sT3}, {sCG}, 1", f"s_lshl_b32 {sT3}, {sT3}, 6", f"s_and_b32 {sT2}, {sCG}, 1", f"s_add_u32 {sT2}, {sT2}, {sT3}", f"v_lshl_add_u32 v128, v128, 1, {sT2}",
       f"v_cvt_f32_u32 v129, {sP}", f"v_mul_f32 v129, {f2u(-0.25)}, v129",
       f"s_lshl_b32 {sT3}, {sP}, 8", f"v_mov_b32 v130, {sT3}",
       "v_cmp_eq_u32 vcc, 0, v128", "v_lshrrev_b32 v131, 5, v0", f"s_lshl_b32 {sT3}, {sROT}, 7",
       "v_cndmask_b32 v128, v128, v130, vcc", "v_cndmask_b32 v129, v129, 0, vcc",
       "v_cvt_f32_u32 v128, v128", f"v_mul_f32 v128, {f2u(1/512)}, v128",
       f"v_lshl_add_u32 v131, v131, 3, {sT3}", "v_cvt_f32_u32 v131, v131", "v_fmac_f32 v129, v131, v128",
       f"v_mul_f32 v130, {f2u(16.0)}, v128"]
    S0,S1=132,140
    c+=[f"v_mov_b32 v{S0}, v129", f"v_add_f32 v{S1}, v130, v129", "v_cos_f32 v130, v130"]
    for j in range(1,8): c+=[f"v_add_f32 v{S0+j}, v128, v{S0+j-1}", f"v_add_f32 v{S1+j}, v128, v{S1+j-1}"]
    c+=["v_add_f32 v130, v130, v130","v_mov_b32 v131, v130"]
    for j in range(16): c+=[f"v_cos_f32 v{S0+j}, v{S0+j}"]
    for j in range(8): c+=[f"v_cvt_pk_bf16_f32 v{FF+j}, v{S0+2*j}, v{S0+2*j+1}"]
    for ks in range(2,16):
        P,Cu=(S0,S1) if ks%2==0 else (S1,S0)
        for j in range(4): c+=[f"v_pk_fma_f32 {vr(P+2*j,2)}, v[130:131], {vr(Cu+2*j,2)}, {vr(P+2*j,2)} neg_lo:[0,0,1] neg_hi:[0,0,1]"]
        for j in range(4): c+=[f"v_cvt_pk_bf16_f32 v{FF+4*ks+j}, v{P+2*j}, v{P+2*j+1}"]
    return c
def gen_H(B=128):
    r,cf,ad,t=[f"v{B+i}" for i in range(4)]; V=B+4
    c=[f"v_and_b32 {r}, 15, v0", f"s_lshl_b32 {sT1}, {sW}, 4", f"v_add_u32 {r}, {sT1}, {r}", f"v_and_b32 {t}, 1, v0", f"v_lshrrev_b32 {cf}, 1, {r}",
       f"v_cvt_f32_u32 {t}, {t}", f"v_cvt_f32_u32 {cf}, {cf}", f"v_cmp_eq_u32 vcc, 1, {r}", f"v_mul_f32 {t}, {f2u(-0.25)}, {t}", f"v_mul_f32 {cf}, {f2u(1/64)}, {cf}",
       f"v_and_b32 {ad}, 48, v0", f"v_cndmask_b32 {t}, {t}, 0, vcc", f"v_cndmask_b32 {cf}, {cf}, 0.5, vcc", f"v_cvt_f32_u32 v{V}, {ad}", f"v_mul_u32_u24 {r}, {HS}, {r}",
       f"v_fmac_f32 {t}, v{V}, {cf}", f"v_lshl_add_u32 {ad}, {ad}, 1, {r}", f"v_add_u32 {ad}, {L_H}, {ad}"]
    for hf in range(2):
        c+=[f"v_fmamk_f32 v{V+j}, {cf}, {f2u(8*hf+j)}, {t}" for j in range(8)]
        c+=[f"v_cos_f32 v{V+j}, v{V+j}" for j in range(8)]
        c+=[f"v_cvt_pk_bf16_f32 v{V+j}, v{V+2*j}, v{V+2*j+1}" for j in range(4)]
        c+=[f"ds_write2_b64 {ad}, {vr(V,2)}, {vr(V+2,2)} offset0:{2*hf} offset1:{2*hf+1} ;@hw"]
    return c
def xr_addr():
    c=["v_and_b32 v128, 15, v0","v_and_b32 v130, 31, v0", f"s_lshl_b32 {sT2}, {sQ}, 13", f"v_lshl_add_u32 v130, v130, 8, {sT2}", "v_lshrrev_b32 v131, 5, v0",
       "v_xor_b32 v131, v131, v128", f"v_lshl_add_u32 {vXR[0]}, v131, 4, v130"]
    return c+[f"v_xor_b32 {vXR[i]}, {32*i}, {vXR[0]}" for i in range(1,8)]
def p0_addr():
    return [["v_lshrrev_b32 v2, 4, v0"],["v_lshlrev_b32 v2, 28, v2"],["v_lshl_add_u32 v2, v0, 3, v2"],
        ["v_and_b32 v31, 31, v0"],[f"v_mul_u32_u24 {vHA}, {HS}, v31"],
        [f"s_xor_b32 {sT1}, {sW}, 1", f"s_lshl_b32 {sT1}, {sT1}, 11", f"s_add_u32 {sT1}, {sT1}, {L_T}", f"v_lshl_add_u32 {vBW}, v31, 6, {sT1}", f"v_add_u32 {vTR}, {sT1}, {vL16}"],
        [f"v_xor_b32 {vTW}, 2048, {vTR}"],
        ["v_lshrrev_b32 v31, 5, v0"],[f"v_lshl_add_u32 {vHA}, v31, 3, {vHA}"],[f"v_lshl_add_u32 {vBW}, v31, 5, {vBW}"],
        [f"s_mul_i32 {sT1}, {sQ}, {32*HS-64}", f"s_add_u32 {sT1}, {sT1}, {L_H+64}", f"v_add_u32 {vHB}, {sT1}, {vHA}"],
        [f"s_mul_i32 {sT1}, {sQ}, {32*HS+64}", f"s_add_u32 {sT1}, {sT1}, {L_H}", f"v_add_u32 {vHA}, {sT1}, {vHA}"],
        ["v_bfe_u32 v31, v0, 1, 2"],["v_lshlrev_b32 v31, 4, v31"],[f"v_xor_b32 {vBW}, v31, {vBW}"],[f"v_xor_b32 v31, 16, {vBW}"]]
def eload(): return [f"buffer_load_dwordx2 {vNON}, off, {SWS}, 0 sc1 ;@E"]

TA=32; TPK=96; TOT=104; HFA=232; D2=32; RPK=48; RBK=56
def nonce():
    return [["WAITVM E","v_readfirstlane_b32 s40, v6"],["v_readfirstlane_b32 s41, v7"],["s_mul_i32 s40, s40, 0x9E3779B1"],["s_add_u32 s40, s40, 0x7F4A7C15"],
           ["s_mul_i32 s41, s41, 0x85EBCA6D"],["s_add_u32 s41, s41, 0xC2B2AE35"],["v_mov_b32 v6, s40"],["v_mov_b32 v7, s41"],
           [f"s_and_b32 {sT3}, {sCG}, 1"],[f"s_lshl_b32 {sT3}, {sT3}, 31"],[f"s_or_b32 {sT3}, {sT3}, 0x3f800000"],
           [f"s_lshl_b32 {sT2}, {sB}, 3"],[f"s_add_u32 {sT2}, {sT2}, {sCG}"],[f"s_lshl_b32 {sT2}, {sT2}, 2"],[f"s_add_u32 {sT2}, {sT2}, {sW}"],
           [f"s_lshl_b32 {sT2}, {sT2}, 11"],[f"s_add_u32 {sT2}, {sT2}, {WS_R}"]]
def p0_mf(xf):
    return [MF32(vr(TA+16*(ks//16),16), xf(ks), vr(FF+4*(ks%16),4), vr(TA+16*(ks//16),16) if ks%16 else "0") for ks in range(32)]
def x0_reads(xf,kq): return [f"ds_read_b128 {xf(ks)}, {vXR[ks%8]} offset:{kq*16384} ;@r" for ks in range(8*kq,8*kq+8)]
def t_pack():
    c=[]
    for sg in range(2):
        c+=[f"v_pk_fma_f32 {vr(TA+8*sg+2*i,2)}, {vr(TA+16+8*sg+2*i,2)}, s[60:61], {vr(TA+8*sg+2*i,2)} op_sel:[0,1,0] op_sel_hi:[1,1,1]" for i in range(4)]
        c+=[f"v_cvt_pk_bf16_f32 v{TPK+4*sg+i}, v{TA+8*sg+2*i}, v{TA+8*sg+2*i+1}" for i in range(4)]
        c+=[f"ds_write_b128 {vTW}, {vr(TPK+4*sg,4)} offset:{1024*sg} ;@tw"]
    return c
def h_reads():
    return [f"ds_read_b128 {vr(TOT+4*sg,4)}, {vTR} offset:{1024*sg} ;@hr" for sg in range(2)]+\
           [f"ds_read2_b64 {ar(HFA+8*o+4*sg,4)}, {vHA if o==0 else vHB} offset0:{4*sg} offset1:{4*sg+2} ;@hr" for o in range(2) for sg in range(2)]
def h_mf(): return [MF32(vr(D2,16), vr(TPK+4*n,4), ar(HFA+4*n,4), vr(D2,16) if n else "0") for n in range(4)]
def r_pack():
    c=[]
    for e in range(2):
        c+=[f"v_cvt_pk_bf16_f32 v{RPK+4*e+i}, v{D2+8*e+2*i}, v{D2+8*e+2*i+1}" for i in range(4)]
        c+=[f"ds_write_b128 {vBW if e==0 else 'v31'}, {vr(RPK+4*e,4)} ;@bw"]
    return c
def r_back(): return [f"ds_read_b128 {vr(RBK+4*e,4)}, {vTR} offset:{1024*e} ;@br" for e in range(2)]
def r_store():
    return [["WAITLG br", f"buffer_store_dwordx4 {vr(RBK,4)}, {vL16}, {SWS}, {sT2} offen sc1 ;@Rst"],
            [f"buffer_store_dwordx4 {vr(RBK+4,4)}, {vL16}, {SWS}, {sT2} offen offset:1024 sc1 ;@Rst"]]
def flag_R_addr(sT2=sT2):
    return [[f"s_lshl_b32 {sT2}, {sCG}, 5", f"s_add_u32 {sT2}, {sT2}, {sB}"],[f"s_lshl_b32 {sT2}, {sT2}, 7", f"s_add_u32 {sT2}, {sT2}, {WS_FR}"],
            [f"s_cmp_eq_u32 {sW}, 0", f"s_cselect_b32 {sT2}, {sT2}, 0x40000000"]]

def g_start():
    wo=["v_lshrrev_b32 v150, 3, v0", "v_and_b32 v151, 7, v0", "v_and_b32 v152, 2, v150", "v_lshlrev_b32 v5, 1, v152", "v_xor_b32 v5, v5, v151", "v_lshlrev_b32 v5, 4, v5", "v_lshl_add_u32 v5, v150, 10, v5",
        "v_xor_b32 v151, v151, v152", "v_mul_u32_u24 v150, 3584, v150",
        f"v_lshl_add_u32 {vWO[0]}, v151, 4, v150", "v_xor_b32 v151, 4, v151", f"v_lshl_add_u32 {vWO[1]}, v151, 4, v150",
        f"v_add_u32 {vWO[2]}, {8*3584-2048}, {vWO[0]}", f"v_add_u32 {vWO[3]}, {8*3584-2048}, {vWO[1]}",
        f"s_mul_i32 {sFB}, {sRES}, 7", f"s_add_u32 {sFB}, {sFB}, {sCG}",
        f"s_mul_i32 {sWS0}, {sW}, {16*3584}", f"s_lshl_b32 {sWC}, {sFB}, 7", f"s_add_u32 {sWS0}, {sWS0}, {sWC}", f"s_add_u32 {sWC}, {sWS0}, {64*3584}",
        "s_mov_b32 s64, s12","s_mov_b32 s65, s13","s_mov_b32 s66, 1835008","s_mov_b32 s67, 0x20000",
        "s_sub_u32 s12, s10, 1024","s_subb_u32 s13, s11, 0",f"s_mov_b32 s10, {0 if opt.nomem&2 else 1835008}",f"s_mov_b32 s14, {0 if opt.nomem&2 else 1836032}","s_mov_b32 s11, 0x20000","s_mov_b32 s15, 0x20000"]
    gf=gen_F()
    k=[i for i,x in enumerate(wo) if x.startswith("s_mov_b32 s64")][0]
    c=wo[:k]+gf[:opt.prek]+["s_waitcnt lgkmcnt(0)"]+srd_common()+wo[k:]
    dm=start_dmas()[:opt.npre]
    rest=[f"s_lshr_b32 {sOH}, {sM4K}, 1", f"s_add_u32 {sOH}, {sOH}, {C0}", f"s_lshl_b32 {sCNT}, {sFB}, 16", f"s_add_u32 {sCNT}, {sCNT}, {sM16K}", f"s_lshl_b32 {sT1}, {sRB4}, 5", f"s_add_u32 {sCNT}, {sCNT}, {sT1}"]
    c=c[:]; k0=[i for i,x in enumerate(c) if x.startswith("s_waitcnt lgkmcnt")][0]
    c=c[:k0]+rest+c[k0:]
    rest=gf[opt.prek:]+xr_addr()+(gen_H() if opt.hpre else [])
    if opt.gpre:
        gv,gsc=g_setup(); rest=rest+gv+gsc
    n1=opt.nw1*opt.sp1; n2=max(n1,len(rest)-(len(dm)-opt.nw1)*opt.sp2)
    c+=stamp("karg")+sprinkle(rest[:n2], dm[:opt.nw1], opt.sp1)+stamp("gen1")+sprinkle(rest[n2:], dm[opt.nw1:], opt.sp2)+stamp("gen")
    return c
SD="s[64:67]"
def start_dmas():
    dd=[[f"s_mov_b32 m0, {sOH}", f"s_add_u32 {sT0}, {sCNT}, {8192-1024}", f"buffer_load_dwordx4 v5, {SD}, {sCNT} offen lds ;@Wd"],
        [f"buffer_load_dwordx4 v5, {SD}, {sT0} offen offset:1024 lds ;@Wd"]]
    dm=[]
    for tok in opt.order.split("."):
        if tok[0]=="x": dm+=dma_x(XA,int(tok[1]),f"x0q{tok[1]}")
        elif tok[0]=="w": dm+=dma_w(int(tok[1]))
        elif tok=="e": dm+=[eload()]
        elif tok=="d": dm+=dd
    assert len(dm)==35
    assert all('@x0' not in it[-1] for it in dm[opt.npre:])
    for i in range(4,8): dm+=dma_w(i)
    return dm
def g_setup():
    c=["v_lshrrev_b32 v60, 4, v0","v_bfe_u32 v61, v0, 2, 2","v_and_b32 v62, 3, v0","v_bfe_u32 v63, v0, 3, 2", f"s_lshl_b32 {sT1}, {sP}, 1",
       "v_lshlrev_b32 v62, 3, v62", f"v_xor_b32 v63, {sT1}, v63", "v_lshl_add_u32 v62, v61, 7, v62",
       f"v_lshl_add_u32 {vWT[3]}, v60, 10, v62", "v_lshrrev_b32 v60, 5, v0", f"v_lshl_add_u32 {vWT[3]}, v63, 5, {vWT[3]}", "v_bfe_u32 v61, v0, 4, 1",
       f"v_add_u32 {vWT[0]}, {XB}, {vWT[3]}", "v_lshl_add_u32 v62, v60, 9, v62", "v_bfe_u32 v63, v0, 3, 1", f"v_xor_b32 {vWT[1]}, 32, {vWT[0]}",
       "v_lshl_add_u32 v62, v61, 5, v62", "v_lshl_add_u32 v62, v63, 6, v62",
       f"v_add_u32 {vWT[2]}, {sOH}, v62", f"v_xor_b32 {vWT[3]}, 64, {vWT[2]}",
       f"s_lshl_b32 {sLD}, {sRB4}, 1", f"s_and_b32 {sLD}, {sLD}, 24", f"s_add_u32 {sLD}, {sLD}, {sW}", f"s_mul_i32 {sLD}, {sLD}, 28", f"s_add_u32 {sLD}, {sLD}, {sFB}", f"s_lshl_b32 {sLD}, {sLD}, 1",
       f"s_lshr_b32 {sT1}, {sRB4}, 4", f"s_add_u32 {sLD}, {sLD}, {sT1}", f"s_lshl_b32 {sLD}, {sLD}, 10", f"s_add_u32 {sLD}, {sLD}, {WS_D}", f"s_add_u32 {sHS}, {sLD}, {4*57344}"]
    k=[i for i,x in enumerate(c) if x.startswith(f's_lshl_b32 {sLD}')][0]
    return c[:k], c[k:]
def g_scalars():
    c=[f"s_mov_b32 {sRR[0]}, {sRES}"]
    for r in range(1,4): c+=[f"s_add_u32 {sRR[r]}, {sRES}, {r}", f"s_and_b32 {sRR[r]}, {sRR[r]}, 3"]
    c+=[f"s_lshl_b32 {sX0}, {sW}, 9", f"s_add_u32 {sX0}, {sX0}, {sRB4}", f"s_lshl_b32 {sX0}, {sX0}, 10",
        f"s_lshl_b32 {sH0}, {sRB4}, 1", f"s_add_u32 {sH0}, {sH0}, {sP}", f"s_mul_i32 {sH0}, {sH0}, 56", f"s_add_u32 {sH0}, {sH0}, {sFB}",
        f"s_lshl_b32 {sH0}, {sH0}, 1", f"s_add_u32 {sH0}, {sH0}, {sQ}", f"s_lshl_b32 {sH0}, {sH0}, 10", f"s_add_u32 {sH0}, {sH0}, {WS_H}",
        f"s_lshl_b32 {sFH0}, {sRB4}, 1", f"s_add_u32 {sFH0}, {sFH0}, {sP}", f"s_mul_i32 {sFH0}, {sFH0}, 28", f"s_add_u32 {sFH0}, {sFH0}, {sFB}",
        f"s_lshl_b32 {sFH0}, {sFH0}, 1", f"s_add_u32 {sFH0}, {sFH0}, {sQ}", f"s_lshl_b32 {sFH0}, {sFH0}, 7", f"s_add_u32 {sFH0}, {sFH0}, {WS_FH}",
        f"s_mov_b32 {sGC1}, {f2u(-2*math.sqrt(2/math.pi)*math.log2(math.e)*0.044715)}"]
    return c
def pa_setup(t="v31"):
    return [[f"v_min_u32 {t}, 13, {vL}"],[f"v_lshl_add_u32 {vPA}, {t}, 7, {sFC}"],[f"v_lshrrev_b32 {t}, 4, {vL}"],[f"v_lshl_add_u32 {vPA}, {t}, 28, {vPA}"],
            [f"v_and_b32 {t}, 7, {vL}"],[f"s_lshr_b32 {sT1}, {sCG}, 1", f"s_lshl_b32 {sT1}, {sT1}, 2", f"s_add_u32 {sT1}, {sT1}, {sW}", f"s_lshl_b32 {sPO}, {sT1}, 7"],
            [f"s_add_u32 {sT1}, {sPO}, {WS_FD}", f"v_lshl_add_u32 {vPA2}, {t}, 12, {sT1}"],
            [f"v_bfe_u32 {t}, {vL}, 3, 1"],[f"v_lshl_add_u32 {vPA2}, {t}, 11, {vPA2}"],[f"v_lshrrev_b32 {t}, 4, {vL}"],[f"v_lshl_add_u32 {vPA2}, {t}, 28, {vPA2}"]]
sPO="s63"
def pa_P(t): return [f"s_lshl_b32 {sT1}, {sW}, 10", f"s_add_u32 {sT1}, {sT1}, {WS_FP}", f"v_lshl_add_u32 {vPA2}, {vL}, 7, {sT1}", f"v_lshrrev_b32 {t}, 3, {vL}", f"v_lshl_add_u32 {vPA2}, {t}, 28, {vPA2}"]
def hpoll(i): return [f"s_mul_i32 {sPO}, {sCC[i]}, {14*128}", f"s_add_u32 {sPO}, {sPO}, {i*112*128}"]+poll_issue(f"ph{i}",vPA,sPO)
def hcheck(i): return poll_check(f"ph{i}",vPA,sPO,mask=0xffff)
def hflag(r): return [f"s_add_u32 {sFA}, {sFH0}, {r*112*128}", f"WAITVM h{r}", flag_store(sFA)]

def wfrag(tau,ks): return 128*tau+4*ks
def xread(ks, tag="r"): return f"ds_read_b128 {vr(XR+4*(ks%8),4)}, {vXR[ks%8]} offset:{(ks//8)*16384} ;@{tag}"
def g1_mf(rnd,ks):
    s=ACC+32*((rnd+1)%2); x=vr(XR+4*(ks%8),4) if rnd else vr(128+4*ks,4)
    return [MF32(vr(s+16*t,16), ar(wfrag(t,ks),4), x, vr(s+16*t,16) if ks else "0") for t in range(2)]
def xr_flip(): return [f"v_xor_b32 {r}, {XB}, {r}" for r in vXR]
def h_stores(rnd):
    return [[f"s_mul_i32 {sHS}, {sRR[rnd]}, 229376", f"s_add_u32 {sHS}, {sHS}, {sH0}", f"s_add_u32 {sHS2}, {sHS}, 57344"]]+\
           [[f"buffer_store_dwordx4 {vr(HP[rnd%2]+4*t,4)}, {vL16}, {SWS}, {sHS if t==0 else sHS2} offen sc1 ;@h{rnd}"] for t in range(2)]
def epilogue(rnd):
    s=ACC+32*((rnd+1)%2); c=[]
    for t in range(2):
        for hh in range(2):
            g=[s+16*t+4*hh+i for i in range(4)]; u=[x+8 for x in g]
            A=ET+8*((2*t+hh)%2); Bq=A+4
            for i in range(4): c+=[f"v_mul_f32 v{A+i}, v{g[i]}, v{g[i]}"]
            for i in range(4): c+=[f"v_fma_f32 v{A+i}, v{A+i}, {sGC1}, {vGC0}"]
            for i in range(4): c+=[f"v_mul_f32 v{A+i}, v{A+i}, v{g[i]}"]
            for i in range(4): c+=[f"v_exp_f32 v{A+i}, v{A+i}", f"v_mul_f32 v{Bq+i}, v{g[i]}, v{u[i]}"]
            for i in range(4): c+=[f"v_add_f32 v{A+i}, 1.0, v{A+i}"]
            for i in range(4): c+=[f"v_rcp_f32 v{A+i}, v{A+i}"]
            for i in range(4): c+=[f"v_mul_f32 v{Bq+i}, v{Bq+i}, v{A+i}"]
            c+=[f"v_cvt_pk_bf16_f32 v{HP[rnd%2]+4*t+2*hh}, v{Bq}, v{Bq+1}", f"v_cvt_pk_bf16_f32 v{HP[rnd%2]+4*t+2*hh+1}, v{Bq+2}, v{Bq+3}"]
    return c

def aslot(n): return ar(128*(n%2)+4*(n//2),4)
def vslot(n): return vr(160+4*n,4)
HOME={}
def _homes():
    D=[(i,n) for i in range(4) for n in range(14)]
    for k,(i,n) in enumerate(D): HOME[('D',i,n)]=vslot(k) if k<24 else aslot(k-24)
    for n in range(14):
        HOME[('H',0,n)]=aslot(32+n); HOME[('H',1,n)]=aslot(46+n)
        HOME[('H',2,n)]=vslot(n)
        HOME[('H',3,n)]=vslot(14+n) if n<10 else aslot(n-10)
_homes()
sR7=[f"s{8+i}" for i in range(7)]; sLB={'D':"s15",'H':"s51"}; sLO={'D':"s37",'H':"s55"}
def rot_scalars():
    if not opt.rot7: return [f"s_mov_b32 {sR7[i]}, {2048*i}" for i in range(7)]
    c=[f"s_lshr_b32 {sR7[0]}, {sB2}, 1", f"s_and_b32 {sR7[0]}, {sR7[0]}, 6", f"s_add_u32 {sR7[0]}, {sR7[0]}, {sCG}", f"s_lshl_b32 {sR7[0]}, {sR7[0]}, 11",
       f"s_sub_u32 {sR7[1]}, {sR7[0]}, 14336", f"s_min_u32 {sR7[0]}, {sR7[0]}, {sR7[1]}"]
    for i in range(1,7): c+=[f"s_add_u32 {sR7[i]}, {sR7[i-1]}, 2048", f"s_sub_u32 {sLB['D']}, {sR7[i]}, 14336", f"s_min_u32 {sR7[i]}, {sR7[i]}, {sLB['D']}"]
    return c
def gload(kind,i,ns,lds=None):
    base=sDB if kind=='D' else sHB; B=sLB[kind]; O=sLO[kind]
    g=[]; cur=None
    for n in ns:
        pre=[]
        if cur is None: pre=[f"s_mul_i32 {B}, {sCC[i]}, 14336", f"s_add_u32 {B}, {B}, {base}"]
        if n//2!=cur: pre+=[f"s_add_u32 {O}, {B}, {sR7[n//2]}"]
        cur=n//2
        if lds:
            if n%2==0: pre=[lds(n)]+pre
            if pre: g.append(pre)
            g.append([f"buffer_load_dwordx4 {vL16}, {SWS}, {O} offen offset:{(n%2)*1024} sc1 lds ;@pf"])
            continue
        if pre: g.append(pre)
        g.append([f"buffer_load_dwordx4 {HOME[(kind,i,n)]}, {vL16}, {SWS}, {O} offen offset:{(n%2)*1024} sc1 ;@{kind}{i}_{n}"])
    return g

def fuse(items):
    o=[]; cur=[]
    for it in items:
        cur+=it
        l=it[-1]; l=l if isinstance(l,str) else l.text
        if l.startswith("buffer"): o.append(cur); cur=[]
    if cur: o.append(cur)
    return o
def round0():
    xf=lambda ks: vr(128+4*ks,4)
    def trw(i):
        return [f"ds_read_b64_tr_b16 {ar(wfrag(t,4*i+ks)+2*u,2)}, {vWT[t]} offset:{(i%4)*16384+ks*4096+u*512} ;@t{i}" for ks in range(4) for t in range(2) for u in range(2)]
    xr=[f"ds_read_b128 {xf(ks)}, {vXR[ks%8]} offset:{(ks//8)*16384} ;@x" for ks in range(32)]
    E=lambda items,lo,hi,prio=3: Stream(items,lo,hi,eager=True,prio=prio)
    ch=lambda n: [m+f" ;need t{n}" for ks in range(4*n,4*n+4) for m in g1_mf(0,ks)]
    hr=h_reads(); no=nonce(); sd=start_dmas()
    if opt.xsplit:
        c=["WAITVM x0q0,x0q1","WAITLG all","s_barrier"]+stamp("x0")+xr[:6]
        pre={8:["WAITVM x0q2,x0q3","s_barrier"],20:["WAITLG x,hw","s_barrier"]+stamp("s1")}; bXA=20
        st=[E(one(xr[6:16]),0,7),E(one(xr[16:]),8,17)]
    else:
        c=["WAITVM x0q0,x0q1,x0q2,x0q3","WAITLG all","s_barrier"]+stamp("x0")+xr[:6]
        pre={17:["WAITLG x,hw","s_barrier"]+stamp("s1")}; bXA=17
        st=[E(one(xr[6:]),0,14)]
    def grp(L):
        out=[]; cur=[]
        for x in L:
            cur.append(x)
            if not (x.startswith("s_") and sT1 in x.split(",")[0]): out.append(cur); cur=[]
        return out
    gv,gsc=g_setup()
    if opt.gpre: gv=[]; gsc=[]
    st+=[E(([] if opt.hpre else grp(gen_H(48)))+grp(gv),0,15,1), E(grp(gsc),4,opt.dsg+2,1), E(p0_addr()+no[8:],8,27,0), E(one(hr[2:]),28,32)]
    dr=["WAITVM Wd"]+[f"ds_read_b64_tr_b16 {ar(248+4*i+2*u,2)}, {vWT[2+i]} offset:{u*1024} ;@dr" for i in range(2) for u in range(2)]
    ds=[f"buffer_store_dwordx4 a[248:251], {vL16}, {SWS}, {sLD} offen sc1 ;@Dst", f"buffer_store_dwordx4 a[252:255], {vL16}, {SWS}, {sHS} offen sc1 ;@Dst"]
    st+=[E([dr],opt.dsg,opt.dsg+1,4), Stream(one(ds),opt.dsg+3,opt.dsg+7,prio=4,pace=3)]
    D=Stream(sd[opt.npre:35]+[bXA]+sd[35:],opt.p0d,32,prio=2,pace=opt.pace0/10); D.carry=True; st.append(D)
    c+=schedule(p0_mf(xf),st,pre,report=rep)+stamp("s3")
    dm=fuse(D.items[D.pos:])
    def take(n):
        o=dm[:n]; del dm[:n]; return flat(o)
    k=[int(x) for x in opt.nth]
    rs=r_store(); rs[0]=rs[0][1:]
    hm=h_mf(); gs=g_scalars()
    c+=gs[:7]+take(k[0])+t_pack()+hm[:2]+take(k[1])+["WAITLG tw","s_barrier"]+hr[:2]+flat(no[:8])+take(k[2])+hm[2:]+xr_flip()+gs[7:10]+take(k[3])+r_pack()+r_back()+flat(flag_R_addr(sFHS))+take(k[4])
    late=opt.rsg>=0
    if not late: c+=flat(rs)
    c+=stamp("s4")+[f"s_add_u32 {sLD}, {sFHS}, {WS_FD-WS_FR}","WAITVM W0,W1,Dst","s_barrier"]+trw(0)+[flag_store(sLD)]+take(k[5])
    mf=[m for n in range(8) for m in ch(n)]
    b23,b45,b67,bx=7,23,39,55
    pre={0:stamp("s5"), b23:["WAITLG t1","WAITVM W2,W3","s_barrier"], b45:["WAITLG t3","WAITVM W4,W5","s_barrier"]+stamp("s6"),
         b67:["WAITLG t5","WAITVM W6,W7","s_barrier"]+stamp("s8"), bx:["WAITLG t7","WAITVM x1q0","s_barrier"]+stamp("s10")}
    st=[E(one(trw(1)),0,4)]
    for n,b in ((2,b23),(4,b45),(6,b67)): st+=[E(one(trw(n)),b,b+5), Stream(one(trw(n+1)),b+5,b+13,prio=3)]
    st+=[E(one([f"v_xor_b32 {vWT[t]}, {XB}, {vWT[t]}" for t in range(2)]),b23+13,b23+15,1), E(one([xread(k_) for k_ in range(4)]),bx+1,bx+5)]
    st.append(Stream(one(cons_scalars())+pa_setup(),8,58)); st.append(Stream(one(gs[10:]),8,60))
    if opt.fbar<8:
        fb=(b23,b45,b67,bx)[opt.fbar]
        pre[fb]=["WAITVM Rst"]+pre[fb]; st.append(E([[flag_store(sFHS)]],fb,fb+1,4))
    if late: st.append(Stream(rs,opt.rsg,opt.rsg+10,prio=4,pace=2))
    dm=dm+[set_xs(1),b23]+dma_x(XB,0,"x1q0")+dma_x(XB,1,"x1q1")+[b45]+dma_x(XB,2,"x1q2")+dma_x(XB,3,"x1q3")
    dm+=[set_xs(2),max(b67,opt.x2g)]+dma_x(XA,0,"x2")+dma_x(XA,1,"x2")+[bx]+dma_x(XA,2,"x2")+dma_x(XA,3,"x2")
    D=Stream(dm,0,64,prio=2,pace=opt.pace0/10); D.carry=True
    D.deadlines({"W2":b23-1,"W3":b23-1,"W4":b45-1,"W5":b45-1,"W6":b67-1,"W7":b67-1,"x1q0":bx-1,"x1q1":64,"x1q2":64,"x1q3":64},0); st.append(D)
    c+=schedule(mf,st,pre,report=rep)
    if opt.fmode==1: c+=[f"s_mov_b32 {sFH0}, 0x40000000"]
    if opt.fmode==2: c+=[f"s_cmp_eq_u32 {sW}, 0", f"s_cselect_b32 {sFH0}, {sFH0}, 0x40000000"]
    c+=[f"v_mov_b32 {vGC0}, {f2u(-2*math.sqrt(2/math.pi)*math.log2(math.e))}"]
    return c,D.items[D.pos:]

def dloads(a,b):
    o=[]
    for i in range(4):
        ns=[k-14*i for k in range(a,b) if 14*i<=k<14*i+14]
        if ns: o+=gload('D',i,ns)
    return o
def rounds(left):
    mf=[]; pre={}; st=[]
    for r in (1,2,3):
        o=64*(r-1)
        mf+=[m for ks in range(32) for m in g1_mf(r,ks)]
        for k4 in range(8):
            g0=o+8*k4
            if k4<7: st.append(Stream(one([xread(k) for k in range(4*k4+4,4*k4+8)]),g0,g0+4,prio=3))
            elif r<3:
                pre[g0]=["WAITLG r",f"WAITVM x{r+1}","s_barrier"]
                st.append(Stream(one(xr_flip()[:4]),o+46,o+55,prio=2))
                st.append(Stream(one([xread(k) for k in range(4)]),g0,g0+4,prio=3))
                st.append(Stream(one(xr_flip()[4:]),o+56,o+64,prio=2))
        st.append(Stream(one(epilogue(r-1)),o+2,o+{1:opt.hb1,2:opt.hb2,3:opt.hb3}[r],eager=True))
        if r>1: pre.setdefault(o,[]).extend(stamp(f"r{r-1}"))
    pre[8]=["WAITVM x1q1"]+(["WAITVM Rst"] if opt.fbar==8 else [])+["s_barrier"]
    pre[24]=["WAITVM x1q3"]+(["WAITVM Rst"] if opt.fbar==24 else [])+["s_barrier"]
    if opt.fbar in (8,24): st.append(Stream([[flag_store(sFHS)]],opt.fbar,opt.fbar+1,prio=4))
    pre[opt.pdb]=poll_check("pd",vPA2,mask=0x7f7f)+pre[opt.pdb]
    x3=[set_xs(3)]
    for kq in range(4): x3+=dma_x(XB,kq,"x3")
    n4=opt.nd4
    def mark(items,k0):
        o=[]; k=k0
        for it in items:
            if it[-1].startswith("buffer"):
                if k>=24: o.append(128+(k-24))
                k+=1
            o.append(it)
        return o
    left=list(left)
    st.append(Stream(one(rot_scalars()),0,28,prio=2))
    a1,a2,a3,a4,a5=[int(x) for x in opt.nds.split(".")]
    h0=gload('H',0,range(opt.nh3))
    def markh(items):
        o=[]; k=32
        for it in items:
            if it[-1].startswith("buffer"): o.append(128+k); k+=1
            o.append(it)
        return o
    vm=left[:opt.pdi]+[poll_issue("pd",vPA2)]+left[opt.pdi:]+[max(28,opt.pdb)]+dloads(0,a1)+[opt.hb1]+h_stores(0)+dloads(a1,a2)+[56]+x3+mark(dloads(a2,a3),a2)
    vm+=[64+opt.hb2]+h_stores(1)+mark(dloads(a3,a4),a3)
    if opt.nh3: vm+=[hpoll(0)]+mark(dloads(a4,a5),a4)+[hcheck(0)]+markh(h0)+[128+opt.hb3]+h_stores(2)+mark(dloads(a5,n4),a5)
    else: vm+=[128+opt.hb3]+h_stores(2)+mark(dloads(a4,a5),a4)+[hpoll(0)]+mark(dloads(a5,n4),a5)
    st.append(Stream(vm,0,192,prio=1,pace=opt.pace1/10))
    for r,gp in ((0,64+opt.f0),(1,128+opt.f1)): st.append(Stream([hflag(r)],gp-1,gp,prio=4))
    return schedule(mf,st,pre,report=rep)

sFA,sFB2="s39","s29"
A2={(0,0):64,(1,0):80,(0,1):96,(1,1):112}
FI=128; UA=[32,48]; YA=[32,144]; PK=["v[8:11]","v[24:27]","v[128:131]","v[132:135]"]; PKR=[8,24,128,132]
def gslot(js,at): return 128*((2*js+at)%2)+4*((32+2*js+at)//2)
RSL=list(range(40,46))+list(range(60,64))+list(range(46,52))
def gen_Finv():
    T=64; S=72
    c=["v_and_b32 v56, 31, v0", f"s_lshl_b32 {sT2}, {sCG}, 5", f"v_add_u32 v56, {sT2}, v56", "v_cvt_f32_u32 v56, v56", f"v_mul_f32 v56, {f2u(1/512)}, v56",
       "v_lshrrev_b32 v57, 5, v0", f"s_lshl_b32 {sT2}, {sP}, 7", f"s_add_u32 {sT2}, {sT2}, {sQ}", f"v_lshl_add_u32 v57, v57, 3, {sT2}",
       "v_and_b32 v58, 1, v0", "v_cvt_f32_u32 v58, v58", "v_fma_f32 v58, v58, -2.0, 1.0", "v_min_u32 v59, 1, v57", "v_cvt_f32_u32 v59, v59",
       "v_cvt_f32_u32 v57, v57", "v_fma_f32 v58, -v59, v58, v58", "v_mul_f32 v57, v57, v56",
       f"v_mul_f32 v59, {f2u(32.0)}, v56", "v_cos_f32 v59, v59"]
    for half in range(2):
        Cc=[32,36]; Ss=[40,44]; An=48
        for s in range(2):
            for i in range(4): c+=[f"v_fmamk_f32 v{An+i}, v56, {f2u(32*s+16*half+2*i)}, v57"]
            for i in range(4): c+=[f"v_cos_f32 v{Cc[s]+i}, v{An+i}", f"v_sin_f32 v{Ss[s]+i}, v{An+i}"]
        if half==0: c+=["v_add_f32 v59, v59, v59", f"v_add_f32 v52, v{Ss[0]}, v58"]
        for s in range(4):
            cur=s%2
            if s>=2:
                for X in (Cc,Ss):
                    for i in range(4): c+=[f"v_fma_f32 v{X[cur]+i}, v59, v{X[1-cur]+i}, -v{X[cur]+i}"]
            for ct,X in enumerate((Cc,Ss)):
                kap=4*(s//2)+2*ct+s%2
                for i in range(2):
                    lo=f"v{X[cur]+2*i}"
                    if half==0 and s==0 and ct==1 and i==0: lo="v52"
                    c+=[f"v_cvt_pk_bf16_f32 v{FI+4*kap+2*half+i}, {lo}, v{X[cur]+2*i+1}"]
    return c
def tr_pattern(dst, tmp, base):
    return [f"v_lshrrev_b32 {dst}, 5, v0", f"v_lshlrev_b32 {dst}, 9, {dst}", f"v_bfe_u32 {tmp}, v0, 2, 2", f"v_lshl_add_u32 {dst}, {tmp}, 7, {dst}",
            f"v_bfe_u32 {tmp}, v0, 4, 1", f"v_lshl_add_u32 {dst}, {tmp}, 5, {dst}", f"v_and_b32 {tmp}, 3, v0", f"v_lshl_add_u32 {dst}, {tmp}, 3, {dst}",
            f"v_bfe_u32 {tmp}, v0, 3, 1", f"v_lshl_add_u32 {dst}, {tmp}, 6, {dst}", f"v_add_u32 {dst}, {base}, {dst}"]
def xr_private():
    c=["v_and_b32 v8, 31, v0", f"v_lshl_add_u32 v8, v8, 8, {sM16K}", "v_lshrrev_b32 v9, 5, v0", "v_and_b32 v10, 15, v0", "v_xor_b32 v9, v9, v10", f"v_lshl_add_u32 {vXR[0]}, v9, 4, v8"]
    return c+[f"v_xor_b32 {vXR[i]}, {32*i}, {vXR[0]}" for i in range(1,8)]
def dma_rp():
    g=[[f"s_lshl_b32 {sHS}, {sB2}, 16", f"s_add_u32 {sHS}, {sHS}, {WS_RP}", (f"s_lshl_b32 {sHS2}, {sCG}, 10" if opt.rot7 else f"s_mov_b32 {sHS2}, 0"), f"s_and_b32 {sHS2}, {sHS2}, 6144"]]
    for i in range(16):
        if i%2==0:
            g.append(([f"s_add_u32 {sHS2}, {sHS2}, 2048", f"s_and_b32 {sHS2}, {sHS2}, 6144"] if i else [])+[f"s_add_u32 {sT0}, {sHS2}, {sM16K}"]+([f"s_add_u32 {sT0}, {sT0}, 8192"] if i>=8 else []))
            g.append([f"s_mov_b32 m0, {sT0}", f"s_add_u32 {sT0}, {sT0}, {sHS}"])
        g.append([f"buffer_load_dwordx4 {vL16}, {SWS}, {sT0} offen offset:{(i%2)*1024} sc1 lds ;@RP{i//8}"])
    return g
GH={}
def gemm2():
    mf=[]; pre={}; P={}
    def addpre(i,x): pre.setdefault(i,[]).extend(x)
    use={}
    for seg in opt.seq:
        P[seg]=len(mf)
        if seg=="v":
            for jt in range(2):
                for k in range(8):
                    d=vr(UA[jt],16); mf.append(MF32(d, aslot(RSL[8*jt+k]), vr(FI+4*k,4), d if k else "0")+f" ;need u{jt}")
            for js in range(4):
                for at in range(2):
                    d=vr(YA[at],16); mf.append(MF32(d, PK[js], ar(gslot(js,at),4), d if js else "0")+" ;need gr")
            continue
        i=int(seg)
        order=[(fb,at,dt) for at in range(2) for dt in range(2) for fb in range(7)] if seg==opt.seq[-1] else [(fb,at,dt) for fb in range(7) for at in range(2) for dt in range(2)]
        for fb,at,dt in order:
            if True:
                for t in (f"D{i}_{2*fb+dt}",f"H{i}_{2*fb+at}"): use.setdefault(t,len(mf))
                d=vr(A2[dt,at],16); mf.append(MF32(d, HOME[('D',i,2*fb+dt)], HOME[('H',i,2*fb+at)], "0" if (i==0 and fb==0) else d)+f" ;need D{i}_{2*fb+dt},H{i}_{2*fb+at}")
    N=len(mf); U0=P["v"]; Y0=U0+16
    def grp(L):
        out=[]; cur=[]
        for x in L:
            cur.append(x)
            if not x.startswith("s_"): out.append(cur); cur=[]
        return out
    ep=epilogue(3)
    dre=fuse(dloads(opt.nd4,56)); h0=fuse(gload('H',0,range(opt.nh3,14)))
    k1=opt.hk1; nd=min(len(dre),opt.hn3)
    head=ep[:k1]+([] if opt.nh3 else hcheck(0))+stamp("gh0")+sprinkle(ep[k1:],h0[:opt.f2i]+([hflag(2)] if opt.f2i<99 else [])+h0[opt.f2i:opt.p1i]+[hpoll(1)]+h0[opt.p1i:],opt.hsp)+flat(h_stores(3))+(hflag(2) if opt.f2i>=99 else [])+stamp("ghd")
    GH['h']=fuse(gload('H',0,range(14)))
    c=head+["L_g2:"]
    st=[]
    gl=[[f"s_lshl_b32 {sT0}, {sB2}, 9", f"s_add_u32 {sT0}, {sT0}, {WS_G}"],[f"buffer_load_dword {vG[0]}, v11, {SWS}, {sT0} offen sc1 ;@g"],[f"buffer_load_dword {vG[1]}, v11, {SWS}, {sT0} offen offset:256 sc1 ;@g"]]
    dleft=list(range(opt.nd4+nd+opt.dfill,56))
    def gl1(kind,i,n): return flat(gload(kind,i,[n]))
    def cls(i,last):
        ns=list(range(0,14,2))+list(range(1,14,2)) if last else list(range(14))
        dn=[k-14*i for k in dleft if k//14==i]
        if not dn: return fuse(gload('H',i,ns)),[]
        return None,(ns,dn)
    def merged(i,last):
        ns=list(range(0,14,2))+list(range(1,14,2)) if last else list(range(14))
        hs=fuse(gload('H',i,ns)); dn=sorted([k-14*i for k in dleft if k//14==i],key=lambda n: use[f'D{i}_{n}'])
        ds_=fuse(gload('D',i,dn)) if dn else []
        both=[(use[f"H{i}_{n}"],1,it) for n,it in zip(ns,hs)]+[(use[f"D{i}_{n}"],0,it) for n,it in zip(dn,ds_)]
        pre_=[it for u,k,it in both if k==0][:opt.dlead]
        return pre_,[it for u,k,it in sorted(both,key=lambda t:t[:2]) if it not in pre_]
    b0=dre[:nd]+[hcheck(1)]+merged(1,False)[1]+dre[nd:nd+opt.dfill]
    b0=b0[:opt.f3i]+[opt.f3,[f"s_add_u32 {sFA}, {sFA}, {112*128}","WAITVM h3",flag_store(sFA)]]+b0[opt.f3i:]
    blocks=[b0]; polls=[]
    for seg in opt.seq[2:]:
        if seg=="v": polls.append((poll_issue("pp",vPA2),poll_check("pp",vPA2,mask=0xff)+["s_barrier"],14)); blocks.append(dma_rp()+gl)
        else:
            i=int(seg); p_,m_=merged(i,seg==opt.seq[-1]); blocks[-1]=blocks[-1]+p_
            polls.append((hpoll(i),hcheck(i),28*(i-1))); blocks.append(m_)
    vm=[]
    for n,b in enumerate(blocks):
        if n<len(polls):
            k=max(0,len(b)-opt.plead); vm+=b[:k]+[14,polls[n][0]]+b[k:]+[polls[n][2],polls[n][1]]
        else: vm+=b
    use["RP0"]=U0-4; use["RP1"]=U0+2; use["g"]=Y0
    V=Stream(vm,0,N-4,prio=2,pace=opt.pace2/10); V.deadlines(use,opt.win); st.append(V)
    setup=xr_private()+pa_P('v9')+["v_and_b32 v11, 31, v0","v_and_b32 v10, 16, v0","v_add_u32 v11, v11, v10","v_lshlrev_b32 v11, 2, v11"]+["v_lshrrev_b32 v9, 5, v0","v_bfe_u32 v10, v0, 2, 2","v_lshl_add_u32 v9, v9, 2, v10",f"v_mul_u32_u24 {vTP}, {HS}, v9","v_bfe_u32 v9, v0, 4, 1",f"v_lshl_add_u32 {vTP}, v9, 5, {vTP}",
       "v_and_b32 v9, 3, v0",f"v_lshl_add_u32 {vTP}, v9, 3, {vTP}",f"v_add_u32 {vTP}, {L_H}, {vTP}"]
    grd=[f"ds_read_b64_tr_b16 {ar(gslot(js,at)+2*u,2)}, {vTP} offset:{(16*js+8*u)*HS+64*at} ;@gr" for js in range(4) for at in range(2) for u in range(2)]
    st.append(Stream(grp(setup),0,14,eager=True,prio=1))
    st.append(Stream(one(grd),30,44))
    st.append(Stream(grp(gen_Finv()),4,54,eager=True))
    for jt in range(2):
        rd=[f"ds_read_b128 {aslot(RSL[8*jt+k])}, {vXR[k]} offset:{jt*8192} ;@u{jt}" for k in range(8)]
        lo=U0-4+8*jt-2*jt
        st.append(Stream([[f"WAITVM RP{jt}",rd[0]]]+one(rd[1:]),lo,lo+4,eager=True,prio=3))
    for jt in range(2):
        cv=[f"v_cvt_pk_bf16_f32 v{PKR[2*jt+e//4]+e%4}, v{UA[jt]+2*e}, v{UA[jt]+2*e+1}" for e in range(8)]
        lo=U0+8*jt+10-jt
        st.append(Stream(one(cv),lo,lo+2,eager=True,prio=3))
    om=[[f"s_lshl_b32 {sT2}, {sQ}, 31"]]+one([f"v_sub_f32 {vOMG[0][at]}, 1.0, {vG[at]}" for at in range(2)]+[f"v_xor_b32 {vOMG[1][at]}, {sT2}, {vOMG[0][at]}" for at in range(2)])
    st.append(Stream(om,Y0+4,Y0+8))
    sc=[f"v_mul_f32 v{YA[at]+i}, {vG[at]}, v{YA[at]+i}" for at in range(2) for i in range(16)]
    vlast=opt.seq[-1]=="v"
    st.append(Stream(one(sc),Y0+10,Y0+16,eager=True,prio=3))
    assert not vlast
    def fin(at,dt):
        o=[]
        for q in range(4):
            a=A2[dt,at]+4*q; y=YA[at]+4*q
            o+=[f"v_fma_f32 v{a+i}, v{a+i}, {vOMG[dt][at]}, v{y+i}" for i in range(4)]
            o+=[f"ds_write_b128 {vXR[4*dt+q]}, {vr(a,4)} offset:{at*8192} ;@fw{at}"]
        return o
    fa=["v_lshrrev_b32 v136, 3, v0","v_and_b32 v137, 7, v0", f"s_lshl_b32 {sT1}, {sW}, 3", f"v_add_u32 v136, {sT1}, v136", "v_lshlrev_b32 v138, 1, v137","v_xor_b32 v138, v138, v136","v_and_b32 v138, 15, v138",
        "v_lshlrev_b32 v138, 4, v138","v_lshl_add_u32 v138, v136, 8, v138", "v_xor_b32 v139, 16, v138",
        "v_lshlrev_b32 v140, 15, v136","v_and_b32 v141, 3, v0","v_lshl_add_u32 v140, v141, 4, v140","v_bfe_u32 v141, v0, 2, 1","v_lshl_add_u32 v140, v141, 9, v140",
        "v_lshlrev_b32 v141, 31, v141","v_or_b32 v141, 1.0, v141",
        f"s_lshl_b32 {sT2}, {sB2}, 10", f"s_lshl_b32 {sT3}, {sCG}, 6", f"s_add_u32 {sT2}, {sT2}, {sT3}", f"s_add_u32 {sT3}, {sT2}, {32*32768}"]
    def frd(at,b): return [f"ds_read_b128 {vr(b+8*pw+4*e,4)}, v{138+e} offset:{pw*16384+at*8192} ;@fr" for pw in range(4) for e in range(2)]
    def fsum(at,b,pkd):
        o=[]
        if pkd:
            for i in range(4): o+=[f"v_pk_add_f32 {vr(b+2*i,2)}, {vr(b+2*i,2)}, {vr(b+16+2*i,2)}", f"v_pk_add_f32 {vr(b+8+2*i,2)}, {vr(b+8+2*i,2)}, {vr(b+24+2*i,2)}"]
        else:
            for i in range(16): o+=[f"v_add_f32 v{b+i}, v{b+i}, v{b+16+i}"]
        o+=[f"v_fmac_f32 v{b+i}, v141, v{b+8+i}" for i in range(8)]
        o+=[f"v_cvt_pk_bf16_f32 v{b+8+i}, v{b+2*i}, v{b+2*i+1}" for i in range(4)]
        return o+[f"buffer_store_dwordx4 {vr(b+8,4)}, v140, {SOUT}, {sT2 if at==0 else sT3} offen {opt.outf} ;@out"]
    st.append(Stream(grp(fa[:17])+one(fa[17:]),Y0+8,N-16))
    for n,(at,dt) in enumerate(((0,0),(0,1),(1,0))):
        lo=N-28+7*n+8
        st.append(Stream(one(fin(at,dt)),lo,min(lo+8,N),eager=True,prio=3-n))
    for k,nm in ((28,"g28"),(56,"g56"),(P[opt.seq[3]],"g84"),(P[opt.seq[4]],"g108")): addpre(k,stamp(nm))
    addpre(N-2,["WAITLG fw0","s_barrier"])
    c+=schedule(mf,st,pre,report=rep)
    c+=stamp("gend")
    f0=fsum(0,64,True); f11=fin(1,1)
    c+=frd(0,64)+f11+f0+["WAITLG fw1","s_barrier"]+stamp("red")+frd(1,32)+fsum(1,32,True)
    return c

MS=list(range(20,32))+list(range(60,64)); XS=list(range(20))+list(range(32,44))
def areg(n): return 128*(n%2)+4*(n//2)
def csv(i): return f'a{areg(32+i//4)+i%4}'
CP1,CQ,CR1,CU,CP2,CR2=[128+16*i for i in range(6)]
CX=224
ZP=96; DD=32; RAW=192
def pk(op,d,a,b,cc=None,nega=False,negb=False):
    s=f"v_pk_{op}_f32 {vr(d,2)}, {vr(a,2)}, {vr(b,2)}"+(f", {vr(cc,2)}" if cc is not None else "")
    n=3 if cc is not None else 2
    if nega or negb:
        m="["+",".join(["1" if nega else "0","1" if negb else "0","0"][:n])+"]"
        s+=f" neg_lo:{m} neg_hi:{m}"
    return s
def p2_wloads():
    sST,sBH,sCU="s16","s17","s18"
    su=[f"s_cmp_eq_u32 {sP}, 0", "s_cselect_b32 s8, s32, s36", "s_cselect_b32 s9, s33, s37", "s_mov_b32 s10, 1052672", "s_mov_b32 s11, 0x20000",
        f"s_sub_i32 {sCU}, 1984, {sB}", f"s_sub_i32 {sBH}, {1984-1024}, {sOH}", f"s_add_i32 {sT1}, {sOH}, 1024",
        f"s_cmp_eq_u32 {sQ}, 0", f"s_cselect_b32 {sCU}, {sB}, {sCU}", f"s_cselect_b32 {sBH}, {sT1}, {sBH}", f"s_cselect_b32 {sST}, 1, -1",
        f"s_mul_i32 {sCU}, {sCU}, 514", f"s_mul_i32 {sBH}, {sBH}, 514", f"s_add_u32 {sCU}, {sCU}, 2", f"s_and_b32 {sCU}, {sCU}, -4", f"s_add_u32 {sBH}, {sBH}, 2", f"s_and_b32 {sBH}, {sBH}, -4", f"s_mul_i32 {sST}, {sST}, 65792",
        "v_lshrrev_b32 v153, 5, v0", f"v_or_b32 v20, {sB}, v153", "v_min_u32 v20, 1, v20", "v_xor_b32 v20, 1, v20",
        f"v_xor_b32 v153, {sQ}, v153", "v_mul_u32_u24 v153, 32896, v153", "v_and_b32 v152, 31, v0", "v_lshl_add_u32 v152, v152, 4, v153",
        f"s_mul_i32 {sT1}, {sQ}, {1024*514}", f"v_mul_lo_u32 v153, v20, {sT1}", f"v_add_u32 v154, {sCU}, v152", "v_sub_u32 v154, v154, v153"]
    g=[[f"s_add_u32 m0, {sM16K}, {XB}", "s_nop 0", f"buffer_load_dwordx4 v154, {SWG}, 0 offen lds ;@wf"]]
    for i in range(1,16):
        g.append([f"s_add_u32 m0, {sM16K}, {XB+i*1024}", f"s_add_u32 {sCU}, {sCU}, {sST}" if i!=8 else f"s_mov_b32 {sCU}, {sBH}", f"buffer_load_dwordx4 v152, {SWG}, {sCU} offen lds ;@wf"])
    g.append(["v_and_b32 v154, 31, v0", "v_lshrrev_b32 v155, 4, v154", f"s_sub_i32 {sT1}, {sOH}, {sB}", f"v_mul_i32_i24 v155, {sT1}, v155", "v_lshl_add_u32 v154, v154, 6, v155",
              f"v_add_u32 v157, {sB}, v154", "v_sub_u32 v155, 2048, v157", "v_lshrrev_b32 v21, 11, v155", "v_lshrrev_b32 v155, v21, v155",
              "v_sub_u32 v155, v155, v157", "v_lshrrev_b32 v154, 5, v0", "v_mul_i32_i24 v155, v155, v154", "v_add_u32 v155, v155, v157",
              "v_mul_u32_u24 v155, 514, v155", f"s_lshl_b32 {sT1}, {sQ}, 9", f"buffer_load_ushort v8, v155, {SWG}, {sT1} offen ;@wf"])
    return su,g
def p2_consts():
    Cc,Ss,O=132,136,140
    c=[f"s_cmp_eq_u32 {sB}, 0", f"s_cselect_b32 {sHS2}, 1.0, 0",
       "v_and_b32 v128, 31, v0", "v_lshrrev_b32 v129, 4, v128", f"s_sub_i32 {sHS}, {sOH}, {sB}", f"v_mul_i32_i24 v130, {sHS}, v129", "v_lshl_add_u32 v130, v128, 6, v130",
       f"v_add_u32 v130, {sB}, v130",
       "v_cmp_eq_u32 vcc, 0, v130", "v_cvt_f32_u32 v130, v130", f"v_mul_f32 v130, {f2u(1/2048)}, v130",
       "v_cvt_f32_u32 v129, v129", f"v_mul_f32 v149, {sHS2}, v129", "v_sub_f32 v148, 1.0, v149", f"v_sub_f32 v150, 1.0, {sHS2}",
       "v_cndmask_b32 v151, 0, 1.0, vcc",
       "v_lshrrev_b32 v131, 5, v0", f"s_lshl_b32 {sHS}, {sW}, 3", f"v_lshl_add_u32 v129, v131, 1, {sHS}", "v_cvt_f32_u32 v129, v129", "v_mul_f32 v129, v129, v130",
       ]
    def blocks(fwd):
        o=[]; O=164 if fwd else 172
        for j in range(4):
            C,S=f"v{Cc+j}",f"v{Ss+j}"
            o+=[f"v_mul_f32 v160, v148, {C}", f"v_mul_f32 v161, v149, {C}", f"v_mul_f32 v162, v148, {S}", f"v_mul_f32 v163, v150, {C}",
                f"v_fma_f32 v161, -{S}, v150, v161", f"v_fmac_f32 v163, v149, {S}"]
            if fwd: o+=[f"v_cvt_pk_bf16_f32 v{O+j}, v160, v161", f"v_cvt_pk_bf16_f32 v{O+4+j}, v162, v163"]
            else:   o+=[f"v_cvt_pk_bf16_f32 v{O+j}, v160, v162", f"v_cvt_pk_bf16_f32 v{O+4+j}, v161, v163"]
        return o
    for j in range(4): c+=[f"v_fmamk_f32 v{Ss+j}, v130, {f2u(4*(j//2)+j%2)}, v129"]
    for j in range(4): c+=[f"v_cos_f32 v{Cc+j}, v{Ss+j}", f"v_sin_f32 v{Ss+j}, v{Ss+j}"]
    for j in range(4): c+=[f"v_add_f32 v{Ss+j}, v{Ss+j}, v151" if j%2==0 else f"v_sub_f32 v{Ss+j}, v{Ss+j}, v151"]
    c+=blocks(True)
    c+=[f"s_cmp_ge_u32 {sW}, 2", f"s_cselect_b32 {sHS}, {sOH}, {sB}", f"s_cselect_b32 {sLD}, {sHS2}, 0", f"v_mov_b32 v149, {sLD}",
        f"s_lshl_b32 {sLD}, {sW}, 9", f"s_add_i32 {sHS}, {sHS}, {sLD}", f"v_lshl_add_u32 v129, v131, 8, {sHS}",
        "v_cmp_eq_u32 vcc, 0, v129", "v_cvt_f32_u32 v129, v129", "v_cvt_f32_u32 v130, v128", f"v_mul_f32 v130, {f2u(1/2048)}, v130", "v_mul_f32 v129, v129, v130",
        "v_and_b32 v151, 1, v0", "v_cvt_f32_u32 v151, v151", "v_fma_f32 v151, v151, -2.0, 1.0", "v_cndmask_b32 v151, 0, v151, vcc",
        "v_sub_f32 v148, 1.0, v149"]+[f"v_mul_f32 v{r}, {f2u(2.0**-19)}, v{r}" for r in (148,149,150)]
    for j in range(4): c+=[f"v_fmamk_f32 v{Ss+j}, v130, {f2u(64*j)}, v129"]
    for j in range(4): c+=[f"v_cos_f32 v{Cc+j}, v{Ss+j}", f"v_sin_f32 v{Ss+j}, v{Ss+j}"]
    c+=[f"v_add_f32 v{Ss}, v{Ss}, v151"]
    c+=blocks(False)
    return c
def p2_raw(gam):
    return [f"ds_read_u16_d16_hi v{RAW+16*arr+rho}, v122 offset:{arr*16384+(8*(rho//4)+rho%4)*512+2*gam} ;@raw" for r2 in range(8) for arr in range(4) for rho in (2*r2,2*r2+1)]
def p2_coefs(gam):
    X=104; c=[]
    for r2 in range(8):
        rt,rm,it,im=[RAW+16*a+2*r2 for a in range(4)]
        c+=[pk("add",CP1+2*r2,rt,rm), pk("add",CU+2*r2,rt,rm,negb=True), pk("add",CQ+2*r2,it,im), pk("add",CR1+2*r2,it,im,negb=True)]
        if r2==0:
            c+=[f"v_fma_f32 v{CP1}, v121, v{rm}, v{rt}", f"v_fma_f32 v{CQ}, v121, v{im}, v{it}", f"v_mul_f32 v{CR1}, v121, v{CR1}", f"v_mul_f32 v{CU}, v121, v{CU}",
                f"v_fma_f32 v{X}, v121, v{rt}, v{rm}", f"v_mov_b32 v{X+1}, v{CP1+1}", f"v_fma_f32 v{X+2}, v121, v{it}, v{im}", f"v_mov_b32 v{X+3}, v{CQ+1}"]
    if gam==1:
        return c, [f"v_accvgpr_write_b32 {csv(i)}, v{128+i}" for i in range(64)]+[f"v_accvgpr_write_b32 {csv(64+i)}, v{X+i}" for i in range(4)]
    mv=lambda d,s_: f"v_mov_b64 {vr(d,2)}, {vr(s_,2)}"
    c+=[mv(CX,X),mv(CX+2,X+2),mv(CX+4,X)]+[mv(CP2+2*i,CP1+2*i) for i in range(8)]+[mv(CR2+2*i,CR1+2*i) for i in range(8)]
    lab[0]+=1; n=lab[0]
    c+=[f"s_cmp_lg_u32 {sW}, 0", f"s_cbranch_scc1 L_nr{n}"]
    NY=L_NY; NR=L_NR
    s=["v_and_b32 v100, 31, v0","v_lshlrev_b32 v100, 2, v100", f"v_add_u32 v101, {NR}, v100", f"v_add_u32 v100, {NY}, v100"]
    s+=[f"ds_read2_b32 {vr(108+2*w_,2)}, v101 offset0:{64*w_} offset1:{64*w_+32}" for w_ in range(4)]
    s+=["v_cvt_f32_u32 v96, v21","v_sub_f32 v96, 1.0, v96","s_waitcnt lgkmcnt(0)"]
    for o,(re_,im_) in enumerate(((110,114),(108,112))):
        s+=[f"v_fma_f32 v97, v96, v{re_+1}, v{re_}", f"v_fma_f32 v98, v96, v{re_}, v{re_+1}", f"v_sub_f32 v99, v{im_}, v{im_+1}", "v_mul_f32 v99, v96, v99",
            f"ds_write_b32 v100, v97 offset:{384*o}", f"ds_write_b32 v100, v99 offset:{384*o+128}", f"ds_write_b32 v100, v98 offset:{384*o+256}"]
    s+=["v_lshrrev_b32 v100, 5, v0","v_lshlrev_b32 v100, 4, v100",f"v_add_u32 v100, {NY}, v100","s_mov_b32 exec_lo, 1","s_mov_b32 exec_hi, 1"]
    for o,(P,R,Xx) in enumerate(((CP2,CR2,CX+4),(CP1,CR1,CX))):
        for q in range(4): s+=[f"ds_read_b128 {vr(P+4*q,4)}, v100 offset:{384*o+32*q}", f"ds_read_b128 {vr(R+4*q,4)}, v100 offset:{384*o+128+32*q}"]
        s+=[f"ds_read_b64 {vr(Xx,2)}, v100 offset:{384*o+256}"]
    s+=[f"v_mov_b64 {vr(x+2*i,2)}, 0" for x in (CQ,CU) for i in range(8)]+[f"v_mov_b64 {vr(CX+2,2)}, 0"]
    s+=["s_waitcnt lgkmcnt(0)","s_mov_b64 exec, -1", f"L_nr{n}:"]
    return c+s
def p2_ny():
    return [f"s_lshl_b32 {sT1}, {sW}, 8", f"s_add_u32 {sT1}, {sT1}, {L_H+64*HS}", f"v_lshl_add_u32 v100, v0, 2, {sT1}", "v_lshlrev_b32 v8, 16, v8", "v_mul_f32 v8, 0.5, v8", "ds_write_b32 v100, v8 ;@ny"]
def p2_fwd(gam, streams):
    rd=[f"ds_read_b64_tr_b16 {vr(ZP+(ks*2+ct)*4+2*u,2)}, {vWT[2+ct]} offset:{gam*8192+ks*2048+u*1024} ;@b{ks}" for ks in range(4) for ct in range(2) for u in range(2)]
    mf=[]; pre={}
    for ks in range(4):
        pre[4*ks]=[f"WAITLG b{ks}"]
        for ab in range(2):
            for ct in range(2):
                d=vr(DD+32*ab+16*ct,16)
                mf.append(MF32(d, aslot(MS[ks*4+ab]), vr(ZP+(ks*2+ct)*4,4), d if ks else "0"))
    return rd, schedule(mf,streams,pre)
def p2_point(gam):
    c=[]; T=232
    for r2 in range(8):
        r=2*r2
        ac,as_,bc,bs=[DD+16*i+r for i in range(4)]
        p1,q,r1,u=[x+r for x in (CP1,CQ,CR1,CU)]
        p2,r2_=(CP2+r,CR2+r) if gam==0 else (p1,r1)
        p1b,qb,p2b=(CX,CX+2,CX+4 if gam==0 else CX) if r2==0 else (p1,q,p2)
        o=[T+8*(r2%2)+2*i for i in range(4)]
        c+=[pk("mul",o[0],ac,p1), pk("mul",o[1],as_,p2), pk("mul",o[2],bc,p1b), pk("mul",o[3],bs,p2b),
            pk("fma",o[0],as_,q,o[0]), pk("fma",o[1],ac,q,o[1],nega=True), pk("fma",o[2],bs,qb,o[2]), pk("fma",o[3],bc,qb,o[3],nega=True),
            pk("fma",o[0],bc,r1,o[0]), pk("fma",o[1],bs,r2_,o[1]), pk("fma",o[2],ac,r1,o[2],nega=True), pk("fma",o[3],as_,r2_,o[3],nega=True),
            pk("fma",o[0],bs,u,o[0],nega=True), pk("fma",o[1],bc,u,o[1]), pk("fma",o[2],as_,u,o[2]), pk("fma",o[3],ac,u,o[3],nega=True)]
        for ct in range(2):
            for e in range(2): c+=[f"v_cvt_pk_bf16_f32 v{ZP+16*ct+r+e}, v{o[ct]+e}, v{o[2+ct]+e}"]
    return c
def p2_inv(gam, streams):
    mf=[]; st=list(streams); tiles=[(tau,ct) for tau in range(2) for ct in range(2)]
    def pack(tau,ct):
        o=[]
        for sg in range(2):
            s=DD+32*tau+16*ct+8*sg; t=248+4*sg
            o+=[f"v_cvt_pk_bf16_f32 v{t+i}, v{s+2*i}, v{s+2*i+1}" for i in range(4)]
            o+=[f"ds_write_b128 {vXR[2*ct+sg]}, {vr(t,4)} offset:{gam*8192+tau*4096} ;@ow"]
        return o
    for n,(tau,ct) in enumerate(tiles):
        d=vr(DD+32*tau+16*ct,16); k=0
        for ks in range(4):
            mf.append(MF32(d, vr(ZP+16*ct+4*ks,4), aslot(MS[ks*4+2+tau]), d if ks else "0"))
        if n<3: st.append(Stream(one(pack(tau,ct)),4*n+5,min(4*n+9,16),eager=True,prio=2))
    return schedule(mf,st),pack(1,1)
def p2_out(gam, base):
    rd=[f"ds_read_b128 {vr(base+4*i,4)}, {vXR[4+i//4]} offset:{gam*8192+i*1024} ;@or" for i in range(8)]
    stn=[[f"s_add_u32 {sT0}, s39, {gam*16384+(i%4)*524288+(i//4)*256}", f"buffer_store_dwordx4 {vr(base+4*i,4)}, {vXR[6]}, {SWS}, {sT0} offen sc1 ;@P{gam}"] for i in range(8)]
    return rd,stn
def p2():
    c=["L_p2:"]
    wo=["s_mov_b32 s34, 1052672","s_mov_b32 s35, 0x20000","s_mov_b32 s38, 1052672","s_mov_b32 s39, 0x20000", f"s_cmp_eq_u32 {sB}, 0", f"s_cselect_b32 {sOH}, -992, {sB}"]
    gf=gen_F()
    c+=gf[:opt.prek]+["s_waitcnt lgkmcnt(0)","s_mov_b32 s32, s6","s_mov_b32 s33, s7"]+srd_common()+wo
    dm=[]
    for kq in range(4): dm+=dma_x(XA,kq,f"x0q{kq}")
    su,wl=p2_wloads()
    gw=["s_mov_b32 s12, s14","s_mov_b32 s13, s15","s_mov_b32 s14, 1024","s_mov_b32 s15, 0x20000",
        f"v_add_u32 v156, {sXQ[0]}, {vL16}", "v_and_b32 v156, 1023, v156", f"s_mov_b32 m0, {L_GW}", "s_nop 0", f"buffer_load_dwordx4 v156, {SWU}, 0 offen lds ;@x0q3"]
    dm=dm[:4]+wl[:opt.q_e]+dm[4:12]+[eload(),gw]+dm[12:]+wl[opt.q_e:opt.q_npre]
    rest=su+gf[opt.prek:]+xr_addr()+gen_H()
    c+=sprinkle(rest, dm, opt.q_sp)+stamp("gen")
    xf=lambda ks: aslot(XS[ks])
    xr=[f"ds_read_b128 {xf(ks)}, {vXR[ks%8]} offset:{(ks//8)*16384} ;@x" for ks in range(32)]
    c+=["WAITVM x0q3","WAITLG all","s_barrier"]+stamp("x0")+xr[:6]
    def grp(L):
        out=[]
        for x in L:
            if x.startswith("s_cselect") and out: out[-1].append(x)
            else: out.append([x])
        return out
    hr=h_reads(); hm=h_mf(); co=grp(p2_consts())
    GS=[49,50,51,52,54,56,58]+list(range(11,20))
    ga=["v_lshrrev_b32 v22, 4, v0", "v_and_b32 v180, 15, v0", "v_xor_b32 v23, v22, v180", "v_lshlrev_b32 v23, 4, v23", "v_lshl_add_u32 v23, v180, 8, v23", f"v_add_u32 v180, {sM4K}, v23",
        "v_lshlrev_b32 v22, 4, v22", f"v_add_u32 v22, {L_GW}, v22"]+[f"v_xor_b32 v{180+i}, {64*i}, v180" for i in range(1,4)]
    gx=[f"ds_read_b128 {aslot(GS[ks])}, v{180+ks%4} offset:{(ks//4)*16384} ;@gx" for ks in range(16)]
    CO=Stream(co,12,32,eager=True); CO.carry=True
    st=[Stream(one(xr[6:]),0,14,eager=True,prio=3),Stream(one(ga)+p0_addr()+nonce(),0,24,eager=True,prio=1),Stream(one(hr[2:]),27,32,eager=True,prio=3),CO,
        Stream(one(gx[:7])+[20]+one(gx[7:]),14,27,eager=True,prio=2)]
    c+=schedule(p0_mf(xf),st,{},report=rep)+stamp("p0l")
    co=flat(CO.items[CO.pos:])
    zero=[f"v_mov_b64 {vr(RAW+2*i,2)}, 0" for i in range(32)]
    ra=["v_lshrrev_b32 v120, 5, v0","v_and_b32 v121, 31, v0","v_lshlrev_b32 v121, 2, v121","v_lshl_add_u32 v120, v120, 11, v121", f"s_lshl_b32 {sT1}, {sW}, 7", f"s_add_u32 {sT1}, {sT1}, {XB}",
        f"s_and_b32 {sT0}, {sB}, 1", f"s_lshl_b32 {sT0}, {sT0}, 1", f"s_sub_u32 {sT1}, {sT1}, {sT0}", f"v_add_u32 v122, {sT1}, v120","v_cvt_f32_u32 v121, v20","v_sub_f32 v121, 1.0, v121"]
    c+=ra+t_pack()+hm[:2]+["WAITLG tw,gx","s_barrier"]+hr[:2]+zero[:16]+hm[2:]+r_pack()+r_back()+zero[16:]+flat(r_store())+stamp("p0")
    c+=[f"s_lshl_b32 {sFHS}, {sB}, 7", f"s_add_u32 {sFHS}, {sFHS}, {WS_FP}", f"s_cmp_eq_u32 {sW}, 0", f"s_cselect_b32 {sFHS}, {sFHS}, 0x40000000",
        f"buffer_store_dwordx2 v[0:1], {vFO}, {SWS}, {sFHS} offen sc1 ;@fl"]+flat(wl[opt.q_npre:])+[f"s_lshl_b32 {sT1}, {sW}, 13", f"s_add_u32 {sT1}, {sT1}, {WS_FR}", f"v_lshl_add_u32 v9, {vL}, 7, {sT1}"]
    c+=flat(flag_R_addr())+co
    c+=[f"s_lshr_b32 {sWC}, {sM4K}, 1", f"s_add_u32 {sT1}, {sWC}, {C0}", f"v_add_u32 v158, {sT1}, {vL16}", f"v_add_u32 v10, {C0}, {vL16}",
        "ds_write_b128 v158, v[164:167] ;@mw", "ds_write_b128 v158, v[168:171] offset:1024 ;@mw", f"ds_write_b128 {vTR}, v[172:175] ;@mw", f"ds_write_b128 {vTR}, v[176:179] offset:1024 ;@mw"]
    mrd=[f"ds_read_b128 {aslot(MS[n])}, v10 offset:{((n//4)*2048 if n%4<2 else 8192+((n//4)^1)*2048)+(n%2)*1024} ;@raw" for n in range(16)]
    gg=[f"ds_read_b128 {vr(128+4*(ks%8),4)}, v22 offset:{ks*64} ;@gg" for ks in range(16)]
    gm=[MF16("v[108:111]", vr(128+4*(ks%8),4), aslot(GS[ks]), "v[108:111]" if ks else "0") for ks in range(16)]
    ge=["v_and_b32 v112, 31, v0","v_lshlrev_b32 v112, 2, v112", f"s_lshl_b32 {sT1}, {sB}, 2", f"s_add_u32 {sT1}, {sT1}, {sW}", f"s_lshl_b32 {sT1}, {sT1}, 7", f"s_add_u32 {sT3}, {sT1}, {WS_G}",
        f"v_mul_f32 v108, {f2u(-math.log2(math.e))}, v108","v_exp_f32 v108, v108","v_add_f32 v108, 1.0, v108","v_rcp_f32 v108, v108"]
    cs=cons_scalars()
    c+=gg[:8]+cs[:12]+gm[:8]+gg[8:]+cs[12:]+gm[8:]+flat(pa_setup("v96"))+ge
    c+=["WAITVM Rst","WAITLG mw","s_barrier",flag_store(sT2),f"buffer_store_dword v108, v112, {SWS}, {sT3} offen sc1 ;@Gst"]+stamp("fr")+mrd+rot_scalars()
    c+=p2_ny()+["WAITVM wf","WAITLG ny","s_barrier"]+stamp("wl")
    c1,park=p2_coefs(1); r0_=p2_raw(0)
    dl=fuse(dloads(24,min(44,opt.nd4)))
    c+=p2_raw(1)+c1+sprinkle(park,[r0_[8*i:8*i+8] for i in range(8)],8)
    c+=[
        f"v_xor_b32 v96, {sB}, v0", "v_bfe_u32 v97, v0, 3, 1", "v_and_b32 v96, 3, v96", "v_lshrrev_b32 v99, 4, v0", "v_lshlrev_b32 v96, 4, v96", "v_lshrrev_b32 v98, 2, v0", "v_lshl_add_u32 v96, v97, 6, v96",
        "v_xor_b32 v98, v98, v99", "v_and_b32 v98, 1, v98", "v_lshl_add_u32 v96, v98, 12, v96", "v_lshl_add_u32 v29, v99, 16, v96",
        f"s_lshl_b32 {sHS2}, {sB}, 7", f"s_add_u32 {sHS2}, {sHS2}, {sM16K}", f"s_add_u32 {sHS2}, {sHS2}, {WS_R}"]
    late=tr_pattern(vWT[2],"v96",sM16K)+[f"v_xor_b32 {vWT[3]}, 64, {vWT[2]}"]
    late2=["v_and_b32 v232, 31, v0","v_lshrrev_b32 v233, 5, v0","v_and_b32 v234, 7, v0","v_xor_b32 v233, v233, v234","v_lshlrev_b32 v233, 4, v233",
        "v_lshl_add_u32 v233, v232, 7, v233", f"v_add_u32 {vXR[0]}, {sM16K}, v233"]+[f"v_xor_b32 {vXR[i]}, {32*i}, {vXR[0]}" for i in range(1,4)]
    sRO="s39"
    late2+=[f"s_lshl_b32 {sRO}, {sB}, 1", "v_lshrrev_b32 v235, 3, v0", f"v_xor_b32 v232, {sRO}, v0", "v_xor_b32 v232, v232, v235", "v_and_b32 v232, 7, v232", "v_lshlrev_b32 v232, 4, v232",
        "v_lshl_add_u32 v232, v235, 7, v232", f"v_add_u32 {vXR[4]}, {sM16K}, v232", f"v_xor_b32 {vXR[5]}, 16, {vXR[4]}",
        "v_lshlrev_b32 v234, 4, v234", f"v_lshl_add_u32 {vXR[6]}, v235, 16, v234",
        f"s_bfe_u32 {sT1}, {sB}, 0x10002", f"s_xor_b32 {sT1}, {sT1}, {sQ}", f"s_lshl_b32 {sT1}, {sT1}, 7", f"s_lshl_b32 {sRO}, {sP}, 15", f"s_add_u32 {sRO}, {sRO}, {sT1}",
        f"s_lshl_b32 {sT1}, {sB}, 9", f"s_add_u32 {sRO}, {sRO}, {sT1}", f"s_add_u32 {sRO}, {sRO}, {WS_RP}"]
    c0=p2_coefs(0); k=[i for i,x in enumerate(c0) if x.startswith("s_cmp_lg")][0]
    pr1=f"buffer_load_dwordx2 {vPOLL}, v9, {SWS}, 0 offen sc1 ;@pr"
    c+=([pr1] if opt.q_pe else [])+c0+stamp("prep")+([] if opt.q_pe else [pr1])
    pf=fuse(gload('D',0,range(14),lambda n: f"s_add_u32 m0, {sM16K}, {XB+n*1024}")+gload('D',1,range(2),lambda n: f"s_add_u32 m0, {sM16K}, {XB+(14+n)*1024}"))
    pf=[pf[2*i]+pf[2*i+1] for i in range(8)]
    q=pf+dl
    def take(n):
        o=q[:n]; del q[:n]; return o
    c+=[f"s_mov_b32 {sCNT}, 100000","WAITVM pr","L_prl:", f"v_cmp_ne_u64 vcc, {sNON}, {vPOLL}", "s_and_b64 exec, exec, vcc", "s_cbranch_scc0 L_prd",
        f"buffer_load_dwordx2 {vPOLL}, v9, {SWS}, 0 offen sc1 ;@skip", f"s_sub_u32 {sCNT}, {sCNT}, 1", "s_waitcnt vmcnt(0) ;@skip", "s_cbranch_scc0 L_prl",
        "L_prd:", "s_mov_b64 exec, -1"]+stamp("poll")
    rr=[[f"s_add_u32 m0, {sM16K}, {gam*8192+rg*1024}", f"s_add_u32 {sT0}, {sHS2}, {gam*8192+rg*262144}", f"buffer_load_dwordx4 v29, {SWS}, {sT0} offen sc1 lds ;@RR{gam}"] for gam in range(2) for rg in range(8)]
    c+=flat(rr[:8])+sprinkle(late,rr[8:11],4)+["WAITLG raw","s_barrier"]+stamp("con")
    t=[int(x) for x in opt.q_t.split(".")]
    rd0,f0=p2_fwd(0,[Stream(rr[11:]+take(t[0]),0,16,pace=2,prio=1),Stream(one(late2),0,16,eager=True)])
    c+=["WAITVM RR0"]+stamp("rr0")+rd0+f0+stamp("f0")+sprinkle(p2_point(0),take(t[1]),14,2)+stamp("pt0")
    rest=[f"v_accvgpr_read_b32 v{128+i}, {csv(i)}" for i in range(64)]+[f"v_accvgpr_read_b32 v{CX+i}, {csv(64+i)}" for i in range(4)]
    o_rd,o_st=p2_out(0,192)
    i0,pk0=p2_inv(0,[Stream(one(rest[:30]),0,5,eager=True),Stream(take(t[2]),0,16,pace=2.2)])
    rd1,f1=p2_fwd(1,[Stream(one(o_rd),0,4,eager=True,prio=2),Stream(o_st[:4],4,16,prio=1,pace=3),Stream(one(rest[30:]),0,16,eager=True)])
    c+=["WAITVM RR1"]+i0+rd1+pk0+stamp("i0")+f1+stamp("f1")
    c+=sprinkle(p2_point(1),o_st[4:]+take(t[3])+[hpoll(0)],15,2)+stamp("pt1")
    o_rd,o_st=p2_out(1,128)
    i1,pk1=p2_inv(1,[])
    c+=i1+o_rd[:4]+pk1+o_rd[4:]+flat(o_st)+stamp("main")
    c+=[f"s_add_u32 {sT1}, {sM16K}, {XB}", f"v_add_u32 v8, {sT1}, {vL16}","WAITVM pf"]
    c+=[f"ds_read_b128 {vslot(n)}, v8 offset:{n*1024} ;@D{n//14}_{n%14}" for n in range(16)]
    c+=flat(dloads(16,24) if not q else take(99))+["WAITVM P1","s_barrier ;after P1,P0,Gst",flag_store(sFHS)]+stamp("join")
    if not any('D1_9' in x for x in c if isinstance(x,str)): c+=flat(dloads(16,24))
    c+=flat(dloads(44,opt.nd4))+hcheck(0)+flat(GH['h'][:opt.p1i])+hpoll(1)+flat(GH['h'][opt.p1i:])+[f"s_mov_b32 {sFA}, 0x40000000"]+[flag_store(sFA)]*3+["WAITLG all","s_branch L_g2"]
    return c
Opt.joinvm=63

def tail():
    c=["s_cmp_lg_u32 s2, 0","s_cbranch_scc1 L_noe", f"buffer_store_dwordx2 {vNON}, {vFO}, {SWS}, 0 offen sc1", "L_noe:"]
    if opt.stamps:
        c+=["s_waitcnt vmcnt(0)",("s_memtime" if opt.stamps==1 else "s_memrealtime")+" s[98:99]","s_memrealtime s[96:97]","s_waitcnt lgkmcnt(0)",
            f"s_lshl_b32 {sT0}, s2, 2", f"s_add_u32 {sT0}, {sT0}, {sW}", f"s_lshl_b32 {sT0}, {sT0}, 7", f"s_add_u32 {sT0}, {sT0}, {WS_DBG}"]
        c+=["v_min_u32 v2, 1, v0","v_lshlrev_b32 v2, 30, v2"]
        for i in range(16): c+=[f"v_mov_b32 v8, s{70+2*i}", f"buffer_store_dword v8, {vFO}, {SWS}, {sT0} offen offset:{4*i}"]
    if opt.hold:
        c+=["s_waitcnt vmcnt(0)","L_hold:","s_memrealtime s[96:97]","s_waitcnt lgkmcnt(0)","s_sub_u32 s96, s96, s100",f"s_cmp_lt_u32 s96, {opt.hold}","s_cbranch_scc1 L_hold"]
    return c+["L_end:","s_endpgm"]

def build():
    a=prologue(); n0=nstamp[0]
    r0c,nx2=round0()
    m=g_start()+r0c+stamp("r0")+rounds(nx2)+stamp("r3")
    n1=nstamp[0]
    g2=gemm2()+tail()
    nstamp[0]=n0; inp2[0]=True
    pp=p2(); inp2[0]=False
    check_tags(a+m+g2); check_tags(a+pp)
    main,ad1=finalize(a+m+g2,opt.verbose)
    full,ad2=finalize(a+["L_mark:"]+pp)
    idx=[i for i,x in enumerate(full) if x.text=="L_mark:"][0]
    side=full[idx+1:]
    gi=[i for i,x in enumerate(main) if x.text=="L_g2:"][0]
    check_loads(full+main[gi:]); check_tags(full+main[gi:])
    check_init(main); check_init(full)
    ol,_=pad_hazards(mk(outl))
    print("nops main",ad1,"p2",ad2)
    if opt.drop:
        r0e=[i for i,x in enumerate(main) if x.text.startswith(f"v_mov_b32 {vGC0}, 0x")][0]
        x0s=[i for i,x in enumerate(main) if x.mn=="s_barrier"][0]
        def keep(i,x):
            if not (x0s<i<r0e): return True
            if 's' in opt.drop and x.mn.startswith("buffer_store_dwordx4"): return False
            if 'l' in opt.drop and x.kind=="vmem" and x.mn.startswith("buffer_load"): return False
            if 'w' in opt.drop and x.mn.startswith("ds_write"): return False
            if 't' in opt.drop and x.mn.startswith("ds_read"): return False
            if 'v' in opt.drop and x.mn=="s_waitcnt" and "vmcnt" in x.text: return False
            return True
        main=[x for i,x in enumerate(main) if keep(i,x)]
    if opt.plainst:
        main=[I(x.text.replace(" sc1",""),x.tag) if (x.mn.startswith("buffer_store") and (x.tag or "").startswith("h")) else x for x in main]
    return main+side+ol+mk(["L_codeend:","s_endpgm"])

HEAD = open("gated_mix__spectral_gfnet__glu_gated_geglu__prompt.s.ref").read().split("; Override launch")[0]
def emit(path):
    code=build()
    s=HEAD+"; @launch grid=(256,1,1) block=(256,1,1) lds=163840\n"
    s+='.amdgcn_target "amdgcn-amd-amdhsa--gfx950"\n.text\n'
    s+=f".globl {KNAME}\n.p2align 8\n.type {KNAME},@function\n{KNAME}:\n"
    for ins in code:
        t=" ".join(ins.text.split(";")[0].split())
        s+=(t if ins.kind=="label" else "    "+t)+"\n"
    s+='.section .rodata,"a"\n.p2align 6\n'
    s+=f".amdhsa_kernel {KNAME}\n  .amdhsa_next_free_vgpr 512\n  .amdhsa_next_free_sgpr 102\n  .amdhsa_accum_offset 256\n"
    s+="  .amdhsa_group_segment_fixed_size 0\n  .amdhsa_kernarg_size 88\n  .amdhsa_user_sgpr_count 2\n  .amdhsa_user_sgpr_kernarg_segment_ptr 1\n"
    s+="  .amdhsa_system_sgpr_workgroup_id_x 1\n  .amdhsa_float_denorm_mode_32 3\n.end_amdhsa_kernel\n"
    open(path,"w").write(s)
    return code
if __name__=="__main__":
    out=sys.argv[1]
    for a in sys.argv[2:]:
        k,v=a.split("=")
        cur=getattr(opt,k)
        setattr(opt,k, (v=="1") if isinstance(cur,bool) else (int(v) if isinstance(cur,int) else v))
    code=emit(out)
    from collections import Counter
    print(len(code), dict(Counter(i.kind for i in code)))
    if opt.verbose:
        for r in rep: print(len(r), sum(r), "".join("%x"%min(x,15) for x in r))
```

```python
import sys, struct, math
from asmlib import *

KNAME = "gated_mix__spectral_gfnet__glu_gated_geglu__prompt_kernel"
def f2u(x): return "0x%08x" % struct.unpack("<I", struct.pack("<f", x))[0]

WS_G   = 0x10000
WS_FP  = 0x4000
WS_FR  = 0x8000
WS_FD  = 0x18000
WS_FH  = 0x80000
WS_R   = 0x100000
WS_RP  = 0x300000
WS_H   = 0x500000
WS_D   = 0xC00000
WS_DBG = 0xF00000
WS_SIZE = 0x10000000
XA, XB, C0, C1 = 0, 65536, 131072, 147456
L_T, L_H = C0+8192, C1
HS=136
L_NR=L_H+64*HS; L_GW=L_NR+1024; L_NY=L_GW+1024
SX,SWG,SWU,SWD,SWS,SOUT,SGW,SWR,SWI = [f"s[{i}:{i+3}]" for i in (4,8,12,16,20,24,28,32,36)]
sNON="s[40:41]"
sW,sB,sCG,sRES,sRB4,sFB,sP,sQ = "s42","s43","s44","s45","s46","s47","s48","s49"
sXS,sWS0,sM4K,sHS,sFHS,sLD,sM16K,sROT = "s50","s51","s52","s53","s54","s55","s56","s57"
sT0,sT1,sT2,sT3 = "s58","s59","s60","s61"
sGC1,sSWP="s62","s63"
sPM="s[64:65]"; sPT="s[66:67]"; sCNT="s68"; sOH="s69"
sB2="s57"; sFC="s69"; sCC=["s64","s65","s66","s67"]
sRR=["s16","s17","s18","s19"]; sXQ=["s28","s29","s30","s31"]
sDB,sHB,sH0,sFH0,sX0,sHS2,sWC = "s32","s33","s34","s35","s36","s47","s38"
vL, vL16, vFO = "v0","v1","v2"
vG = ["v3","v4"]; vPA="v5"; vNON="v[6:7]"
vXO=[f"v{8+i}" for i in range(4)]
vXR=[f"v{12+i}" for i in range(8)]
vWO=[f"v{20+i}" for i in range(4)]
vWT=[f"v{24+i}" for i in range(4)]
vOMG=[["v20","v21"],["v22","v23"]]
vPA2="v28"; vTP="v29"; vPOLL="v[30:31]"
def vr(a,n): return f"v[{a}:{a+n-1}]"
def ar(a,n): return f"a[{a}:{a+n-1}]"
ACC=32; XR=96; ET=128; HP=[144,152]; vGC0='v24'

class Opt:
    stamps=0; hold=0; probe=''; inp2=False; outf="nt"; cpf=True; verbose=False
    sel='start,x0/qx0,p0/qp0,r0/qprep,r2/qpoll,r3/qmain,g28,g56,g84,g108,gend'
    slp=4; nomem=0; nopoll=''; plainst=0; drop=''
    rot7=0; fmode=0; dropp=0; q_pe=1; q_t='10.0.7.0.0.2'; dearly=1; csg=44; q_pi=40; q_nh=9; q_e=0; q_np0=0; q_npre=8; q_n2=11; q_wg=14; q_sp=10; pdi=66; nd1=9; nd2=17; nd3=33; nd4=35; hb=46; fhg=40; seq='012v3'; hk1=8; hsp=9; hn1=3; hn2=10; f2g=24; p1g=60; p1c=70; ppg=36; ppc=48; pace2=15; win=11; dlead=4; f2i=0; p1i=6; dfill=4; id2=0; map2=0; f0=24; f1=24; f3=20; f3i=12; hn3=1; nh3=0; hb1=44; hb2=44; hb3=38; nds='0.0.6.26.26'; plead=9; hmode=1; p0g=58; fbar=3; rsg=61; dsg=65; fdb=40; fdg=44; xsplit=1; hpre=1; gpre=0; nth='011224'; x2g=100; prek=4; npre=25; p0d=0; pace0=20; pace1=21; b01=20; order='x0.e.x1.w0.x2.x3.w1.w2.w3.w4.d.w5.w6.w7'; pdb=88; nw1=11; sp1=8; sp2=8; st2=60
opt=Opt()
nstamp=[0]; inp2=[False]; rep=[]
def stamp(name):
    if inp2[0]: name="q"+name
    if opt.probe==name: return ["s_memrealtime s[100:101]","s_waitcnt lgkmcnt(0)"]
    if not opt.stamps: return []
    idx=None
    for i,grp in enumerate(opt.sel.split(",")):
        if name in grp.split("/"): idx=i
    if idx is None: return []
    assert idx<13
    return [f"{'s_memtime' if opt.stamps==1 else 's_memrealtime'} s[{70+2*idx}:{71+2*idx}]","s_waitcnt lgkmcnt(0)"]
def MF32(d,a,b,c): return f"v_mfma_f32_32x32x16_bf16 {d}, {a}, {b}, {c}"
def MF16(d,a,b,c): return f"v_mfma_f32_16x16x32_bf16 {d}, {a}, {b}, {c}"
def flat(g): return [i for x in g for i in (x if isinstance(x,list) else [x])]
def one(L): return [[x] for x in L]
def sprinkle(main, items, every, start=0):
    out=[]; items=list(items); main=mk(main); due=0
    for n,ins in enumerate(main):
        if n>=start and (n-start)%every==0: due+=1
        if items and due and not ins.mn.startswith(("s_cselect","s_subb","s_addc","s_cbranch")):
            out+=mk(items.pop(0)); due-=1
        out.append(ins)
    for it in items: out+=mk(it)
    return out

lab=[0]; outl=[]
def poll_issue(tag, pa=vPA, so="0"):
    if opt.dropp and tag in opt.nopoll.split(","): return [f"buffer_load_dwordx2 {vPOLL}, off, {SWS}, 0 sc1 ;@{tag}"]
    return [f"buffer_load_dwordx2 {vPOLL}, {pa}, {SWS}, {so} offen sc1 ;@{tag}"]
def poll_check(tag, pa=vPA, so="0", mask=0x3fff):
    if tag in opt.nopoll.split(","): mask=0
    lab[0]+=1; n=lab[0]
    chk=[f"v_cmp_ne_u64 vcc, {sNON}, {vPOLL}", f"s_and_b32 {sCNT}, vcc_lo, {mask}"]
    outl.extend([f"L_pr{n}:", f"s_mov_b32 s3, 100000", f"L_pl{n}:", f"s_sleep {opt.slp}",
           f"buffer_load_dwordx2 {vPOLL}, {pa}, {SWS}, {so} offen sc1 ;@skip", f"s_sub_u32 s3, s3, 1", f"s_cbranch_scc1 L_pd{n}", "s_waitcnt vmcnt(0) ;@skip"]+chk+
           [f"s_cbranch_scc1 L_pl{n}", f"s_branch L_pd{n}"])
    return [f"WAITVM {tag}"]+chk+[f"s_cbranch_scc1 L_pr{n}", f"L_pd{n}:"]
def flag_store(soff): return f"buffer_store_dwordx2 {vNON}, {vFO}, {SWS}, {soff} offen sc1 ;@fl"

def dma4(vo, srds, tag, setup):
    g=[setup+[f"buffer_load_dwordx4 {vo[0]}, {srds[0]}, {sT0} offen lds ;@{tag}"]]
    for j in range(1,4): g.append([f"buffer_load_dwordx4 {vo[j]}, {srds[j]}, {sT0} offen offset:{j*1024} lds ;@{tag}"])
    return g
def dma_x(slot,kq,tag):
    return dma4(vXO,[SX]*4,tag,[f"s_add_u32 m0, {sM4K}, {slot+kq*16384}", f"s_add_u32 {sT0}, {sXS}, {sXQ[kq]}"])
def set_xs(r): return [f"s_lshl_b32 {sXS}, {sRR[r]}, 10", f"s_add_u32 {sXS}, {sXS}, {sX0}"]
def wslot(n): return (XB if n<4 else XA)+(n%4)*16384
def dma_w(i):
    su=[f"s_mul_i32 {sT0}, {sXQ[i//2]}, 1792", f"s_add_u32 m0, {sM4K}, {wslot(i)}", f"s_add_u32 {sT0}, {sT0}, {sWS0 if i%2==0 else sWC}"]
    return dma4(vWO,[SWG,SWU,SWG,SWU],f"W{i}",su)

def prologue():
    c=["s_cmp_ge_u32 s2, 256","s_cbranch_scc1 L_end"]
    if opt.stamps or opt.hold: c+=["s_memrealtime s[100:101]"]
    c+=stamp("start")
    c+=["s_load_dwordx4 s[4:7], s[0:1], 0",
        "s_load_dwordx8 s[8:15], s[0:1], 32",
        "s_load_dwordx2 s[20:21], s[0:1], 80",
        "s_load_dwordx2 s[36:37], s[0:1], 16",
        "s_load_dwordx2 s[24:25], s[0:1], 64"]
    c+=[f"s_lshr_b32 {sT1}, s2, 3"]
    if opt.cpf:
        c+=["s_getpc_b64 s[66:67]","L_pc:",f"s_lshl_b32 {sT0}, {sT1}, 11",f"v_lshl_add_u32 v8, v0, 7, {sT0}",
            "v_cmp_gt_u32 vcc, 16, v0","s_mov_b64 s[64:65], vcc","v_cmp_gt_u32 vcc, L_codeend-L_pc, v8","s_and_b64 vcc, vcc, s[64:65]",
            "v_mov_b32 v9, s67","s_and_saveexec_b64 s[64:65], vcc","s_cbranch_execz L_nopf",
            "v_add_co_u32 v8, vcc, s66, v8","v_addc_co_u32 v9, vcc, 0, v9, vcc","global_load_dword v255, v[8:9], off ;@skip","L_nopf:","s_mov_b64 exec, s[64:65]"]
    c+=["v_lshrrev_b32 v5, 6, v0","v_and_b32 v0, 63, v0",f"v_readfirstlane_b32 {sW}, v5",
        f"v_lshlrev_b32 {vL16}, 4, {vL}",
        f"s_and_b32 {sRES}, s2, 3", f"s_and_b32 {sT0}, s2, 4"]+([f"s_lshr_b32 {sCG}, {sT1}, 3", f"s_add_u32 {sCG}, {sCG}, {sT0}", f"s_and_b32 {sT1}, {sT1}, 7", f"s_lshl_b32 {sRB4}, {sT1}, 2"] if opt.map2 else
        [f"s_lshr_b32 {sCG}, {sT1}, 2", f"s_and_b32 {sT1}, {sT1}, 3", f"s_add_u32 {sRB4}, {sT0}, {sT1}", f"s_lshl_b32 {sRB4}, {sRB4}, 2"])+[ f"s_add_u32 {sB}, {sRB4}, {sRES}",
        f"s_add_u32 {sROT}, {sT1}, {sCG}", f"s_and_b32 {sROT}, {sROT}, 3",
        f"s_lshr_b32 {sP}, {sW}, 1", f"s_and_b32 {sQ}, {sW}, 1", f"s_lshl_b32 {sM4K}, {sW}, 12", f"s_lshl_b32 {sM16K}, {sW}, 14",
        f"s_lshl_b32 {sXS}, {sW}, 19", f"s_lshl_b32 {sT0}, {sB}, 10", f"s_add_u32 {sXS}, {sXS}, {sT0}", f"s_lshl_b32 {sXQ[0]}, {sROT}, 8"]
    for kq in range(1,4): c+=[f"s_add_u32 {sXQ[kq]}, {sXQ[kq-1]}, 256", f"s_and_b32 {sXQ[kq]}, {sXQ[kq]}, 1023"]
    c+=["v_lshrrev_b32 v128, 4, v0", "v_and_b32 v129, 15, v0", "v_xor_b32 v131, v129, v128", "v_lshlrev_b32 v131, 4, v131", f"v_lshl_add_u32 {vXO[0]}, v128, 15, v131"]
    for j in range(1,4):
        c+=[f"v_xor_b32 v130, {64*j}, {vXO[0]}", f"v_add_u32 {vXO[j]}, {4*j*32768-j*1024}, v130"]
    c+=[f"s_cmp_eq_u32 {sCG}, 7","s_cbranch_scc1 L_p2"]
    return c
def srd_common():
    return [f"s_mov_b32 s6, {0 if opt.nomem&1 else 0x200000}","s_mov_b32 s7, 0x20000", f"s_mov_b32 s22, {WS_SIZE}","s_mov_b32 s23, 0x20000",
            "s_mov_b32 s26, 0x200000","s_mov_b32 s27, 0x20000"]
def cons_scalars():
    if opt.id2: c=[f"s_and_b32 {sB2}, s2, 7", f"s_lshl_b32 {sB2}, {sB2}, 2", f"s_bfe_u32 {sCC[0]}, s2, 0x20003", f"s_add_u32 {sB2}, {sB2}, {sCC[0]}"]
    elif opt.map2==1: c=[f"s_and_b32 {sB2}, s2, 4", f"s_bfe_u32 {sCC[0]}, s2, 0x20003", f"s_add_u32 {sB2}, {sB2}, {sCC[0]}", f"s_lshl_b32 {sB2}, {sB2}, 2", f"s_add_u32 {sB2}, {sB2}, {sRES}", f"s_mov_b32 {sCC[0]}, {sRES}"]
    else: c=[f"s_mov_b32 {sB2}, {sB}", f"s_mov_b32 {sCC[0]}, {sRES}"]
    if opt.map2==1: c+=[f"s_lshr_b32 {sCG}, s2, 5"]
    for i in range(1,4): c+=[f"s_sub_u32 {sCC[i]}, {sCC[0]}, {i}", f"s_and_b32 {sCC[i]}, {sCC[i]}, 3"]
    c+=[f"s_lshl_b32 {sDB}, {sCG}, 2", f"s_add_u32 {sDB}, {sDB}, {sW}", f"s_mul_i32 {sDB}, {sDB}, 57344", f"s_add_u32 {sDB}, {sDB}, {WS_D}",
        f"s_lshl_b32 {sHB}, {sB2}, 2", f"s_add_u32 {sHB}, {sHB}, {sW}", f"s_mul_i32 {sHB}, {sHB}, 57344", f"s_add_u32 {sHB}, {sHB}, {WS_H}",
        f"s_and_b32 {sFC}, {sB2}, 28", f"s_lshl_b32 {sFC}, {sFC}, 1", f"s_add_u32 {sFC}, {sFC}, {sP}", f"s_mul_i32 {sFC}, {sFC}, {56*128}", f"s_add_u32 {sFC}, {sFC}, {WS_FH}"]
    return c

FF=64
vHA,vHB,vTW,vTR,vBW="v28","v29","v3","v4","v30"
def gen_F():
    c=["v_and_b32 v128, 3, v0", "v_bfe_u32 v129, v0, 3, 2", "v_lshl_add_u32 v128, v129, 2, v128", "v_bfe_u32 v129, v0, 2, 1", "v_lshl_add_u32 v128, v129, 4, v128",
       f"s_lshr_b32 {sT3}, {sCG}, 1", f"s_lshl_b32 {sT3}, {sT3}, 6", f"s_and_b32 {sT2}, {sCG}, 1", f"s_add_u32 {sT2}, {sT2}, {sT3}", f"v_lshl_add_u32 v128, v128, 1, {sT2}",
       f"v_cvt_f32_u32 v129, {sP}", f"v_mul_f32 v129, {f2u(-0.25)}, v129",
       f"s_lshl_b32 {sT3}, {sP}, 8", f"v_mov_b32 v130, {sT3}",
       "v_cmp_eq_u32 vcc, 0, v128", "v_lshrrev_b32 v131, 5, v0", f"s_lshl_b32 {sT3}, {sROT}, 7",
       "v_cndmask_b32 v128, v128, v130, vcc", "v_cndmask_b32 v129, v129, 0, vcc",
       "v_cvt_f32_u32 v128, v128", f"v_mul_f32 v128, {f2u(1/512)}, v128",
       f"v_lshl_add_u32 v131, v131, 3, {sT3}", "v_cvt_f32_u32 v131, v131", "v_fmac_f32 v129, v131, v128",
       f"v_mul_f32 v130, {f2u(16.0)}, v128"]
    S0,S1=132,140
    c+=[f"v_mov_b32 v{S0}, v129", f"v_add_f32 v{S1}, v130, v129", "v_cos_f32 v130, v130"]
    for j in range(1,8): c+=[f"v_add_f32 v{S0+j}, v128, v{S0+j-1}", f"v_add_f32 v{S1+j}, v128, v{S1+j-1}"]
    c+=["v_add_f32 v130, v130, v130","v_mov_b32 v131, v130"]
    for j in range(16): c+=[f"v_cos_f32 v{S0+j}, v{S0+j}"]
    for j in range(8): c+=[f"v_cvt_pk_bf16_f32 v{FF+j}, v{S0+2*j}, v{S0+2*j+1}"]
    for ks in range(2,16):
        P,Cu=(S0,S1) if ks%2==0 else (S1,S0)
        for j in range(4): c+=[f"v_pk_fma_f32 {vr(P+2*j,2)}, v[130:131], {vr(Cu+2*j,2)}, {vr(P+2*j,2)} neg_lo:[0,0,1] neg_hi:[0,0,1]"]
        for j in range(4): c+=[f"v_cvt_pk_bf16_f32 v{FF+4*ks+j}, v{P+2*j}, v{P+2*j+1}"]
    return c
def gen_H(B=128):
    r,cf,ad,t=[f"v{B+i}" for i in range(4)]; V=B+4
    c=[f"v_and_b32 {r}, 15, v0", f"s_lshl_b32 {sT1}, {sW}, 4", f"v_add_u32 {r}, {sT1}, {r}", f"v_and_b32 {t}, 1, v0", f"v_lshrrev_b32 {cf}, 1, {r}",
       f"v_cvt_f32_u32 {t}, {t}", f"v_cvt_f32_u32 {cf}, {cf}", f"v_cmp_eq_u32 vcc, 1, {r}", f"v_mul_f32 {t}, {f2u(-0.25)}, {t}", f"v_mul_f32 {cf}, {f2u(1/64)}, {cf}",
       f"v_and_b32 {ad}, 48, v0", f"v_cndmask_b32 {t}, {t}, 0, vcc", f"v_cndmask_b32 {cf}, {cf}, 0.5, vcc", f"v_cvt_f32_u32 v{V}, {ad}", f"v_mul_u32_u24 {r}, {HS}, {r}",
       f"v_fmac_f32 {t}, v{V}, {cf}", f"v_lshl_add_u32 {ad}, {ad}, 1, {r}", f"v_add_u32 {ad}, {L_H}, {ad}"]
    for hf in range(2):
        c+=[f"v_fmamk_f32 v{V+j}, {cf}, {f2u(8*hf+j)}, {t}" for j in range(8)]
        c+=[f"v_cos_f32 v{V+j}, v{V+j}" for j in range(8)]
        c+=[f"v_cvt_pk_bf16_f32 v{V+j}, v{V+2*j}, v{V+2*j+1}" for j in range(4)]
        c+=[f"ds_write2_b64 {ad}, {vr(V,2)}, {vr(V+2,2)} offset0:{2*hf} offset1:{2*hf+1} ;@hw"]
    return c
def xr_addr():
    c=["v_and_b32 v128, 15, v0","v_and_b32 v130, 31, v0", f"s_lshl_b32 {sT2}, {sQ}, 13", f"v_lshl_add_u32 v130, v130, 8, {sT2}", "v_lshrrev_b32 v131, 5, v0",
       "v_xor_b32 v131, v131, v128", f"v_lshl_add_u32 {vXR[0]}, v131, 4, v130"]
    return c+[f"v_xor_b32 {vXR[i]}, {32*i}, {vXR[0]}" for i in range(1,8)]
def p0_addr():
    return [["v_lshrrev_b32 v2, 4, v0"],["v_lshlrev_b32 v2, 28, v2"],["v_lshl_add_u32 v2, v0, 3, v2"],
        ["v_and_b32 v31, 31, v0"],[f"v_mul_u32_u24 {vHA}, {HS}, v31"],
        [f"s_xor_b32 {sT1}, {sW}, 1", f"s_lshl_b32 {sT1}, {sT1}, 11", f"s_add_u32 {sT1}, {sT1}, {L_T}", f"v_lshl_add_u32 {vBW}, v31, 6, {sT1}", f"v_add_u32 {vTR}, {sT1}, {vL16}"],
        [f"v_xor_b32 {vTW}, 2048, {vTR}"],
        ["v_lshrrev_b32 v31, 5, v0"],[f"v_lshl_add_u32 {vHA}, v31, 3, {vHA}"],[f"v_lshl_add_u32 {vBW}, v31, 5, {vBW}"],
        [f"s_mul_i32 {sT1}, {sQ}, {32*HS-64}", f"s_add_u32 {sT1}, {sT1}, {L_H+64}", f"v_add_u32 {vHB}, {sT1}, {vHA}"],
        [f"s_mul_i32 {sT1}, {sQ}, {32*HS+64}", f"s_add_u32 {sT1}, {sT1}, {L_H}", f"v_add_u32 {vHA}, {sT1}, {vHA}"],
        ["v_bfe_u32 v31, v0, 1, 2"],["v_lshlrev_b32 v31, 4, v31"],[f"v_xor_b32 {vBW}, v31, {vBW}"],[f"v_xor_b32 v31, 16, {vBW}"]]
def eload(): return [f"buffer_load_dwordx2 {vNON}, off, {SWS}, 0 sc1 ;@E"]

TA=32; TPK=96; TOT=104; HFA=232; D2=32; RPK=48; RBK=56
def nonce():
    return [["WAITVM E","v_readfirstlane_b32 s40, v6"],["v_readfirstlane_b32 s41, v7"],["s_mul_i32 s40, s40, 0x9E3779B1"],["s_add_u32 s40, s40, 0x7F4A7C15"],
           ["s_mul_i32 s41, s41, 0x85EBCA6D"],["s_add_u32 s41, s41, 0xC2B2AE35"],["v_mov_b32 v6, s40"],["v_mov_b32 v7, s41"],
           [f"s_and_b32 {sT3}, {sCG}, 1"],[f"s_lshl_b32 {sT3}, {sT3}, 31"],[f"s_or_b32 {sT3}, {sT3}, 0x3f800000"],
           [f"s_lshl_b32 {sT2}, {sB}, 3"],[f"s_add_u32 {sT2}, {sT2}, {sCG}"],[f"s_lshl_b32 {sT2}, {sT2}, 2"],[f"s_add_u32 {sT2}, {sT2}, {sW}"],
           [f"s_lshl_b32 {sT2}, {sT2}, 11"],[f"s_add_u32 {sT2}, {sT2}, {WS_R}"]]
def p0_mf(xf):
    return [MF32(vr(TA+16*(ks//16),16), xf(ks), vr(FF+4*(ks%16),4), vr(TA+16*(ks//16),16) if ks%16 else "0") for ks in range(32)]
def x0_reads(xf,kq): return [f"ds_read_b128 {xf(ks)}, {vXR[ks%8]} offset:{kq*16384} ;@r" for ks in range(8*kq,8*kq+8)]
def t_pack(pkf=True):
    c=[]
    for sg in range(2):
        c+=[f"v_pk_fma_f32 {vr(TA+8*sg+2*i,2)}, {vr(TA+16+8*sg+2*i,2)}, s[60:61], {vr(TA+8*sg+2*i,2)} op_sel:[0,1,0] op_sel_hi:[1,1,1]" for i in range(4)] if pkf else [f"v_fmac_f32 v{TA+8*sg+i}, {sT3}, v{TA+16+8*sg+i}" for i in range(8)]
        c+=[f"v_cvt_pk_bf16_f32 v{TPK+4*sg+i}, v{TA+8*sg+2*i}, v{TA+8*sg+2*i+1}" for i in range(4)]
        c+=[f"ds_write_b128 {vTW}, {vr(TPK+4*sg,4)} offset:{1024*sg} ;@tw"]
    return c
def h_reads():
    return [f"ds_read_b128 {vr(TOT+4*sg,4)}, {vTR} offset:{1024*sg} ;@hr" for sg in range(2)]+\
           [f"ds_read2_b64 {ar(HFA+8*o+4*sg,4)}, {vHA if o==0 else vHB} offset0:{4*sg} offset1:{4*sg+2} ;@hr" for o in range(2) for sg in range(2)]
def h_mf(): return [MF32(vr(D2,16), vr(TPK+4*n,4), ar(HFA+4*n,4), vr(D2,16) if n else "0") for n in range(4)]
def r_pack():
    c=[]
    for e in range(2):
        c+=[f"v_cvt_pk_bf16_f32 v{RPK+4*e+i}, v{D2+8*e+2*i}, v{D2+8*e+2*i+1}" for i in range(4)]
        c+=[f"ds_write_b128 {vBW if e==0 else 'v31'}, {vr(RPK+4*e,4)} ;@bw"]
    return c
def r_back(): return [f"ds_read_b128 {vr(RBK+4*e,4)}, {vTR} offset:{1024*e} ;@br" for e in range(2)]
def r_store():
    return [["WAITLG br", f"buffer_store_dwordx4 {vr(RBK,4)}, {vL16}, {SWS}, {sT2} offen sc1 ;@Rst"],
            [f"buffer_store_dwordx4 {vr(RBK+4,4)}, {vL16}, {SWS}, {sT2} offen offset:1024 sc1 ;@Rst"]]
def flag_R_addr(sT2=sT2):
    return [[f"s_lshl_b32 {sT2}, {sCG}, 5", f"s_add_u32 {sT2}, {sT2}, {sB}"],[f"s_lshl_b32 {sT2}, {sT2}, 7", f"s_add_u32 {sT2}, {sT2}, {WS_FR}"],
            [f"s_cmp_eq_u32 {sW}, 0", f"s_cselect_b32 {sT2}, {sT2}, 0x40000000"]]

def g_start():
    wo=["v_lshrrev_b32 v150, 3, v0", "v_and_b32 v151, 7, v0", "v_and_b32 v152, 2, v150", "v_lshlrev_b32 v5, 1, v152", "v_xor_b32 v5, v5, v151", "v_lshlrev_b32 v5, 4, v5", "v_lshl_add_u32 v5, v150, 10, v5",
        "v_xor_b32 v151, v151, v152", "v_mul_u32_u24 v150, 3584, v150",
        f"v_lshl_add_u32 {vWO[0]}, v151, 4, v150", "v_xor_b32 v151, 4, v151", f"v_lshl_add_u32 {vWO[1]}, v151, 4, v150",
        f"v_add_u32 {vWO[2]}, {8*3584-2048}, {vWO[0]}", f"v_add_u32 {vWO[3]}, {8*3584-2048}, {vWO[1]}",
        f"s_mul_i32 {sFB}, {sRES}, 7", f"s_add_u32 {sFB}, {sFB}, {sCG}",
        f"s_mul_i32 {sWS0}, {sW}, {16*3584}", f"s_lshl_b32 {sWC}, {sFB}, 7", f"s_add_u32 {sWS0}, {sWS0}, {sWC}", f"s_add_u32 {sWC}, {sWS0}, {64*3584}",
        "s_mov_b32 s64, s12","s_mov_b32 s65, s13","s_mov_b32 s66, 1835008","s_mov_b32 s67, 0x20000",
        "s_sub_u32 s12, s10, 1024","s_subb_u32 s13, s11, 0",f"s_mov_b32 s10, {0 if opt.nomem&2 else 1835008}",f"s_mov_b32 s14, {0 if opt.nomem&2 else 1836032}","s_mov_b32 s11, 0x20000","s_mov_b32 s15, 0x20000"]
    gf=gen_F()
    k=[i for i,x in enumerate(wo) if x.startswith("s_mov_b32 s64")][0]
    c=wo[:k]+gf[:opt.prek]+["s_waitcnt lgkmcnt(0)"]+srd_common()+wo[k:]
    dm=start_dmas()[:opt.npre]
    rest=[f"s_lshr_b32 {sOH}, {sM4K}, 1", f"s_add_u32 {sOH}, {sOH}, {C0}", f"s_lshl_b32 {sCNT}, {sFB}, 16", f"s_add_u32 {sCNT}, {sCNT}, {sM16K}", f"s_lshl_b32 {sT1}, {sRB4}, 5", f"s_add_u32 {sCNT}, {sCNT}, {sT1}"]
    c=c[:]; k0=[i for i,x in enumerate(c) if x.startswith("s_waitcnt lgkmcnt")][0]
    c=c[:k0]+rest+c[k0:]
    rest=gf[opt.prek:]+xr_addr()+(gen_H() if opt.hpre else [])
    if opt.gpre:
        gv,gsc=g_setup(); rest=rest+gv+gsc
    n1=opt.nw1*opt.sp1; n2=max(n1,len(rest)-(len(dm)-opt.nw1)*opt.sp2)
    c+=stamp("karg")+sprinkle(rest[:n2], dm[:opt.nw1], opt.sp1)+stamp("gen1")+sprinkle(rest[n2:], dm[opt.nw1:], opt.sp2)+stamp("gen")
    return c
SD="s[64:67]"
def start_dmas():
    dd=[[f"s_mov_b32 m0, {sOH}", f"s_add_u32 {sT0}, {sCNT}, {8192-1024}", f"buffer_load_dwordx4 v5, {SD}, {sCNT} offen lds ;@Wd"],
        [f"buffer_load_dwordx4 v5, {SD}, {sT0} offen offset:1024 lds ;@Wd"]]
    dm=[]
    for tok in opt.order.split("."):
        if tok[0]=="x": dm+=dma_x(XA,int(tok[1]),f"x0q{tok[1]}")
        elif tok[0]=="w": dm+=dma_w(int(tok[1]))
        elif tok=="e": dm+=[eload()]
        elif tok=="d": dm+=dd
    assert len(dm)==51
    assert all('@x0' not in it[-1] for it in dm[opt.npre:])
    return dm
def g_setup():
    c=["v_lshrrev_b32 v60, 4, v0","v_bfe_u32 v61, v0, 2, 2","v_and_b32 v62, 3, v0","v_bfe_u32 v63, v0, 3, 2", f"s_lshl_b32 {sT1}, {sP}, 1",
       "v_lshlrev_b32 v62, 3, v62", f"v_xor_b32 v63, {sT1}, v63", "v_lshl_add_u32 v62, v61, 7, v62",
       f"v_lshl_add_u32 {vWT[3]}, v60, 10, v62", "v_lshrrev_b32 v60, 5, v0", f"v_lshl_add_u32 {vWT[3]}, v63, 5, {vWT[3]}", "v_bfe_u32 v61, v0, 4, 1",
       f"v_add_u32 {vWT[0]}, {XB}, {vWT[3]}", "v_lshl_add_u32 v62, v60, 9, v62", "v_bfe_u32 v63, v0, 3, 1", f"v_xor_b32 {vWT[1]}, 32, {vWT[0]}",
       "v_lshl_add_u32 v62, v61, 5, v62", "v_lshl_add_u32 v62, v63, 6, v62",
       f"v_add_u32 {vWT[2]}, {sOH}, v62", f"v_xor_b32 {vWT[3]}, 64, {vWT[2]}",
       f"s_lshl_b32 {sLD}, {sRB4}, 1", f"s_and_b32 {sLD}, {sLD}, 24", f"s_add_u32 {sLD}, {sLD}, {sW}", f"s_mul_i32 {sLD}, {sLD}, 28", f"s_add_u32 {sLD}, {sLD}, {sFB}", f"s_lshl_b32 {sLD}, {sLD}, 1",
       f"s_lshr_b32 {sT1}, {sRB4}, 4", f"s_add_u32 {sLD}, {sLD}, {sT1}", f"s_lshl_b32 {sLD}, {sLD}, 10", f"s_add_u32 {sLD}, {sLD}, {WS_D}", f"s_add_u32 {sHS}, {sLD}, {4*57344}"]
    k=[i for i,x in enumerate(c) if x.startswith(f's_lshl_b32 {sLD}')][0]
    return c[:k], c[k:]
def g_scalars():
    c=[f"s_mov_b32 {sRR[0]}, {sRES}"]
    for r in range(1,4): c+=[f"s_add_u32 {sRR[r]}, {sRES}, {r}", f"s_and_b32 {sRR[r]}, {sRR[r]}, 3"]
    c+=[f"s_lshl_b32 {sX0}, {sW}, 9", f"s_add_u32 {sX0}, {sX0}, {sRB4}", f"s_lshl_b32 {sX0}, {sX0}, 10",
        f"s_lshl_b32 {sH0}, {sRB4}, 1", f"s_add_u32 {sH0}, {sH0}, {sP}", f"s_mul_i32 {sH0}, {sH0}, 56", f"s_add_u32 {sH0}, {sH0}, {sFB}",
        f"s_lshl_b32 {sH0}, {sH0}, 1", f"s_add_u32 {sH0}, {sH0}, {sQ}", f"s_lshl_b32 {sH0}, {sH0}, 10", f"s_add_u32 {sH0}, {sH0}, {WS_H}",
        f"s_lshl_b32 {sFH0}, {sRB4}, 1", f"s_add_u32 {sFH0}, {sFH0}, {sP}", f"s_mul_i32 {sFH0}, {sFH0}, 28", f"s_add_u32 {sFH0}, {sFH0}, {sFB}",
        f"s_lshl_b32 {sFH0}, {sFH0}, 1", f"s_add_u32 {sFH0}, {sFH0}, {sQ}", f"s_lshl_b32 {sFH0}, {sFH0}, 7", f"s_add_u32 {sFH0}, {sFH0}, {WS_FH}",
        f"s_mov_b32 {sGC1}, {f2u(-2*math.sqrt(2/math.pi)*math.log2(math.e)*0.044715)}"]
    return c
def pa_setup(t="v31"):
    return [[f"v_min_u32 {t}, 13, {vL}"],[f"v_lshl_add_u32 {vPA}, {t}, 7, {sFC}"],[f"v_lshrrev_b32 {t}, 4, {vL}"],[f"v_lshl_add_u32 {vPA}, {t}, 28, {vPA}"],
            [f"v_and_b32 {t}, 7, {vL}"],[f"s_lshr_b32 {sT1}, {sCG}, 1", f"s_lshl_b32 {sT1}, {sT1}, 2", f"s_add_u32 {sT1}, {sT1}, {sW}", f"s_lshl_b32 {sPO}, {sT1}, 7"],
            [f"s_add_u32 {sT1}, {sPO}, {WS_FR if opt.dearly else WS_FD}", f"v_lshl_add_u32 {vPA2}, {t}, 12, {sT1}"],
            [f"v_bfe_u32 {t}, {vL}, 3, 1"],[f"v_lshl_add_u32 {vPA2}, {t}, 11, {vPA2}"],[f"v_lshrrev_b32 {t}, 4, {vL}"],[f"v_lshl_add_u32 {vPA2}, {t}, 28, {vPA2}"]]
sPO="s63"
def pa_P(t): return [f"s_lshl_b32 {sT1}, {sW}, 10", f"s_add_u32 {sT1}, {sT1}, {WS_FP}", f"v_lshl_add_u32 {vPA2}, {vL}, 7, {sT1}", f"v_lshrrev_b32 {t}, 3, {vL}", f"v_lshl_add_u32 {vPA2}, {t}, 28, {vPA2}"]
def hpoll(i): return [f"s_mul_i32 {sPO}, {sCC[i]}, {14*128}", f"s_add_u32 {sPO}, {sPO}, {i*112*128}"]+poll_issue(f"ph{i}",vPA,sPO)
def hcheck(i): return poll_check(f"ph{i}",vPA,sPO,mask=0xffff)
def hflag(r): return [f"s_add_u32 {sFA}, {sFH0}, {r*112*128}", f"WAITVM h{r}", flag_store(sFA)]

def wfrag(tau,ks): return 128*tau+4*ks
def xread(ks, tag="r"): return f"ds_read_b128 {vr(XR+4*(ks%8),4)}, {vXR[ks%8]} offset:{(ks//8)*16384} ;@{tag}"
def g1_mf(rnd,ks):
    s=ACC+32*((rnd+1)%2); x=vr(XR+4*(ks%8),4) if rnd else vr(128+4*ks,4)
    return [MF32(vr(s+16*t,16), ar(wfrag(t,ks),4), x, vr(s+16*t,16) if ks else "0") for t in range(2)]
def xr_flip(): return [f"v_xor_b32 {r}, {XB}, {r}" for r in vXR]
def h_stores(rnd):
    return [[f"s_mul_i32 {sHS}, {sRR[rnd]}, 229376", f"s_add_u32 {sHS}, {sHS}, {sH0}", f"s_add_u32 {sHS2}, {sHS}, 57344"]]+\
           [[f"buffer_store_dwordx4 {vr(HP[rnd%2]+4*t,4)}, {vL16}, {SWS}, {sHS if t==0 else sHS2} offen sc1 ;@h{rnd}"] for t in range(2)]
def epilogue(rnd):
    s=ACC+32*((rnd+1)%2); c=[]
    for t in range(2):
        for hh in range(2):
            g=[s+16*t+4*hh+i for i in range(4)]; u=[x+8 for x in g]
            A=ET+8*((2*t+hh)%2); Bq=A+4
            for i in range(4): c+=[f"v_mul_f32 v{A+i}, v{g[i]}, v{g[i]}"]
            for i in range(4): c+=[f"v_fma_f32 v{A+i}, v{A+i}, {sGC1}, {vGC0}"]
            for i in range(4): c+=[f"v_mul_f32 v{A+i}, v{A+i}, v{g[i]}"]
            for i in range(4): c+=[f"v_exp_f32 v{A+i}, v{A+i}", f"v_mul_f32 v{Bq+i}, v{g[i]}, v{u[i]}"]
            for i in range(4): c+=[f"v_add_f32 v{A+i}, 1.0, v{A+i}"]
            for i in range(4): c+=[f"v_rcp_f32 v{A+i}, v{A+i}"]
            for i in range(4): c+=[f"v_mul_f32 v{Bq+i}, v{Bq+i}, v{A+i}"]
            c+=[f"v_cvt_pk_bf16_f32 v{HP[rnd%2]+4*t+2*hh}, v{Bq}, v{Bq+1}", f"v_cvt_pk_bf16_f32 v{HP[rnd%2]+4*t+2*hh+1}, v{Bq+2}, v{Bq+3}"]
    return c

def aslot(n): return ar(128*(n%2)+4*(n//2),4)
def vslot(n): return vr(160+4*n,4)
HOME={}
def _homes():
    D=[(i,n) for i in range(4) for n in range(14)]
    for k,(i,n) in enumerate(D): HOME[('D',i,n)]=vslot(k) if k<24 else aslot(k-24)
    for n in range(14):
        HOME[('H',0,n)]=aslot(32+n); HOME[('H',1,n)]=aslot(46+n)
        HOME[('H',2,n)]=vslot(n)
        HOME[('H',3,n)]=vslot(14+n) if n<10 else aslot(n-10)
_homes()
sR7=[f"s{8+i}" for i in range(7)]; sLB={'D':"s15",'H':"s51"}; sLO={'D':"s37",'H':"s55"}
def rot_scalars():
    if not opt.rot7: return [f"s_mov_b32 {sR7[i]}, {2048*i}" for i in range(7)]
    c=[f"s_lshr_b32 {sR7[0]}, {sB2}, 1", f"s_and_b32 {sR7[0]}, {sR7[0]}, 6", f"s_add_u32 {sR7[0]}, {sR7[0]}, {sCG}", f"s_lshl_b32 {sR7[0]}, {sR7[0]}, 11",
       f"s_sub_u32 {sR7[1]}, {sR7[0]}, 14336", f"s_min_u32 {sR7[0]}, {sR7[0]}, {sR7[1]}"]
    for i in range(1,7): c+=[f"s_add_u32 {sR7[i]}, {sR7[i-1]}, 2048", f"s_sub_u32 {sLB['D']}, {sR7[i]}, 14336", f"s_min_u32 {sR7[i]}, {sR7[i]}, {sLB['D']}"]
    return c
def gload(kind,i,ns,lds=None):
    base=sDB if kind=='D' else sHB; B=sLB[kind]; O=sLO[kind]
    g=[]; cur=None
    for n in ns:
        pre=[]
        if cur is None: pre=[f"s_mul_i32 {B}, {sCC[i]}, 14336", f"s_add_u32 {B}, {B}, {base}"]
        if n//2!=cur: pre+=[f"s_add_u32 {O}, {B}, {sR7[n//2]}"]
        cur=n//2
        if lds:
            if n%2==0: pre=[lds(n)]+pre
            if pre: g.append(pre)
            g.append([f"buffer_load_dwordx4 {vL16}, {SWS}, {O} offen offset:{(n%2)*1024} sc1 lds ;@pf"])
            continue
        if pre: g.append(pre)
        g.append([f"buffer_load_dwordx4 {HOME[(kind,i,n)]}, {vL16}, {SWS}, {O} offen offset:{(n%2)*1024} sc1 ;@{kind}{i}_{n}"])
    return g

def fuse(items):
    o=[]; cur=[]
    for it in items:
        cur+=it
        l=it[-1]; l=l if isinstance(l,str) else l.text
        if l.startswith("buffer"): o.append(cur); cur=[]
    if cur: o.append(cur)
    return o
def round0():
    xf=lambda ks: vr(128+4*ks,4)
    def trw(i):
        return [f"ds_read_b64_tr_b16 {ar(wfrag(t,4*i+ks)+2*u,2)}, {vWT[t]} offset:{(i%4)*16384+ks*4096+u*512} ;@t{i}" for ks in range(4) for t in range(2) for u in range(2)]
    xr=[f"ds_read_b128 {xf(ks)}, {vXR[ks%8]} offset:{(ks//8)*16384} ;@x" for ks in range(32)]
    E=lambda items,lo,hi,prio=3: Stream(items,lo,hi,eager=True,prio=prio)
    ch=lambda n: [m+f" ;need t{n}" for ks in range(4*n,4*n+4) for m in g1_mf(0,ks)]
    def grp(L):
        out=[]; cur=[]
        for x in L:
            cur.append(x)
            if not (x.startswith("s_") and sT1 in x.split(",")[0]): out.append(cur); cur=[]
        return out
    hr=h_reads(); no=nonce(); sd=start_dmas(); gs=g_scalars(); gv,gsc=g_setup()
    tp=t_pack(False); rp=r_pack(); rs=r_store(); rs[0]=rs[0][1:]
    mf=p0_mf(xf)+ch(0)+ch(1)+h_mf()+[m for n in range(2,8) for m in ch(n)]
    b01,b23,b45,b67,bx=opt.b01,43,59,75,91
    if opt.xsplit:
        c=["WAITVM x0q0,x0q1","WAITLG all","s_barrier"]+stamp("x0")+xr[:6]
        pre={8:["WAITVM x0q2,x0q3","s_barrier"]}; bXA=20
        st=[E(one(xr[6:16]),0,7),E(one(xr[16:]),8,17)]
    else:
        c=["WAITVM x0q0,x0q1,x0q2,x0q3","WAITLG all","s_barrier"]+stamp("x0")+xr[:6]
        pre={}; bXA=17
        st=[E(one(xr[6:]),0,14)]
    pre[bXA]=["WAITLG x,hw","s_barrier"]+stamp("s1")
    if b01==bXA: pre[bXA]=["WAITVM W0,W1"]+pre[bXA]
    else: pre[b01]=["WAITVM W0,W1","s_barrier"]+stamp("s3")
    pre.update({b23:["WAITLG t1,tw","WAITVM W2,W3","s_barrier"]+stamp("s5"), b45:["WAITLG t3","WAITVM W4,W5","s_barrier"]+stamp("s6"),
                b67:["WAITLG t5","WAITVM W6,W7","s_barrier"]+stamp("s8"), bx:["WAITLG t7","WAITVM x1q0","s_barrier"]+stamp("s10")})
    if opt.gpre: gv=[]; gsc=[]
    st+=[E(([] if opt.hpre else grp(gen_H(48)))+grp(gv),0,15,1), E(p0_addr()+no[8:]+one(gs[:10]),6,31,0)]
    st+=[E(one(trw(0)+trw(1)),b01,36), E(one(hr[2:3]),37,39), E(one(hr[3:4]),38,39), E(one(hr[4:]),40,42), E(one(hr[:2]),b23,b23+1,4)]
    st+=[E(one(tp[:12]),33,36,2), E([tp[12:13]],36,37), E(one(tp[13:25]),36,39,2), E([tp[25:]],39,40)]
    st+=[E(one(trw(2)+trw(3)),44,53), E(one([f"v_xor_b32 {vWT[t]}, {XB}, {vWT[t]}" for t in range(2)]),57,58,1)]
    st+=[E(one(rp[:4]+rp[5:9]),53,55,6), E([rp[4:5]],55,56), E([rp[9:]],56,57), E([r_back()],57,58)]
    st+=[Stream(one(trw(4)+trw(5)),b45,b45+12,prio=3), Stream(one(trw(6)+trw(7)),b67,b67+12,prio=3), E(one([xread(k_) for k_ in range(4)]),bx+1,bx+5)]
    dr=["WAITVM Wd"]+[f"ds_read_b64_tr_b16 {vr(128+4*i+2*u,2)}, {vWT[2+i]} offset:{u*1024} ;@dr" for i in range(2) for u in range(2)]
    ds=[f"buffer_store_dwordx4 v[128:131], {vL16}, {SWS}, {sLD} offen sc1 ;@Dst", f"buffer_store_dwordx4 v[132:135], {vL16}, {SWS}, {sHS} offen sc1 ;@Dst"]
    st+=[E([dr],opt.dsg-4,opt.dsg-3,4), Stream(rs,opt.rsg,opt.rsg+4,prio=6,pace=2), Stream(one(ds),opt.dsg,opt.dsg+4,prio=6,pace=2)]
    st+=[Stream(grp(gsc),40,opt.dsg-1), Stream(flag_R_addr(sFHS)+no[:8]+one(xr_flip()),60,88), Stream(one(gs[10:]),62,100)]
    if opt.fbar==3:
        pre[bx]=["WAITVM Rst,Dst" if opt.dearly else "WAITVM Rst"]+pre[bx]; st.append(E([[flag_store(sFHS)]],bx,bx+1,4))
    dm=[]
    for it in sd[opt.npre:]:
        if "@W4" in it[-1] and bXA not in dm: dm.append(bXA)
        dm.append(it)
    dm+=[32,set_xs(1),b23]+dma_x(XB,0,"x1q0")+dma_x(XB,1,"x1q1")+[b45]+dma_x(XB,2,"x1q2")+dma_x(XB,3,"x1q3")
    dm+=[set_xs(2),max(b67,opt.x2g)]+dma_x(XA,0,"x2")+dma_x(XA,1,"x2")+[bx]+dma_x(XA,2,"x2")+dma_x(XA,3,"x2")
    D=Stream(dm,opt.p0d,100,prio=5,pace=opt.pace0/10); D.carry=True; D.slip=4
    D.deadlines({"W0":b01-1,"W1":b01-1,"Wd":opt.dsg-5,"W2":b23-1,"W3":b23-1,"W4":b45-1,"W5":b45-1,"W6":b67-1,"W7":b67-1,"x1q0":bx-1,"x1q1":100,"x1q2":100,"x1q3":100},0); st.append(D)
    c+=schedule(mf,st,pre,report=rep)
    c+=[f"v_mov_b32 {vGC0}, {f2u(-2*math.sqrt(2/math.pi)*math.log2(math.e))}"]
    return c,D.items[D.pos:]

def dloads(a,b):
    o=[]
    for i in range(4):
        ns=[k-14*i for k in range(a,b) if 14*i<=k<14*i+14]
        if ns: o+=gload('D',i,ns)
    return o
def rounds(left):
    mf=[]; pre={}; st=[]
    for r in (1,2,3):
        o=64*(r-1)
        mf+=[m for ks in range(32) for m in g1_mf(r,ks)]
        for k4 in range(8):
            g0=o+8*k4
            if k4<7: st.append(Stream(one([xread(k) for k in range(4*k4+4,4*k4+8)]),g0,g0+4,prio=3))
            elif r<3:
                pre[g0]=["WAITLG r",f"WAITVM x{r+1}","s_barrier"]
                st.append(Stream(one(xr_flip()[:4]),o+46,o+55,prio=2))
                st.append(Stream(one([xread(k) for k in range(4)]),g0,g0+4,prio=3))
                st.append(Stream(one(xr_flip()[4:]),o+56,o+64,prio=2))
        st.append(Stream(one(epilogue(r-1)),o+2,o+{1:opt.hb1,2:opt.hb2,3:opt.hb3}[r],eager=True))
        if r>1: pre.setdefault(o,[]).extend(stamp(f"r{r-1}"))
    pre[8]=["WAITVM x1q1","s_barrier"]; pre[24]=["WAITVM x1q3","s_barrier"]
    if opt.fbar>3:
        pre[opt.fbar]=["WAITVM Rst,Dst" if opt.dearly else "WAITVM Rst"]+pre.get(opt.fbar,["s_barrier"]); st.append(Stream([[flag_store(sFHS)]],opt.fbar,opt.fbar+1,prio=4))
    if not opt.dearly:
      pre[opt.fdb]=["WAITVM Dst"]+pre.get(opt.fdb,["s_barrier"])
      st.append(Stream([[f"s_add_u32 {sT2}, {sFHS}, {WS_FD-WS_FR}",flag_store(sT2)]],opt.fdg-1,opt.fdg+1,prio=4)); assert opt.fdg>opt.fdb
    pre[opt.pdb]=stamp("pdA")+poll_check("pd",vPA2,mask=0x7f7f)+pre.get(opt.pdb,["s_barrier"])+stamp("pdB")
    for k in (40,108,150,166): pre[k]=pre.get(k,[])+stamp(f"m{k}")
    x3=[set_xs(3)]
    for kq in range(4): x3+=dma_x(XB,kq,"x3")
    n4=opt.nd4
    def mark(items,k0):
        o=[]; k=k0
        for it in items:
            if it[-1].startswith("buffer"):
                if k>=24: o.append(128+(k-24))
                k+=1
            o.append(it)
        return o
    left=list(left)
    st.append(Stream(one(cons_scalars()+rot_scalars())+pa_setup(),opt.csg,opt.csg+19,prio=2)); assert opt.pdi>=opt.csg+19
    a1,a2,a3,a4,a5=[int(x) for x in opt.nds.split(".")]
    h0=gload('H',0,range(opt.nh3))
    def markh(items):
        o=[]; k=32
        for it in items:
            if it[-1].startswith("buffer"): o.append(128+k); k+=1
            o.append(it)
        return o
    st.append(Stream([poll_issue("pd",vPA2)],opt.pdi,opt.pdi+2,prio=3))
    vm=left+([opt.pdb]+dloads(0,a1) if a1 else [])+[opt.hb1]+h_stores(0)+([opt.pdb]+dloads(a1,a2) if a2>a1 else [])+[56]+x3+[opt.pdb]+mark(dloads(a2,a3),a2)
    vm+=[64+opt.hb2]+h_stores(1)+mark(dloads(a3,a4),a3)
    if opt.nh3: vm+=[hpoll(0)]+mark(dloads(a4,a5),a4)+[hcheck(0)]+markh(h0)+[128+opt.hb3]+h_stores(2)+mark(dloads(a5,n4),a5)
    else: vm+=[128+opt.hb3]+h_stores(2)+mark(dloads(a4,a5),a4)+[hpoll(0)]+mark(dloads(a5,n4),a5)
    st.append(Stream(vm,0,192,prio=1,pace=opt.pace1/10))
    for r,gp in ((0,64+opt.f0),(1,128+opt.f1)): st.append(Stream([hflag(r)],gp-1,gp,prio=4))
    return schedule(mf,st,pre,report=rep)

sFA,sFB2="s39","s29"
A2={(0,0):64,(1,0):80,(0,1):96,(1,1):112}
FI=128; UA=[32,48]; YA=[32,144]; PK=["v[8:11]","v[24:27]","v[128:131]","v[132:135]"]; PKR=[8,24,128,132]
def gslot(js,at): return 128*((2*js+at)%2)+4*((32+2*js+at)//2)
RSL=list(range(40,46))+list(range(60,64))+list(range(46,52))
def gen_Finv():
    T=64; S=72
    c=["v_and_b32 v56, 31, v0", f"s_lshl_b32 {sT2}, {sCG}, 5", f"v_add_u32 v56, {sT2}, v56", "v_cvt_f32_u32 v56, v56", f"v_mul_f32 v56, {f2u(1/512)}, v56",
       "v_lshrrev_b32 v57, 5, v0", f"s_lshl_b32 {sT2}, {sP}, 7", f"s_add_u32 {sT2}, {sT2}, {sQ}", f"v_lshl_add_u32 v57, v57, 3, {sT2}",
       "v_and_b32 v58, 1, v0", "v_cvt_f32_u32 v58, v58", "v_fma_f32 v58, v58, -2.0, 1.0", "v_min_u32 v59, 1, v57", "v_cvt_f32_u32 v59, v59",
       "v_cvt_f32_u32 v57, v57", "v_fma_f32 v58, -v59, v58, v58", "v_mul_f32 v57, v57, v56",
       f"v_mul_f32 v59, {f2u(32.0)}, v56", "v_cos_f32 v59, v59"]
    for half in range(2):
        Cc=[32,36]; Ss=[40,44]; An=48
        for s in range(2):
            for i in range(4): c+=[f"v_fmamk_f32 v{An+i}, v56, {f2u(32*s+16*half+2*i)}, v57"]
            for i in range(4): c+=[f"v_cos_f32 v{Cc[s]+i}, v{An+i}", f"v_sin_f32 v{Ss[s]+i}, v{An+i}"]
        if half==0: c+=["v_add_f32 v59, v59, v59", f"v_add_f32 v52, v{Ss[0]}, v58"]
        for s in range(4):
            cur=s%2
            if s>=2:
                for X in (Cc,Ss):
                    for i in range(4): c+=[f"v_fma_f32 v{X[cur]+i}, v59, v{X[1-cur]+i}, -v{X[cur]+i}"]
            for ct,X in enumerate((Cc,Ss)):
                kap=4*(s//2)+2*ct+s%2
                for i in range(2):
                    lo=f"v{X[cur]+2*i}"
                    if half==0 and s==0 and ct==1 and i==0: lo="v52"
                    c+=[f"v_cvt_pk_bf16_f32 v{FI+4*kap+2*half+i}, {lo}, v{X[cur]+2*i+1}"]
    return c
def tr_pattern(dst, tmp, base):
    return [f"v_lshrrev_b32 {dst}, 5, v0", f"v_lshlrev_b32 {dst}, 9, {dst}", f"v_bfe_u32 {tmp}, v0, 2, 2", f"v_lshl_add_u32 {dst}, {tmp}, 7, {dst}",
            f"v_bfe_u32 {tmp}, v0, 4, 1", f"v_lshl_add_u32 {dst}, {tmp}, 5, {dst}", f"v_and_b32 {tmp}, 3, v0", f"v_lshl_add_u32 {dst}, {tmp}, 3, {dst}",
            f"v_bfe_u32 {tmp}, v0, 3, 1", f"v_lshl_add_u32 {dst}, {tmp}, 6, {dst}", f"v_add_u32 {dst}, {base}, {dst}"]
def xr_private():
    c=["v_and_b32 v8, 31, v0", f"v_lshl_add_u32 v8, v8, 8, {sM16K}", "v_lshrrev_b32 v9, 5, v0", "v_and_b32 v10, 15, v0", "v_xor_b32 v9, v9, v10", f"v_lshl_add_u32 {vXR[0]}, v9, 4, v8"]
    return c+[f"v_xor_b32 {vXR[i]}, {32*i}, {vXR[0]}" for i in range(1,8)]
def dma_rp():
    g=[[f"s_lshl_b32 {sHS}, {sB2}, 16", f"s_add_u32 {sHS}, {sHS}, {WS_RP}", (f"s_lshl_b32 {sHS2}, {sCG}, 10" if opt.rot7 else f"s_mov_b32 {sHS2}, 0"), f"s_and_b32 {sHS2}, {sHS2}, 6144"]]
    for i in range(16):
        if i%2==0:
            g.append(([f"s_add_u32 {sHS2}, {sHS2}, 2048", f"s_and_b32 {sHS2}, {sHS2}, 6144"] if i else [])+[f"s_add_u32 {sT0}, {sHS2}, {sM16K}"]+([f"s_add_u32 {sT0}, {sT0}, 8192"] if i>=8 else []))
            g.append([f"s_mov_b32 m0, {sT0}", f"s_add_u32 {sT0}, {sT0}, {sHS}"])
        g.append([f"buffer_load_dwordx4 {vL16}, {SWS}, {sT0} offen offset:{(i%2)*1024} sc1 lds ;@RP{i//8}"])
    return g
GH={}
def gemm2():
    mf=[]; pre={}; P={}
    def addpre(i,x): pre.setdefault(i,[]).extend(x)
    use={}
    for seg in opt.seq:
        P[seg]=len(mf)
        if seg=="v":
            for jt in range(2):
                for k in range(8):
                    d=vr(UA[jt],16); mf.append(MF32(d, aslot(RSL[8*jt+k]), vr(FI+4*k,4), d if k else "0")+f" ;need u{jt}")
            for js in range(4):
                for at in range(2):
                    d=vr(YA[at],16); mf.append(MF32(d, PK[js], ar(gslot(js,at),4), d if js else "0")+" ;need gr")
            continue
        i=int(seg)
        order=[(fb,at,dt) for at in range(2) for dt in range(2) for fb in range(7)] if seg==opt.seq[-1] else [(fb,at,dt) for fb in range(7) for at in range(2) for dt in range(2)]
        for fb,at,dt in order:
            if True:
                for t in (f"D{i}_{2*fb+dt}",f"H{i}_{2*fb+at}"): use.setdefault(t,len(mf))
                d=vr(A2[dt,at],16); mf.append(MF32(d, HOME[('D',i,2*fb+dt)], HOME[('H',i,2*fb+at)], "0" if (i==0 and fb==0) else d)+f" ;need D{i}_{2*fb+dt},H{i}_{2*fb+at}")
    N=len(mf); U0=P["v"]; Y0=U0+16
    def grp(L):
        out=[]; cur=[]
        for x in L:
            cur.append(x)
            if not x.startswith("s_"): out.append(cur); cur=[]
        return out
    ep=epilogue(3)
    dre=fuse(dloads(opt.nd4,56)); h0=fuse(gload('H',0,range(opt.nh3,14)))
    k1=opt.hk1; nd=min(len(dre),opt.hn3)
    head=ep[:k1]+([] if opt.nh3 else hcheck(0))+stamp("gh0")+sprinkle(ep[k1:],h0[:opt.f2i]+([hflag(2)] if opt.f2i<99 else [])+h0[opt.f2i:opt.p1i]+[hpoll(1)]+h0[opt.p1i:],opt.hsp)+flat(h_stores(3))+(hflag(2) if opt.f2i>=99 else [])+stamp("ghd")
    GH['h']=fuse(gload('H',0,range(14)))
    c=head+["L_g2:"]
    st=[]
    gl=[[f"s_lshl_b32 {sT0}, {sB2}, 9", f"s_add_u32 {sT0}, {sT0}, {WS_G}"],[f"buffer_load_dword {vG[0]}, v11, {SWS}, {sT0} offen sc1 ;@g"],[f"buffer_load_dword {vG[1]}, v11, {SWS}, {sT0} offen offset:256 sc1 ;@g"]]
    dleft=list(range(opt.nd4+nd+opt.dfill,56))
    def gl1(kind,i,n): return flat(gload(kind,i,[n]))
    def cls(i,last):
        ns=list(range(0,14,2))+list(range(1,14,2)) if last else list(range(14))
        dn=[k-14*i for k in dleft if k//14==i]
        if not dn: return fuse(gload('H',i,ns)),[]
        return None,(ns,dn)
    def merged(i,last):
        ns=list(range(0,14,2))+list(range(1,14,2)) if last else list(range(14))
        hs=fuse(gload('H',i,ns)); dn=sorted([k-14*i for k in dleft if k//14==i],key=lambda n: use[f'D{i}_{n}'])
        ds_=fuse(gload('D',i,dn)) if dn else []
        both=[(use[f"H{i}_{n}"],1,it) for n,it in zip(ns,hs)]+[(use[f"D{i}_{n}"],0,it) for n,it in zip(dn,ds_)]
        pre_=[it for u,k,it in both if k==0][:opt.dlead]
        return pre_,[it for u,k,it in sorted(both,key=lambda t:t[:2]) if it not in pre_]
    b0=dre[:nd]+[hcheck(1)]+merged(1,False)[1]+dre[nd:nd+opt.dfill]
    b0=b0[:opt.f3i]+[opt.f3,[f"s_add_u32 {sFA}, {sFA}, {112*128}","WAITVM h3",flag_store(sFA)]]+b0[opt.f3i:]
    blocks=[b0]; polls=[]
    for seg in opt.seq[2:]:
        if seg=="v": polls.append((poll_issue("pp",vPA2),poll_check("pp",vPA2,mask=0xff)+["s_barrier"],14)); blocks.append(dma_rp()+gl)
        else:
            i=int(seg); p_,m_=merged(i,seg==opt.seq[-1]); blocks[-1]=blocks[-1]+p_
            polls.append((hpoll(i),hcheck(i),28*(i-1))); blocks.append(m_)
    vm=[]
    for n,b in enumerate(blocks):
        if n<len(polls):
            k=max(0,len(b)-opt.plead); vm+=b[:k]+[14,polls[n][0]]+b[k:]+[polls[n][2],polls[n][1]]
        else: vm+=b
    use["RP0"]=U0-4; use["RP1"]=U0+2; use["g"]=Y0
    V=Stream(vm,0,N-4,prio=2,pace=opt.pace2/10); V.deadlines(use,opt.win); st.append(V)
    setup=xr_private()+pa_P('v9')+["v_and_b32 v11, 31, v0","v_and_b32 v10, 16, v0","v_add_u32 v11, v11, v10","v_lshlrev_b32 v11, 2, v11"]+["v_lshrrev_b32 v9, 5, v0","v_bfe_u32 v10, v0, 2, 2","v_lshl_add_u32 v9, v9, 2, v10",f"v_mul_u32_u24 {vTP}, {HS}, v9","v_bfe_u32 v9, v0, 4, 1",f"v_lshl_add_u32 {vTP}, v9, 5, {vTP}",
       "v_and_b32 v9, 3, v0",f"v_lshl_add_u32 {vTP}, v9, 3, {vTP}",f"v_add_u32 {vTP}, {L_H}, {vTP}"]
    grd=[f"ds_read_b64_tr_b16 {ar(gslot(js,at)+2*u,2)}, {vTP} offset:{(16*js+8*u)*HS+64*at} ;@gr" for js in range(4) for at in range(2) for u in range(2)]
    st.append(Stream(grp(setup),0,14,eager=True,prio=1))
    st.append(Stream(one(grd),30,44))
    st.append(Stream(grp(gen_Finv()),4,54,eager=True))
    for jt in range(2):
        rd=[f"ds_read_b128 {aslot(RSL[8*jt+k])}, {vXR[k]} offset:{jt*8192} ;@u{jt}" for k in range(8)]
        lo=U0-4+8*jt-2*jt
        st.append(Stream([[f"WAITVM RP{jt}",rd[0]]]+one(rd[1:]),lo,lo+4,eager=True,prio=3))
    for jt in range(2):
        cv=[f"v_cvt_pk_bf16_f32 v{PKR[2*jt+e//4]+e%4}, v{UA[jt]+2*e}, v{UA[jt]+2*e+1}" for e in range(8)]
        lo=U0+8*jt+10-jt
        st.append(Stream(one(cv),lo,lo+2,eager=True,prio=3))
    om=[[f"s_lshl_b32 {sT2}, {sQ}, 31"]]+one([f"v_sub_f32 {vOMG[0][at]}, 1.0, {vG[at]}" for at in range(2)]+[f"v_xor_b32 {vOMG[1][at]}, {sT2}, {vOMG[0][at]}" for at in range(2)])
    st.append(Stream(om,Y0+4,Y0+8))
    sc=[f"v_mul_f32 v{YA[at]+i}, {vG[at]}, v{YA[at]+i}" for at in range(2) for i in range(16)]
    vlast=opt.seq[-1]=="v"
    st.append(Stream(one(sc),Y0+10,Y0+16,eager=True,prio=3))
    assert not vlast
    def fin(at,dt):
        o=[]
        for q in range(4):
            a=A2[dt,at]+4*q; y=YA[at]+4*q
            o+=[f"v_fma_f32 v{a+i}, v{a+i}, {vOMG[dt][at]}, v{y+i}" for i in range(4)]
            o+=[f"ds_write_b128 {vXR[4*dt+q]}, {vr(a,4)} offset:{at*8192} ;@fw{at}"]
        return o
    fa=["v_lshrrev_b32 v136, 3, v0","v_and_b32 v137, 7, v0", f"s_lshl_b32 {sT1}, {sW}, 3", f"v_add_u32 v136, {sT1}, v136", "v_lshlrev_b32 v138, 1, v137","v_xor_b32 v138, v138, v136","v_and_b32 v138, 15, v138",
        "v_lshlrev_b32 v138, 4, v138","v_lshl_add_u32 v138, v136, 8, v138", "v_xor_b32 v139, 16, v138",
        "v_lshlrev_b32 v140, 15, v136","v_and_b32 v141, 3, v0","v_lshl_add_u32 v140, v141, 4, v140","v_bfe_u32 v141, v0, 2, 1","v_lshl_add_u32 v140, v141, 9, v140",
        "v_lshlrev_b32 v141, 31, v141","v_or_b32 v141, 1.0, v141",
        f"s_lshl_b32 {sT2}, {sB2}, 10", f"s_lshl_b32 {sT3}, {sCG}, 6", f"s_add_u32 {sT2}, {sT2}, {sT3}", f"s_add_u32 {sT3}, {sT2}, {32*32768}"]
    def frd(at,b): return [f"ds_read_b128 {vr(b+8*pw+4*e,4)}, v{138+e} offset:{pw*16384+at*8192} ;@fr" for pw in range(4) for e in range(2)]
    def fsum(at,b,pkd):
        o=[]
        if pkd:
            for i in range(4): o+=[f"v_pk_add_f32 {vr(b+2*i,2)}, {vr(b+2*i,2)}, {vr(b+16+2*i,2)}", f"v_pk_add_f32 {vr(b+8+2*i,2)}, {vr(b+8+2*i,2)}, {vr(b+24+2*i,2)}"]
        else:
            for i in range(16): o+=[f"v_add_f32 v{b+i}, v{b+i}, v{b+16+i}"]
        o+=[f"v_fmac_f32 v{b+i}, v141, v{b+8+i}" for i in range(8)]
        o+=[f"v_cvt_pk_bf16_f32 v{b+8+i}, v{b+2*i}, v{b+2*i+1}" for i in range(4)]
        return o+[f"buffer_store_dwordx4 {vr(b+8,4)}, v140, {SOUT}, {sT2 if at==0 else sT3} offen {opt.outf} ;@out"]
    st.append(Stream(grp(fa[:17])+one(fa[17:]),Y0+8,N-16))
    for n,(at,dt) in enumerate(((0,0),(0,1),(1,0))):
        lo=N-28+7*n+8
        st.append(Stream(one(fin(at,dt)),lo,min(lo+8,N),eager=True,prio=3-n))
    for k,nm in ((28,"g28"),(56,"g56"),(P[opt.seq[3]],"g84"),(P[opt.seq[4]],"g108")): addpre(k,stamp(nm))
    addpre(N-2,["WAITLG fw0","s_barrier"])
    c+=schedule(mf,st,pre,report=rep)
    c+=stamp("gend")
    f0=fsum(0,64,True); f11=fin(1,1)
    c+=frd(0,64)+f11+f0+["WAITLG fw1","s_barrier"]+stamp("red")+frd(1,32)+fsum(1,32,True)
    return c

MS=list(range(20,32))+list(range(60,64)); XS=list(range(20))+list(range(32,44))
def areg(n): return 128*(n%2)+4*(n//2)
def csv(i): return f'a{areg(32+i//4)+i%4}'
CP1,CQ,CR1,CU,CP2,CR2=[128+16*i for i in range(6)]
CX=224
ZP=96; DD=32; RAW=192
def pk(op,d,a,b,cc=None,nega=False,negb=False):
    s=f"v_pk_{op}_f32 {vr(d,2)}, {vr(a,2)}, {vr(b,2)}"+(f", {vr(cc,2)}" if cc is not None else "")
    n=3 if cc is not None else 2
    if nega or negb:
        m="["+",".join(["1" if nega else "0","1" if negb else "0","0"][:n])+"]"
        s+=f" neg_lo:{m} neg_hi:{m}"
    return s
def p2_wloads():
    sST,sBH,sCU="s16","s17","s18"
    su=[f"s_cmp_eq_u32 {sP}, 0", "s_cselect_b32 s8, s32, s36", "s_cselect_b32 s9, s33, s37", "s_mov_b32 s10, 1052672", "s_mov_b32 s11, 0x20000",
        f"s_sub_i32 {sCU}, 1984, {sB}", f"s_sub_i32 {sBH}, {1984-1024}, {sOH}", f"s_add_i32 {sT1}, {sOH}, 1024",
        f"s_cmp_eq_u32 {sQ}, 0", f"s_cselect_b32 {sCU}, {sB}, {sCU}", f"s_cselect_b32 {sBH}, {sT1}, {sBH}", f"s_cselect_b32 {sST}, 1, -1",
        f"s_mul_i32 {sCU}, {sCU}, 514", f"s_mul_i32 {sBH}, {sBH}, 514", f"s_add_u32 {sCU}, {sCU}, 2", f"s_and_b32 {sCU}, {sCU}, -4", f"s_add_u32 {sBH}, {sBH}, 2", f"s_and_b32 {sBH}, {sBH}, -4", f"s_mul_i32 {sST}, {sST}, 65792",
        "v_lshrrev_b32 v153, 5, v0", f"v_or_b32 v20, {sB}, v153", "v_min_u32 v20, 1, v20", "v_xor_b32 v20, 1, v20",
        f"v_xor_b32 v153, {sQ}, v153", "v_mul_u32_u24 v153, 32896, v153", "v_and_b32 v152, 31, v0", "v_lshl_add_u32 v152, v152, 4, v153",
        f"s_mul_i32 {sT1}, {sQ}, {1024*514}", f"v_mul_lo_u32 v153, v20, {sT1}", f"v_add_u32 v154, {sCU}, v152", "v_sub_u32 v154, v154, v153"]
    g=[[f"s_add_u32 m0, {sM16K}, {XB}", "s_nop 0", f"buffer_load_dwordx4 v154, {SWG}, 0 offen lds ;@wf"]]
    for i in range(1,16):
        g.append([f"s_add_u32 m0, {sM16K}, {XB+i*1024}", f"s_add_u32 {sCU}, {sCU}, {sST}" if i!=8 else f"s_mov_b32 {sCU}, {sBH}", f"buffer_load_dwordx4 v152, {SWG}, {sCU} offen lds ;@wf"])
    g.append(["v_and_b32 v154, 31, v0", "v_lshrrev_b32 v155, 4, v154", f"s_sub_i32 {sT1}, {sOH}, {sB}", f"v_mul_i32_i24 v155, {sT1}, v155", "v_lshl_add_u32 v154, v154, 6, v155",
              f"v_add_u32 v157, {sB}, v154", "v_sub_u32 v155, 2048, v157", "v_lshrrev_b32 v21, 11, v155", "v_lshrrev_b32 v155, v21, v155",
              "v_sub_u32 v155, v155, v157", "v_lshrrev_b32 v154, 5, v0", "v_mul_i32_i24 v155, v155, v154", "v_add_u32 v155, v155, v157",
              "v_mul_u32_u24 v155, 514, v155", f"s_lshl_b32 {sT1}, {sQ}, 9", f"buffer_load_ushort v8, v155, {SWG}, {sT1} offen ;@wf"])
    return su,g
def p2_consts():
    Cc,Ss,O=132,136,140
    c=[f"s_cmp_eq_u32 {sB}, 0", f"s_cselect_b32 {sHS2}, 1.0, 0",
       "v_and_b32 v128, 31, v0", "v_lshrrev_b32 v129, 4, v128", f"s_sub_i32 {sHS}, {sOH}, {sB}", f"v_mul_i32_i24 v130, {sHS}, v129", "v_lshl_add_u32 v130, v128, 6, v130",
       f"v_add_u32 v130, {sB}, v130",
       "v_cmp_eq_u32 vcc, 0, v130", "v_cvt_f32_u32 v130, v130", f"v_mul_f32 v130, {f2u(1/2048)}, v130",
       "v_cvt_f32_u32 v129, v129", f"v_mul_f32 v149, {sHS2}, v129", "v_sub_f32 v148, 1.0, v149", f"v_sub_f32 v150, 1.0, {sHS2}",
       "v_cndmask_b32 v151, 0, 1.0, vcc",
       "v_lshrrev_b32 v131, 5, v0", f"s_lshl_b32 {sHS}, {sW}, 3", f"v_lshl_add_u32 v129, v131, 1, {sHS}", "v_cvt_f32_u32 v129, v129", "v_mul_f32 v129, v129, v130",
       ]
    def blocks(fwd):
        o=[]; O=164 if fwd else 172
        for j in range(4):
            C,S=f"v{Cc+j}",f"v{Ss+j}"
            o+=[f"v_mul_f32 v160, v148, {C}", f"v_mul_f32 v161, v149, {C}", f"v_mul_f32 v162, v148, {S}", f"v_mul_f32 v163, v150, {C}",
                f"v_fma_f32 v161, -{S}, v150, v161", f"v_fmac_f32 v163, v149, {S}"]
            if fwd: o+=[f"v_cvt_pk_bf16_f32 v{O+j}, v160, v161", f"v_cvt_pk_bf16_f32 v{O+4+j}, v162, v163"]
            else:   o+=[f"v_cvt_pk_bf16_f32 v{O+j}, v160, v162", f"v_cvt_pk_bf16_f32 v{O+4+j}, v161, v163"]
        return o
    for j in range(4): c+=[f"v_fmamk_f32 v{Ss+j}, v130, {f2u(4*(j//2)+j%2)}, v129"]
    for j in range(4): c+=[f"v_cos_f32 v{Cc+j}, v{Ss+j}", f"v_sin_f32 v{Ss+j}, v{Ss+j}"]
    for j in range(4): c+=[f"v_add_f32 v{Ss+j}, v{Ss+j}, v151" if j%2==0 else f"v_sub_f32 v{Ss+j}, v{Ss+j}, v151"]
    c+=blocks(True)
    c+=[f"s_cmp_ge_u32 {sW}, 2", f"s_cselect_b32 {sHS}, {sOH}, {sB}", f"s_cselect_b32 {sLD}, {sHS2}, 0", f"v_mov_b32 v149, {sLD}",
        f"s_lshl_b32 {sLD}, {sW}, 9", f"s_add_i32 {sHS}, {sHS}, {sLD}", f"v_lshl_add_u32 v129, v131, 8, {sHS}",
        "v_cmp_eq_u32 vcc, 0, v129", "v_cvt_f32_u32 v129, v129", "v_cvt_f32_u32 v130, v128", f"v_mul_f32 v130, {f2u(1/2048)}, v130", "v_mul_f32 v129, v129, v130",
        "v_and_b32 v151, 1, v0", "v_cvt_f32_u32 v151, v151", "v_fma_f32 v151, v151, -2.0, 1.0", "v_cndmask_b32 v151, 0, v151, vcc",
        "v_sub_f32 v148, 1.0, v149"]+[f"v_mul_f32 v{r}, {f2u(2.0**-19)}, v{r}" for r in (148,149,150)]
    for j in range(4): c+=[f"v_fmamk_f32 v{Ss+j}, v130, {f2u(64*j)}, v129"]
    for j in range(4): c+=[f"v_cos_f32 v{Cc+j}, v{Ss+j}", f"v_sin_f32 v{Ss+j}, v{Ss+j}"]
    c+=[f"v_add_f32 v{Ss}, v{Ss}, v151"]
    c+=blocks(False)
    return c
def p2_raw(gam):
    return [f"ds_read_u16_d16_hi v{RAW+16*arr+rho}, v122 offset:{arr*16384+(8*(rho//4)+rho%4)*512+2*gam} ;@raw" for r2 in range(8) for arr in range(4) for rho in (2*r2,2*r2+1)]
def p2_coefs(gam):
    X=104; c=[]
    for r2 in range(8):
        rt,rm,it,im=[RAW+16*a+2*r2 for a in range(4)]
        c+=[pk("add",CP1+2*r2,rt,rm), pk("add",CU+2*r2,rt,rm,negb=True), pk("add",CQ+2*r2,it,im), pk("add",CR1+2*r2,it,im,negb=True)]
        if r2==0:
            c+=[f"v_fma_f32 v{CP1}, v121, v{rm}, v{rt}", f"v_fma_f32 v{CQ}, v121, v{im}, v{it}", f"v_mul_f32 v{CR1}, v121, v{CR1}", f"v_mul_f32 v{CU}, v121, v{CU}",
                f"v_fma_f32 v{X}, v121, v{rt}, v{rm}", f"v_mov_b32 v{X+1}, v{CP1+1}", f"v_fma_f32 v{X+2}, v121, v{it}, v{im}", f"v_mov_b32 v{X+3}, v{CQ+1}"]
    if gam==1:
        return c, [f"v_accvgpr_write_b32 {csv(i)}, v{128+i}" for i in range(64)]+[f"v_accvgpr_write_b32 {csv(64+i)}, v{X+i}" for i in range(4)]
    mv=lambda d,s_: f"v_mov_b64 {vr(d,2)}, {vr(s_,2)}"
    c+=[mv(CX,X),mv(CX+2,X+2),mv(CX+4,X)]+[mv(CP2+2*i,CP1+2*i) for i in range(8)]+[mv(CR2+2*i,CR1+2*i) for i in range(8)]
    lab[0]+=1; n=lab[0]
    c+=[f"s_cmp_lg_u32 {sW}, 0", f"s_cbranch_scc1 L_nr{n}"]
    NY=L_NY; NR=L_NR
    s=["v_and_b32 v100, 31, v0","v_lshlrev_b32 v100, 2, v100", f"v_add_u32 v101, {NR}, v100", f"v_add_u32 v100, {NY}, v100"]
    s+=[f"ds_read2_b32 {vr(108+2*w_,2)}, v101 offset0:{64*w_} offset1:{64*w_+32}" for w_ in range(4)]
    s+=["v_cvt_f32_u32 v96, v21","v_sub_f32 v96, 1.0, v96","s_waitcnt lgkmcnt(0)"]
    for o,(re_,im_) in enumerate(((110,114),(108,112))):
        s+=[f"v_fma_f32 v97, v96, v{re_+1}, v{re_}", f"v_fma_f32 v98, v96, v{re_}, v{re_+1}", f"v_sub_f32 v99, v{im_}, v{im_+1}", "v_mul_f32 v99, v96, v99",
            f"ds_write_b32 v100, v97 offset:{384*o}", f"ds_write_b32 v100, v99 offset:{384*o+128}", f"ds_write_b32 v100, v98 offset:{384*o+256}"]
    s+=["v_lshrrev_b32 v100, 5, v0","v_lshlrev_b32 v100, 4, v100",f"v_add_u32 v100, {NY}, v100","s_mov_b32 exec_lo, 1","s_mov_b32 exec_hi, 1"]
    for o,(P,R,Xx) in enumerate(((CP2,CR2,CX+4),(CP1,CR1,CX))):
        for q in range(4): s+=[f"ds_read_b128 {vr(P+4*q,4)}, v100 offset:{384*o+32*q}", f"ds_read_b128 {vr(R+4*q,4)}, v100 offset:{384*o+128+32*q}"]
        s+=[f"ds_read_b64 {vr(Xx,2)}, v100 offset:{384*o+256}"]
    s+=[f"v_mov_b64 {vr(x+2*i,2)}, 0" for x in (CQ,CU) for i in range(8)]+[f"v_mov_b64 {vr(CX+2,2)}, 0"]
    s+=["s_waitcnt lgkmcnt(0)","s_mov_b64 exec, -1", f"L_nr{n}:"]
    return c+s
def p2_ny():
    return [f"s_lshl_b32 {sT1}, {sW}, 8", f"s_add_u32 {sT1}, {sT1}, {L_H+64*HS}", f"v_lshl_add_u32 v100, v0, 2, {sT1}", "v_lshlrev_b32 v8, 16, v8", "v_mul_f32 v8, 0.5, v8", "ds_write_b32 v100, v8 ;@ny"]
def p2_fwd(gam, streams):
    rd=[f"ds_read_b64_tr_b16 {vr(ZP+(ks*2+ct)*4+2*u,2)}, {vWT[2+ct]} offset:{gam*8192+ks*2048+u*1024} ;@b{ks}" for ks in range(4) for ct in range(2) for u in range(2)]
    mf=[]; pre={}
    for ks in range(4):
        pre[4*ks]=[f"WAITLG b{ks}"]
        for ab in range(2):
            for ct in range(2):
                d=vr(DD+32*ab+16*ct,16)
                mf.append(MF32(d, aslot(MS[ks*4+ab]), vr(ZP+(ks*2+ct)*4,4), d if ks else "0"))
    return rd, schedule(mf,streams,pre)
def p2_point(gam):
    c=[]; T=232
    for r2 in range(8):
        r=2*r2
        ac,as_,bc,bs=[DD+16*i+r for i in range(4)]
        p1,q,r1,u=[x+r for x in (CP1,CQ,CR1,CU)]
        p2,r2_=(CP2+r,CR2+r) if gam==0 else (p1,r1)
        p1b,qb,p2b=(CX,CX+2,CX+4 if gam==0 else CX) if r2==0 else (p1,q,p2)
        o=[T+8*(r2%2)+2*i for i in range(4)]
        c+=[pk("mul",o[0],ac,p1), pk("mul",o[1],as_,p2), pk("mul",o[2],bc,p1b), pk("mul",o[3],bs,p2b),
            pk("fma",o[0],as_,q,o[0]), pk("fma",o[1],ac,q,o[1],nega=True), pk("fma",o[2],bs,qb,o[2]), pk("fma",o[3],bc,qb,o[3],nega=True),
            pk("fma",o[0],bc,r1,o[0]), pk("fma",o[1],bs,r2_,o[1]), pk("fma",o[2],ac,r1,o[2],nega=True), pk("fma",o[3],as_,r2_,o[3],nega=True),
            pk("fma",o[0],bs,u,o[0],nega=True), pk("fma",o[1],bc,u,o[1]), pk("fma",o[2],as_,u,o[2]), pk("fma",o[3],ac,u,o[3],nega=True)]
        for ct in range(2):
            for e in range(2): c+=[f"v_cvt_pk_bf16_f32 v{ZP+16*ct+r+e}, v{o[ct]+e}, v{o[2+ct]+e}"]
    return c
def p2_inv(gam, streams):
    mf=[]; st=list(streams); tiles=[(tau,ct) for tau in range(2) for ct in range(2)]
    def pack(tau,ct):
        o=[]
        for sg in range(2):
            s=DD+32*tau+16*ct+8*sg; t=248+4*sg
            o+=[f"v_cvt_pk_bf16_f32 v{t+i}, v{s+2*i}, v{s+2*i+1}" for i in range(4)]
            o+=[f"ds_write_b128 {vXR[2*ct+sg]}, {vr(t,4)} offset:{gam*8192+tau*4096} ;@ow"]
        return o
    for n,(tau,ct) in enumerate(tiles):
        d=vr(DD+32*tau+16*ct,16); k=0
        for ks in range(4):
            mf.append(MF32(d, vr(ZP+16*ct+4*ks,4), aslot(MS[ks*4+2+tau]), d if ks else "0"))
        if n<3: st.append(Stream(one(pack(tau,ct)),4*n+5,min(4*n+9,16),eager=True,prio=2))
    return schedule(mf,st),pack(1,1)
def p2_out(gam, base):
    rd=[f"ds_read_b128 {vr(base+4*i,4)}, {vXR[4+i//4]} offset:{gam*8192+i*1024} ;@or" for i in range(8)]
    stn=[[f"s_add_u32 {sT0}, s39, {gam*16384+(i%4)*524288+(i//4)*256}", f"buffer_store_dwordx4 {vr(base+4*i,4)}, {vXR[6]}, {SWS}, {sT0} offen sc1 ;@P{gam}"] for i in range(8)]
    return rd,stn
def p2():
    c=["L_p2:"]
    wo=["s_mov_b32 s34, 1052672","s_mov_b32 s35, 0x20000","s_mov_b32 s38, 1052672","s_mov_b32 s39, 0x20000", f"s_cmp_eq_u32 {sB}, 0", f"s_cselect_b32 {sOH}, -992, {sB}"]
    gf=gen_F()
    c+=gf[:opt.prek]+["s_waitcnt lgkmcnt(0)","s_mov_b32 s32, s6","s_mov_b32 s33, s7"]+srd_common()+wo
    dm=[]
    for kq in range(4): dm+=dma_x(XA,kq,f"x0q{kq}")
    su,wl=p2_wloads()
    gw=["s_mov_b32 s12, s14","s_mov_b32 s13, s15","s_mov_b32 s14, 1024","s_mov_b32 s15, 0x20000",
        f"v_add_u32 v156, {sXQ[0]}, {vL16}", "v_and_b32 v156, 1023, v156", f"s_mov_b32 m0, {L_GW}", "s_nop 0", f"buffer_load_dwordx4 v156, {SWU}, 0 offen lds ;@x0q3"]
    dm=dm[:4]+wl[:opt.q_e]+dm[4:12]+[eload(),gw]+dm[12:]+wl[opt.q_e:opt.q_np0]
    rest=su+gf[opt.prek:]+xr_addr()+gen_H()
    c+=sprinkle(rest, dm, opt.q_sp)+stamp("gen")
    xf=lambda ks: aslot(XS[ks])
    xr=[f"ds_read_b128 {xf(ks)}, {vXR[ks%8]} offset:{(ks//8)*16384} ;@x" for ks in range(32)]
    c+=["WAITVM x0q3","WAITLG all","s_barrier"]+stamp("x0")+xr[:6]
    def grp(L):
        out=[]
        for x in L:
            if x.startswith("s_cselect") and out: out[-1].append(x)
            else: out.append([x])
        return out
    hr=h_reads(); hm=h_mf(); co=grp(p2_consts())
    GS=[49,50,51,52,54,56,58]+list(range(11,20))
    ga=["v_lshrrev_b32 v22, 4, v0", "v_and_b32 v180, 15, v0", "v_xor_b32 v23, v22, v180", "v_lshlrev_b32 v23, 4, v23", "v_lshl_add_u32 v23, v180, 8, v23", f"v_add_u32 v180, {sM4K}, v23",
        "v_lshlrev_b32 v22, 4, v22", f"v_add_u32 v22, {L_GW}, v22"]+[f"v_xor_b32 v{180+i}, {64*i}, v180" for i in range(1,4)]
    gx=[f"ds_read_b128 {aslot(GS[ks])}, v{180+ks%4} offset:{(ks//4)*16384} ;@gx" for ks in range(16)]
    CO=Stream(co,12,32,eager=True); CO.carry=True
    st=[Stream(one(xr[6:]),0,14,eager=True,prio=3),Stream(one(ga)+p0_addr()+nonce(),0,24,eager=True,prio=1),Stream(one(hr[2:]),27,32,eager=True,prio=3),CO,
        Stream(one(gx[:7])+[20]+one(gx[7:]),14,27,eager=True,prio=2), Stream(wl[opt.q_np0:opt.q_npre],opt.q_wg,32,prio=2,pace=2)]
    c+=schedule(p0_mf(xf),st,{},report=rep)+stamp("p0l")
    co=flat(CO.items[CO.pos:])
    zero=[f"v_mov_b64 {vr(RAW+2*i,2)}, 0" for i in range(32)]
    ra=["v_lshrrev_b32 v120, 5, v0","v_and_b32 v121, 31, v0","v_lshlrev_b32 v121, 2, v121","v_lshl_add_u32 v120, v120, 11, v121", f"s_lshl_b32 {sT1}, {sW}, 7", f"s_add_u32 {sT1}, {sT1}, {XB}",
        f"s_and_b32 {sT0}, {sB}, 1", f"s_lshl_b32 {sT0}, {sT0}, 1", f"s_sub_u32 {sT1}, {sT1}, {sT0}", f"v_add_u32 v122, {sT1}, v120","v_cvt_f32_u32 v121, v20","v_sub_f32 v121, 1.0, v121"]
    c+=sprinkle(ra+t_pack(),wl[opt.q_npre:opt.q_n2],3)+hm[:2]+["WAITLG tw,gx","s_barrier"]+hr[:2]+zero[:16]+hm[2:]+r_pack()+r_back()+zero[16:]+flat(r_store())+stamp("p0")
    c+=[f"s_lshl_b32 {sFHS}, {sB}, 7", f"s_add_u32 {sFHS}, {sFHS}, {WS_FP}", f"s_cmp_eq_u32 {sW}, 0", f"s_cselect_b32 {sFHS}, {sFHS}, 0x40000000",
        f"buffer_store_dwordx2 v[0:1], {vFO}, {SWS}, {sFHS} offen sc1 ;@fl"]+flat(wl[opt.q_n2:])+[f"s_lshl_b32 {sT1}, {sW}, 13", f"s_add_u32 {sT1}, {sT1}, {WS_FR}", f"v_lshl_add_u32 v9, {vL}, 7, {sT1}"]
    c+=flat(flag_R_addr())+co
    c+=[f"s_lshr_b32 {sWC}, {sM4K}, 1", f"s_add_u32 {sT1}, {sWC}, {C0}", f"v_add_u32 v158, {sT1}, {vL16}", f"v_add_u32 v10, {C0}, {vL16}",
        "ds_write_b128 v158, v[164:167] ;@mw", "ds_write_b128 v158, v[168:171] offset:1024 ;@mw", f"ds_write_b128 {vTR}, v[172:175] ;@mw", f"ds_write_b128 {vTR}, v[176:179] offset:1024 ;@mw"]
    mrd=[f"ds_read_b128 {aslot(MS[n])}, v10 offset:{((n//4)*2048 if n%4<2 else 8192+((n//4)^1)*2048)+(n%2)*1024} ;@raw" for n in range(16)]
    gg=[f"ds_read_b128 {vr(128+4*(ks%8),4)}, v22 offset:{ks*64} ;@gg" for ks in range(16)]
    gm=[MF16("v[108:111]", vr(128+4*(ks%8),4), aslot(GS[ks]), "v[108:111]" if ks else "0") for ks in range(16)]
    ge=["v_and_b32 v112, 31, v0","v_lshlrev_b32 v112, 2, v112", f"s_lshl_b32 {sT1}, {sB}, 2", f"s_add_u32 {sT1}, {sT1}, {sW}", f"s_lshl_b32 {sT1}, {sT1}, 7", f"s_add_u32 {sT3}, {sT1}, {WS_G}",
        f"v_mul_f32 v108, {f2u(-math.log2(math.e))}, v108","v_exp_f32 v108, v108","v_add_f32 v108, 1.0, v108","v_rcp_f32 v108, v108"]
    cs=cons_scalars()
    c+=gg[:8]+cs[:12]+gm[:8]+gg[8:]+cs[12:]+gm[8:]+flat(pa_setup("v96"))+ge
    c+=["WAITVM Rst","WAITLG mw","s_barrier",flag_store(sT2),f"buffer_store_dword v108, v112, {SWS}, {sT3} offen sc1 ;@Gst"]+stamp("fr")+mrd+rot_scalars()
    c+=p2_ny()+["WAITVM wf","WAITLG ny","s_barrier"]+stamp("wl")
    c1,park=p2_coefs(1); r0_=p2_raw(0)
    dl=fuse(dloads(24,min(44,opt.nd4)))
    c+=p2_raw(1)+c1+sprinkle(park,[r0_[8*i:8*i+8] for i in range(8)],8)
    c+=[
        f"v_xor_b32 v96, {sB}, v0", "v_bfe_u32 v97, v0, 3, 1", "v_and_b32 v96, 3, v96", "v_lshrrev_b32 v99, 4, v0", "v_lshlrev_b32 v96, 4, v96", "v_lshrrev_b32 v98, 2, v0", "v_lshl_add_u32 v96, v97, 6, v96",
        "v_xor_b32 v98, v98, v99", "v_and_b32 v98, 1, v98", "v_lshl_add_u32 v96, v98, 12, v96", "v_lshl_add_u32 v29, v99, 16, v96",
        f"s_lshl_b32 {sHS2}, {sB}, 7", f"s_add_u32 {sHS2}, {sHS2}, {sM16K}", f"s_add_u32 {sHS2}, {sHS2}, {WS_R}"]
    late=tr_pattern(vWT[2],"v96",sM16K)+[f"v_xor_b32 {vWT[3]}, 64, {vWT[2]}"]
    late2=["v_and_b32 v232, 31, v0","v_lshrrev_b32 v233, 5, v0","v_and_b32 v234, 7, v0","v_xor_b32 v233, v233, v234","v_lshlrev_b32 v233, 4, v233",
        "v_lshl_add_u32 v233, v232, 7, v233", f"v_add_u32 {vXR[0]}, {sM16K}, v233"]+[f"v_xor_b32 {vXR[i]}, {32*i}, {vXR[0]}" for i in range(1,4)]
    sRO="s39"
    late2+=[f"s_lshl_b32 {sRO}, {sB}, 1", "v_lshrrev_b32 v235, 3, v0", f"v_xor_b32 v232, {sRO}, v0", "v_xor_b32 v232, v232, v235", "v_and_b32 v232, 7, v232", "v_lshlrev_b32 v232, 4, v232",
        "v_lshl_add_u32 v232, v235, 7, v232", f"v_add_u32 {vXR[4]}, {sM16K}, v232", f"v_xor_b32 {vXR[5]}, 16, {vXR[4]}",
        "v_lshlrev_b32 v234, 4, v234", f"v_lshl_add_u32 {vXR[6]}, v235, 16, v234",
        f"s_bfe_u32 {sT1}, {sB}, 0x10002", f"s_xor_b32 {sT1}, {sT1}, {sQ}", f"s_lshl_b32 {sT1}, {sT1}, 7", f"s_lshl_b32 {sRO}, {sP}, 15", f"s_add_u32 {sRO}, {sRO}, {sT1}",
        f"s_lshl_b32 {sT1}, {sB}, 9", f"s_add_u32 {sRO}, {sRO}, {sT1}", f"s_add_u32 {sRO}, {sRO}, {WS_RP}"]
    c0=p2_coefs(0); k=[i for i,x in enumerate(c0) if x.startswith("s_cmp_lg")][0]
    pr1=f"buffer_load_dwordx2 {vPOLL}, v9, {SWS}, 0 offen sc1 ;@pr"
    c+=([pr1] if opt.q_pe else [])+c0+stamp("prep")+([] if opt.q_pe else [pr1])
    pf=fuse(gload('D',0,range(14),lambda n: f"s_add_u32 m0, {sM16K}, {XB+n*1024}")+gload('D',1,range(2),lambda n: f"s_add_u32 m0, {sM16K}, {XB+(14+n)*1024}"))
    pf=[pf[2*i]+pf[2*i+1] for i in range(8)]
    q=pf+dl
    def take(n):
        o=q[:n]; del q[:n]; return o
    c+=[f"s_mov_b32 {sCNT}, 100000","WAITVM pr","L_prl:", f"v_cmp_ne_u64 vcc, {sNON}, {vPOLL}", "s_and_b64 exec, exec, vcc", "s_cbranch_scc0 L_prd",
        f"buffer_load_dwordx2 {vPOLL}, v9, {SWS}, 0 offen sc1 ;@skip", f"s_sub_u32 {sCNT}, {sCNT}, 1", "s_waitcnt vmcnt(0) ;@skip", "s_cbranch_scc0 L_prl",
        "L_prd:", "s_mov_b64 exec, -1"]+stamp("poll")
    rr=[[f"s_add_u32 m0, {sM16K}, {gam*8192+rg*1024}", f"s_add_u32 {sT0}, {sHS2}, {gam*8192+rg*262144}", f"buffer_load_dwordx4 v29, {SWS}, {sT0} offen sc1 lds ;@RR{gam}"] for gam in range(2) for rg in range(8)]
    c+=flat(rr[:8])+sprinkle(late,rr[8:11],4)+["WAITLG raw","s_barrier"]+stamp("con")
    t=[int(x) for x in opt.q_t.split(".")]; pt0=p2_point(0)
    rd0,f0=p2_fwd(0,[Stream(rr[11:]+take(t[5]),0,16,pace=2,prio=1),Stream(one(late2),0,16,eager=True)])
    c+=["WAITVM RR0"]+stamp("rr0")+rd0+f0+stamp("f0")+(sprinkle(pt0,take(t[0]),14,2) if opt.dearly else pt0[:opt.q_pi]+poll_issue("pd",vPA2)+pt0[opt.q_pi:]+poll_check("pd",vPA2,mask=0x7f7f)+["s_barrier"])+stamp("pt0")
    rest=[f"v_accvgpr_read_b32 v{128+i}, {csv(i)}" for i in range(64)]+[f"v_accvgpr_read_b32 v{CX+i}, {csv(64+i)}" for i in range(4)]
    o_rd,o_st=p2_out(0,192)
    i0,pk0=p2_inv(0,[Stream(one(rest[:30]),0,5,eager=True),Stream(take(t[2]),0,16,pace=2.2)])
    rd1,f1=p2_fwd(1,[Stream(one(o_rd),0,4,eager=True,prio=2),Stream(take(t[1])+[4]+o_st[:4],0,16,prio=1,pace=3),Stream(one(rest[30:]),0,16,eager=True)])
    c+=["WAITVM RR1"]+i0+rd1+pk0+stamp("i0")+f1+stamp("f1")
    c+=sprinkle(p2_point(1),o_st[4:]+take(t[3])+[hpoll(0)],15,2)+stamp("pt1")
    o_rd,o_st=p2_out(1,128)
    i1,pk1=p2_inv(1,[Stream(take(t[4]),0,16,pace=2.2)])
    c+=i1+o_rd[:4]+pk1+o_rd[4:]+flat(o_st)+stamp("main")
    c+=[f"s_add_u32 {sT1}, {sM16K}, {XB}", f"v_add_u32 v8, {sT1}, {vL16}","WAITVM pf"]
    c+=[f"ds_read_b128 {vslot(n)}, v8 offset:{n*1024} ;@D{n//14}_{n%14}" for n in range(16)]
    c+=flat(dloads(16,24) if not q else take(99))+["WAITVM P1","s_barrier ;after P1,P0,Gst",flag_store(sFHS)]+stamp("join")
    if not any('D1_9' in x for x in c if isinstance(x,str)): c+=flat(dloads(16,24))
    c+=flat(dloads(44,opt.nd4))+hcheck(0)+flat(GH['h'][:opt.p1i])+hpoll(1)+flat(GH['h'][opt.p1i:])+[f"s_mov_b32 {sFA}, 0x40000000"]+[flag_store(sFA)]*3+["WAITLG all","s_branch L_g2"]
    return c
Opt.joinvm=63

def tail():
    c=["s_cmp_lg_u32 s2, 0","s_cbranch_scc1 L_noe", f"buffer_store_dwordx2 {vNON}, {vFO}, {SWS}, 0 offen sc1", "L_noe:"]
    if opt.stamps:
        c+=["s_waitcnt vmcnt(0)",("s_memtime" if opt.stamps==1 else "s_memrealtime")+" s[98:99]","s_memrealtime s[96:97]","s_waitcnt lgkmcnt(0)",
            f"s_lshl_b32 {sT0}, s2, 2", f"s_add_u32 {sT0}, {sT0}, {sW}", f"s_lshl_b32 {sT0}, {sT0}, 7", f"s_add_u32 {sT0}, {sT0}, {WS_DBG}"]
        c+=["v_min_u32 v2, 1, v0","v_lshlrev_b32 v2, 30, v2"]
        for i in range(16): c+=[f"v_mov_b32 v8, s{70+2*i}", f"buffer_store_dword v8, {vFO}, {SWS}, {sT0} offen offset:{4*i}"]
    if opt.hold:
        c+=["s_waitcnt vmcnt(0)","L_hold:","s_memrealtime s[96:97]","s_waitcnt lgkmcnt(0)","s_sub_u32 s96, s96, s100",f"s_cmp_lt_u32 s96, {opt.hold}","s_cbranch_scc1 L_hold"]
    return c+["L_end:","s_endpgm"]

def build():
    a=prologue(); n0=nstamp[0]
    r0c,nx2=round0()
    m=g_start()+r0c+stamp("r0")+rounds(nx2)+stamp("r3")
    n1=nstamp[0]
    g2=gemm2()+tail()
    nstamp[0]=n0; inp2[0]=True
    pp=p2(); inp2[0]=False
    check_tags(a+m+g2); check_tags(a+pp)
    main,ad1=finalize(a+m+g2,opt.verbose)
    full,ad2=finalize(a+["L_mark:"]+pp)
    idx=[i for i,x in enumerate(full) if x.text=="L_mark:"][0]
    side=full[idx+1:]
    gi=[i for i,x in enumerate(main) if x.text=="L_g2:"][0]
    check_loads(full+main[gi:]); check_tags(full+main[gi:])
    check_init(main); check_init(full)
    ol,_=pad_hazards(mk(outl))
    print("nops main",ad1,"p2",ad2)
    if opt.drop:
        r0e=[i for i,x in enumerate(main) if x.text.startswith(f"v_mov_b32 {vGC0}, 0x")][0]
        x0s=[i for i,x in enumerate(main) if x.mn=="s_barrier"][0]
        def keep(i,x):
            if not (x0s<i<r0e): return True
            if 's' in opt.drop and x.mn.startswith("buffer_store_dwordx4"): return False
            if 'l' in opt.drop and x.kind=="vmem" and x.mn.startswith("buffer_load"): return False
            if 'w' in opt.drop and x.mn.startswith("ds_write"): return False
            if 't' in opt.drop and x.mn.startswith("ds_read"): return False
            if 'v' in opt.drop and x.mn=="s_waitcnt" and "vmcnt" in x.text: return False
            return True
        main=[x for i,x in enumerate(main) if keep(i,x)]
    if opt.plainst:
        main=[I(x.text.replace(" sc1",""),x.tag) if (x.mn.startswith("buffer_store") and (x.tag or "").startswith("h")) else x for x in main]
    return main+side+ol+mk(["L_codeend:","s_endpgm"])

HEAD = open("gated_mix__spectral_gfnet__glu_gated_geglu__prompt.s.ref").read().split("; Override launch")[0]
def emit(path):
    code=build()
    s=HEAD+"; @launch grid=(256,1,1) block=(256,1,1) lds=163840\n"
    s+='.amdgcn_target "amdgcn-amd-amdhsa--gfx950"\n.text\n'
    s+=f".globl {KNAME}\n.p2align 8\n.type {KNAME},@function\n{KNAME}:\n"
    for ins in code:
        t=" ".join(ins.text.split(";")[0].split())
        s+=(t if ins.kind=="label" else "    "+t)+"\n"
    s+='.section .rodata,"a"\n.p2align 6\n'
    s+=f".amdhsa_kernel {KNAME}\n  .amdhsa_next_free_vgpr 512\n  .amdhsa_next_free_sgpr 102\n  .amdhsa_accum_offset 256\n"
    s+="  .amdhsa_group_segment_fixed_size 0\n  .amdhsa_kernarg_size 88\n  .amdhsa_user_sgpr_count 2\n  .amdhsa_user_sgpr_kernarg_segment_ptr 1\n"
    s+="  .amdhsa_system_sgpr_workgroup_id_x 1\n  .amdhsa_float_denorm_mode_32 3\n.end_amdhsa_kernel\n"
    open(path,"w").write(s)
    return code
if __name__=="__main__":
    out=sys.argv[1]
    for a in sys.argv[2:]:
        k,v=a.split("=")
        cur=getattr(opt,k)
        setattr(opt,k, (v=="1") if isinstance(cur,bool) else (int(v) if isinstance(cur,int) else v))
    code=emit(out)
    from collections import Counter
    print(len(code), dict(Counter(i.kind for i in code)))
    if opt.verbose:
        for r in rep: print(len(r), sum(r), "".join("%x"%min(x,15) for x in r))
```

```python
import sys, struct, math
from asmlib import *

KNAME = "gated_mix__spectral_gfnet__glu_gated_geglu__prompt_kernel"
def f2u(x): return "0x%08x" % struct.unpack("<I", struct.pack("<f", x))[0]

WS_G   = 0x10000
WS_FP  = 0x4000
WS_FR  = 0x8000
WS_FD  = 0x18000
WS_FH  = 0x80000
WS_R   = 0x100000
WS_RP  = 0x300000
WS_H   = 0x500000
WS_D   = 0xC00000
WS_DBG = 0xF00000
WS_SIZE = 0x10000000
XA, XB, C0, C1 = 0, 65536, 131072, 147456
L_T, L_H = C0+8192, C1
HS=136
L_NR=L_H+64*HS; L_GW=L_NR+1024; L_NY=L_GW+1024
SX,SWG,SWU,SWD,SWS,SOUT,SGW,SWR,SWI = [f"s[{i}:{i+3}]" for i in (4,8,12,16,20,24,28,32,36)]
sNON="s[40:41]"
sW,sB,sCG,sRES,sRB4,sFB,sP,sQ = "s42","s43","s44","s45","s46","s47","s48","s49"
sXS,sWS0,sM4K,sHS,sFHS,sLD,sM16K,sROT = "s50","s51","s52","s53","s54","s55","s56","s57"
sT0,sT1,sT2,sT3 = "s58","s59","s60","s61"
sGC1,sSWP="s62","s63"
sPM="s[64:65]"; sPT="s[66:67]"; sCNT="s68"; sOH="s69"
sB2="s57"; sFC="s69"; sCC=["s64","s65","s66","s67"]
sRR=["s16","s17","s18","s19"]; sXQ=["s28","s29","s30","s31"]
sDB,sHB,sH0,sFH0,sX0,sHS2,sWC = "s32","s33","s34","s35","s36","s47","s38"
vL, vL16, vFO = "v0","v1","v2"
vG = ["v3","v4"]; vPA="v5"; vNON="v[6:7]"
vXO=[f"v{8+i}" for i in range(4)]
vXR=[f"v{12+i}" for i in range(8)]
vWO=[f"v{20+i}" for i in range(4)]
vWT=[f"v{24+i}" for i in range(4)]
vOMG=[["v20","v21"],["v22","v23"]]
vPA2="v28"; vTP="v29"; vPOLL="v[30:31]"
def vr(a,n): return f"v[{a}:{a+n-1}]"
def ar(a,n): return f"a[{a}:{a+n-1}]"
ACC=32; XR=96; ET=128; HP=[144,152]; vGC0='v24'

class Opt:
    stamps=0; hold=0; probe=''; inp2=False; outf="nt"; cpf=True; verbose=False
    sel='start,x0/qx0,p0/qp0,r0/qprep,r2/qpoll,r3/qmain,g28,g56,g84,g108,gend'
    slp=4; nomem=0; nopoll=''; plainst=0; drop=''
    rot7=0; fmode=0; dropp=0; q_pe=1; q_t='10.0.7.0.0.2'; dearly=1; csg=44; q_pi=40; q_nh=9; q_e=0; q_np0=0; q_npre=8; q_n2=11; q_wg=14; q_sp=10; pdi=66; nd1=9; nd2=17; nd3=33; nd4=35; hb=46; fhg=40; seq='012v3'; hk1=8; hsp=9; hn1=3; hn2=10; f2g=24; p1g=60; p1c=70; ppg=36; ppc=48; pace2=15; win=11; dlead=4; f2i=0; p1i=6; dfill=4; id2=0; map2=0; f0=24; f1=24; f3=20; f3i=12; hn3=1; nh3=0; hb1=44; hb2=44; hb3=38; nds='0.0.6.26.26'; plead=9; hmode=1; p0g=58; fbar=3; rsg=61; dsg=65; fdb=40; fdg=44; xsplit=1; hpre=1; gpre=0; nth='011224'; x2g=100; prek=4; npre=25; p0d=0; pace0=20; pace1=21; b01=20; order='x0.e.x1.w0.x2.x3.w1.w2.w3.w4.d.w5.w6.w7'; pdb=88; nw1=11; sp1=8; sp2=8; st2=60
opt=Opt()
nstamp=[0]; inp2=[False]; rep=[]
def stamp(name):
    if inp2[0]: name="q"+name
    if opt.probe==name: return ["s_memrealtime s[100:101]","s_waitcnt lgkmcnt(0)"]
    if not opt.stamps: return []
    idx=None
    for i,grp in enumerate(opt.sel.split(",")):
        if name in grp.split("/"): idx=i
    if idx is None: return []
    assert idx<13
    return [f"{'s_memtime' if opt.stamps==1 else 's_memrealtime'} s[{70+2*idx}:{71+2*idx}]","s_waitcnt lgkmcnt(0)"]
def MF32(d,a,b,c): return f"v_mfma_f32_32x32x16_bf16 {d}, {a}, {b}, {c}"
def MF16(d,a,b,c): return f"v_mfma_f32_16x16x32_bf16 {d}, {a}, {b}, {c}"
def flat(g): return [i for x in g for i in (x if isinstance(x,list) else [x])]
def one(L): return [[x] for x in L]
def sprinkle(main, items, every, start=0):
    out=[]; items=list(items); main=mk(main); due=0
    for n,ins in enumerate(main):
        if n>=start and (n-start)%every==0: due+=1
        if items and due and not ins.mn.startswith(("s_cselect","s_subb","s_addc","s_cbranch")):
            out+=mk(items.pop(0)); due-=1
        out.append(ins)
    for it in items: out+=mk(it)
    return out

lab=[0]; outl=[]
def poll_issue(tag, pa=vPA, so="0"):
    if opt.dropp and tag in opt.nopoll.split(","): return [f"buffer_load_dwordx2 {vPOLL}, off, {SWS}, 0 sc1 ;@{tag}"]
    return [f"buffer_load_dwordx2 {vPOLL}, {pa}, {SWS}, {so} offen sc1 ;@{tag}"]
def poll_check(tag, pa=vPA, so="0", mask=0x3fff):
    if tag in opt.nopoll.split(","): mask=0
    lab[0]+=1; n=lab[0]
    chk=[f"v_cmp_ne_u64 vcc, {sNON}, {vPOLL}", f"s_and_b32 {sCNT}, vcc_lo, {mask}"]
    outl.extend([f"L_pr{n}:", f"s_mov_b32 s3, 100000", f"L_pl{n}:", f"s_sleep {opt.slp}",
           f"buffer_load_dwordx2 {vPOLL}, {pa}, {SWS}, {so} offen sc1 ;@skip", f"s_sub_u32 s3, s3, 1", f"s_cbranch_scc1 L_pd{n}", "s_waitcnt vmcnt(0) ;@skip"]+chk+
           [f"s_cbranch_scc1 L_pl{n}", f"s_branch L_pd{n}"])
    return [f"WAITVM {tag}"]+chk+[f"s_cbranch_scc1 L_pr{n}", f"L_pd{n}:"]
def flag_store(soff): return f"buffer_store_dwordx2 {vNON}, {vFO}, {SWS}, {soff} offen sc1 ;@fl"

def dma4(vo, srds, tag, setup):
    g=[setup+[f"buffer_load_dwordx4 {vo[0]}, {srds[0]}, {sT0} offen lds ;@{tag}"]]
    for j in range(1,4): g.append([f"buffer_load_dwordx4 {vo[j]}, {srds[j]}, {sT0} offen offset:{j*1024} lds ;@{tag}"])
    return g
def dma_x(slot,kq,tag):
    return dma4(vXO,[SX]*4,tag,[f"s_add_u32 m0, {sM4K}, {slot+kq*16384}", f"s_add_u32 {sT0}, {sXS}, {sXQ[kq]}"])
def set_xs(r): return [f"s_lshl_b32 {sXS}, {sRR[r]}, 10", f"s_add_u32 {sXS}, {sXS}, {sX0}"]
def wslot(n): return (XB if n<4 else XA)+(n%4)*16384
def dma_w(i):
    su=[f"s_mul_i32 {sT0}, {sXQ[i//2]}, 1792", f"s_add_u32 m0, {sM4K}, {wslot(i)}", f"s_add_u32 {sT0}, {sT0}, {sWS0 if i%2==0 else sWC}"]
    return dma4(vWO,[SWG,SWU,SWG,SWU],f"W{i}",su)

def prologue():
    c=["s_cmp_ge_u32 s2, 256","s_cbranch_scc1 L_end"]
    if opt.stamps or opt.hold: c+=["s_memrealtime s[100:101]"]
    c+=stamp("start")
    c+=["s_load_dwordx4 s[4:7], s[0:1], 0",
        "s_load_dwordx8 s[8:15], s[0:1], 32",
        "s_load_dwordx2 s[20:21], s[0:1], 80",
        "s_load_dwordx2 s[36:37], s[0:1], 16",
        "s_load_dwordx2 s[24:25], s[0:1], 64"]
    c+=[f"s_lshr_b32 {sT1}, s2, 3"]
    if opt.cpf:
        c+=["s_getpc_b64 s[66:67]","L_pc:",f"s_lshl_b32 {sT0}, {sT1}, 11",f"v_lshl_add_u32 v8, v0, 7, {sT0}",
            "v_cmp_gt_u32 vcc, 16, v0","s_mov_b64 s[64:65], vcc","v_cmp_gt_u32 vcc, L_codeend-L_pc, v8","s_and_b64 vcc, vcc, s[64:65]",
            "v_mov_b32 v9, s67","s_and_saveexec_b64 s[64:65], vcc","s_cbranch_execz L_nopf",
            "v_add_co_u32 v8, vcc, s66, v8","v_addc_co_u32 v9, vcc, 0, v9, vcc","global_load_dword v255, v[8:9], off ;@skip","L_nopf:","s_mov_b64 exec, s[64:65]"]
    c+=["v_lshrrev_b32 v5, 6, v0","v_and_b32 v0, 63, v0",f"v_readfirstlane_b32 {sW}, v5",
        f"v_lshlrev_b32 {vL16}, 4, {vL}",
        f"s_and_b32 {sRES}, s2, 3", f"s_and_b32 {sT0}, s2, 4"]+([f"s_lshr_b32 {sCG}, {sT1}, 3", f"s_add_u32 {sCG}, {sCG}, {sT0}", f"s_and_b32 {sT1}, {sT1}, 7", f"s_lshl_b32 {sRB4}, {sT1}, 2"] if opt.map2 else
        [f"s_lshr_b32 {sCG}, {sT1}, 2", f"s_and_b32 {sT1}, {sT1}, 3", f"s_add_u32 {sRB4}, {sT0}, {sT1}", f"s_lshl_b32 {sRB4}, {sRB4}, 2"])+[ f"s_add_u32 {sB}, {sRB4}, {sRES}",
        f"s_add_u32 {sROT}, {sT1}, {sCG}", f"s_and_b32 {sROT}, {sROT}, 3",
        f"s_lshr_b32 {sP}, {sW}, 1", f"s_and_b32 {sQ}, {sW}, 1", f"s_lshl_b32 {sM4K}, {sW}, 12", f"s_lshl_b32 {sM16K}, {sW}, 14",
        f"s_lshl_b32 {sXS}, {sW}, 19", f"s_lshl_b32 {sT0}, {sB}, 10", f"s_add_u32 {sXS}, {sXS}, {sT0}", f"s_lshl_b32 {sXQ[0]}, {sROT}, 8"]
    for kq in range(1,4): c+=[f"s_add_u32 {sXQ[kq]}, {sXQ[kq-1]}, 256", f"s_and_b32 {sXQ[kq]}, {sXQ[kq]}, 1023"]
    c+=["v_lshrrev_b32 v128, 4, v0", "v_and_b32 v129, 15, v0", "v_xor_b32 v131, v129, v128", "v_lshlrev_b32 v131, 4, v131", f"v_lshl_add_u32 {vXO[0]}, v128, 15, v131"]
    for j in range(1,4):
        c+=[f"v_xor_b32 v130, {64*j}, {vXO[0]}", f"v_add_u32 {vXO[j]}, {4*j*32768-j*1024}, v130"]
    c+=[f"s_cmp_eq_u32 {sCG}, 7","s_cbranch_scc1 L_p2"]
    return c
def srd_common():
    return [f"s_mov_b32 s6, {0 if opt.nomem&1 else 0x200000}","s_mov_b32 s7, 0x20000", f"s_mov_b32 s22, {WS_SIZE}","s_mov_b32 s23, 0x20000",
            "s_mov_b32 s26, 0x200000","s_mov_b32 s27, 0x20000"]
def cons_scalars():
    if opt.id2: c=[f"s_and_b32 {sB2}, s2, 7", f"s_lshl_b32 {sB2}, {sB2}, 2", f"s_bfe_u32 {sCC[0]}, s2, 0x20003", f"s_add_u32 {sB2}, {sB2}, {sCC[0]}"]
    elif opt.map2==1: c=[f"s_and_b32 {sB2}, s2, 4", f"s_bfe_u32 {sCC[0]}, s2, 0x20003", f"s_add_u32 {sB2}, {sB2}, {sCC[0]}", f"s_lshl_b32 {sB2}, {sB2}, 2", f"s_add_u32 {sB2}, {sB2}, {sRES}", f"s_mov_b32 {sCC[0]}, {sRES}"]
    else: c=[f"s_mov_b32 {sB2}, {sB}", f"s_mov_b32 {sCC[0]}, {sRES}"]
    if opt.map2==1: c+=[f"s_lshr_b32 {sCG}, s2, 5"]
    for i in range(1,4): c+=[f"s_sub_u32 {sCC[i]}, {sCC[0]}, {i}", f"s_and_b32 {sCC[i]}, {sCC[i]}, 3"]
    c+=[f"s_lshl_b32 {sDB}, {sCG}, 2", f"s_add_u32 {sDB}, {sDB}, {sW}", f"s_mul_i32 {sDB}, {sDB}, 57344", f"s_add_u32 {sDB}, {sDB}, {WS_D}",
        f"s_lshl_b32 {sHB}, {sB2}, 2", f"s_add_u32 {sHB}, {sHB}, {sW}", f"s_mul_i32 {sHB}, {sHB}, 57344", f"s_add_u32 {sHB}, {sHB}, {WS_H}",
        f"s_and_b32 {sFC}, {sB2}, 28", f"s_lshl_b32 {sFC}, {sFC}, 1", f"s_add_u32 {sFC}, {sFC}, {sP}", f"s_mul_i32 {sFC}, {sFC}, {56*128}", f"s_add_u32 {sFC}, {sFC}, {WS_FH}"]
    return c

FF=64
vHA,vHB,vTW,vTR,vBW="v28","v29","v3","v4","v30"
def gen_F():
    c=["v_and_b32 v128, 3, v0", "v_bfe_u32 v129, v0, 3, 2", "v_lshl_add_u32 v128, v129, 2, v128", "v_bfe_u32 v129, v0, 2, 1", "v_lshl_add_u32 v128, v129, 4, v128",
       f"s_lshr_b32 {sT3}, {sCG}, 1", f"s_lshl_b32 {sT3}, {sT3}, 6", f"s_and_b32 {sT2}, {sCG}, 1", f"s_add_u32 {sT2}, {sT2}, {sT3}", f"v_lshl_add_u32 v128, v128, 1, {sT2}",
       f"v_cvt_f32_u32 v129, {sP}", f"v_mul_f32 v129, {f2u(-0.25)}, v129",
       f"s_lshl_b32 {sT3}, {sP}, 8", f"v_mov_b32 v130, {sT3}",
       "v_cmp_eq_u32 vcc, 0, v128", "v_lshrrev_b32 v131, 5, v0", f"s_lshl_b32 {sT3}, {sROT}, 7",
       "v_cndmask_b32 v128, v128, v130, vcc", "v_cndmask_b32 v129, v129, 0, vcc",
       "v_cvt_f32_u32 v128, v128", f"v_mul_f32 v128, {f2u(1/512)}, v128",
       f"v_lshl_add_u32 v131, v131, 3, {sT3}", "v_cvt_f32_u32 v131, v131", "v_fmac_f32 v129, v131, v128",
       f"v_mul_f32 v130, {f2u(16.0)}, v128"]
    S0,S1=132,140
    c+=[f"v_mov_b32 v{S0}, v129", f"v_add_f32 v{S1}, v130, v129", "v_cos_f32 v130, v130"]
    for j in range(1,8): c+=[f"v_add_f32 v{S0+j}, v128, v{S0+j-1}", f"v_add_f32 v{S1+j}, v128, v{S1+j-1}"]
    c+=["v_add_f32 v130, v130, v130","v_mov_b32 v131, v130"]
    for j in range(16): c+=[f"v_cos_f32 v{S0+j}, v{S0+j}"]
    for j in range(8): c+=[f"v_cvt_pk_bf16_f32 v{FF+j}, v{S0+2*j}, v{S0+2*j+1}"]
    for ks in range(2,16):
        P,Cu=(S0,S1) if ks%2==0 else (S1,S0)
        for j in range(4): c+=[f"v_pk_fma_f32 {vr(P+2*j,2)}, v[130:131], {vr(Cu+2*j,2)}, {vr(P+2*j,2)} neg_lo:[0,0,1] neg_hi:[0,0,1]"]
        for j in range(4): c+=[f"v_cvt_pk_bf16_f32 v{FF+4*ks+j}, v{P+2*j}, v{P+2*j+1}"]
    return c
def gen_H(B=128):
    r,cf,ad,t=[f"v{B+i}" for i in range(4)]; V=B+4
    c=[f"v_and_b32 {r}, 15, v0", f"s_lshl_b32 {sT1}, {sW}, 4", f"v_add_u32 {r}, {sT1}, {r}", f"v_and_b32 {t}, 1, v0", f"v_lshrrev_b32 {cf}, 1, {r}",
       f"v_cvt_f32_u32 {t}, {t}", f"v_cvt_f32_u32 {cf}, {cf}", f"v_cmp_eq_u32 vcc, 1, {r}", f"v_mul_f32 {t}, {f2u(-0.25)}, {t}", f"v_mul_f32 {cf}, {f2u(1/64)}, {cf}",
       f"v_and_b32 {ad}, 48, v0", f"v_cndmask_b32 {t}, {t}, 0, vcc", f"v_cndmask_b32 {cf}, {cf}, 0.5, vcc", f"v_cvt_f32_u32 v{V}, {ad}", f"v_mul_u32_u24 {r}, {HS}, {r}",
       f"v_fmac_f32 {t}, v{V}, {cf}", f"v_lshl_add_u32 {ad}, {ad}, 1, {r}", f"v_add_u32 {ad}, {L_H}, {ad}"]
    for hf in range(2):
        c+=[f"v_fmamk_f32 v{V+j}, {cf}, {f2u(8*hf+j)}, {t}" for j in range(8)]
        c+=[f"v_cos_f32 v{V+j}, v{V+j}" for j in range(8)]
        c+=[f"v_cvt_pk_bf16_f32 v{V+j}, v{V+2*j}, v{V+2*j+1}" for j in range(4)]
        c+=[f"ds_write2_b64 {ad}, {vr(V,2)}, {vr(V+2,2)} offset0:{2*hf} offset1:{2*hf+1} ;@hw"]
    return c
def xr_addr():
    c=["v_and_b32 v128, 15, v0","v_and_b32 v130, 31, v0", f"s_lshl_b32 {sT2}, {sQ}, 13", f"v_lshl_add_u32 v130, v130, 8, {sT2}", "v_lshrrev_b32 v131, 5, v0",
       "v_xor_b32 v131, v131, v128", f"v_lshl_add_u32 {vXR[0]}, v131, 4, v130"]
    return c+[f"v_xor_b32 {vXR[i]}, {32*i}, {vXR[0]}" for i in range(1,8)]
def p0_addr():
    return [["v_lshrrev_b32 v2, 4, v0"],["v_lshlrev_b32 v2, 28, v2"],["v_lshl_add_u32 v2, v0, 3, v2"],
        ["v_and_b32 v31, 31, v0"],[f"v_mul_u32_u24 {vHA}, {HS}, v31"],
        [f"s_xor_b32 {sT1}, {sW}, 1", f"s_lshl_b32 {sT1}, {sT1}, 11", f"s_add_u32 {sT1}, {sT1}, {L_T}", f"v_lshl_add_u32 {vBW}, v31, 6, {sT1}", f"v_add_u32 {vTR}, {sT1}, {vL16}"],
        [f"v_xor_b32 {vTW}, 2048, {vTR}"],
        ["v_lshrrev_b32 v31, 5, v0"],[f"v_lshl_add_u32 {vHA}, v31, 3, {vHA}"],[f"v_lshl_add_u32 {vBW}, v31, 5, {vBW}"],
        [f"s_mul_i32 {sT1}, {sQ}, {32*HS-64}", f"s_add_u32 {sT1}, {sT1}, {L_H+64}", f"v_add_u32 {vHB}, {sT1}, {vHA}"],
        [f"s_mul_i32 {sT1}, {sQ}, {32*HS+64}", f"s_add_u32 {sT1}, {sT1}, {L_H}", f"v_add_u32 {vHA}, {sT1}, {vHA}"],
        ["v_bfe_u32 v31, v0, 1, 2"],["v_lshlrev_b32 v31, 4, v31"],[f"v_xor_b32 {vBW}, v31, {vBW}"],[f"v_xor_b32 v31, 16, {vBW}"]]
def eload(): return [f"buffer_load_dwordx2 {vNON}, off, {SWS}, 0 sc1 ;@E"]

TA=32; TPK=96; TOT=104; HFA=232; D2=32; RPK=48; RBK=56
def nonce():
    return [["WAITVM E","v_readfirstlane_b32 s40, v6"],["v_readfirstlane_b32 s41, v7"],["s_mul_i32 s40, s40, 0x9E3779B1"],["s_add_u32 s40, s40, 0x7F4A7C15"],
           ["s_mul_i32 s41, s41, 0x85EBCA6D"],["s_add_u32 s41, s41, 0xC2B2AE35"],["v_mov_b32 v6, s40"],["v_mov_b32 v7, s41"],
           [f"s_and_b32 {sT3}, {sCG}, 1"],[f"s_lshl_b32 {sT3}, {sT3}, 31"],[f"s_or_b32 {sT3}, {sT3}, 0x3f800000"],
           [f"s_lshl_b32 {sT2}, {sB}, 3"],[f"s_add_u32 {sT2}, {sT2}, {sCG}"],[f"s_lshl_b32 {sT2}, {sT2}, 2"],[f"s_add_u32 {sT2}, {sT2}, {sW}"],
           [f"s_lshl_b32 {sT2}, {sT2}, 11"],[f"s_add_u32 {sT2}, {sT2}, {WS_R}"]]
def p0_mf(xf):
    return [MF32(vr(TA+16*(ks//16),16), xf(ks), vr(FF+4*(ks%16),4), vr(TA+16*(ks//16),16) if ks%16 else "0") for ks in range(32)]
def x0_reads(xf,kq): return [f"ds_read_b128 {xf(ks)}, {vXR[ks%8]} offset:{kq*16384} ;@r" for ks in range(8*kq,8*kq+8)]
def t_pack(pkf=True):
    c=[]
    for sg in range(2):
        c+=[f"v_pk_fma_f32 {vr(TA+8*sg+2*i,2)}, {vr(TA+16+8*sg+2*i,2)}, s[60:61], {vr(TA+8*sg+2*i,2)} op_sel:[0,1,0] op_sel_hi:[1,1,1]" for i in range(4)] if pkf else [f"v_fmac_f32 v{TA+8*sg+i}, {sT3}, v{TA+16+8*sg+i}" for i in range(8)]
        c+=[f"v_cvt_pk_bf16_f32 v{TPK+4*sg+i}, v{TA+8*sg+2*i}, v{TA+8*sg+2*i+1}" for i in range(4)]
        c+=[f"ds_write_b128 {vTW}, {vr(TPK+4*sg,4)} offset:{1024*sg} ;@tw"]
    return c
def h_reads():
    return [f"ds_read_b128 {vr(TOT+4*sg,4)}, {vTR} offset:{1024*sg} ;@hr" for sg in range(2)]+\
           [f"ds_read2_b64 {ar(HFA+8*o+4*sg,4)}, {vHA if o==0 else vHB} offset0:{4*sg} offset1:{4*sg+2} ;@hr" for o in range(2) for sg in range(2)]
def h_mf(): return [MF32(vr(D2,16), vr(TPK+4*n,4), ar(HFA+4*n,4), vr(D2,16) if n else "0") for n in range(4)]
def r_pack():
    c=[]
    for e in range(2):
        c+=[f"v_cvt_pk_bf16_f32 v{RPK+4*e+i}, v{D2+8*e+2*i}, v{D2+8*e+2*i+1}" for i in range(4)]
        c+=[f"ds_write_b128 {vBW if e==0 else 'v31'}, {vr(RPK+4*e,4)} ;@bw"]
    return c
def r_back(): return [f"ds_read_b128 {vr(RBK+4*e,4)}, {vTR} offset:{1024*e} ;@br" for e in range(2)]
def r_store():
    return [["WAITLG br", f"buffer_store_dwordx4 {vr(RBK,4)}, {vL16}, {SWS}, {sT2} offen sc1 ;@Rst"],
            [f"buffer_store_dwordx4 {vr(RBK+4,4)}, {vL16}, {SWS}, {sT2} offen offset:1024 sc1 ;@Rst"]]
def flag_R_addr(sT2=sT2):
    return [[f"s_lshl_b32 {sT2}, {sCG}, 5", f"s_add_u32 {sT2}, {sT2}, {sB}"],[f"s_lshl_b32 {sT2}, {sT2}, 7", f"s_add_u32 {sT2}, {sT2}, {WS_FR}"],
            [f"s_cmp_eq_u32 {sW}, 0", f"s_cselect_b32 {sT2}, {sT2}, 0x40000000"]]

def g_start():
    wo=["v_lshrrev_b32 v150, 3, v0", "v_and_b32 v151, 7, v0", "v_and_b32 v152, 2, v150", "v_lshlrev_b32 v5, 1, v152", "v_xor_b32 v5, v5, v151", "v_lshlrev_b32 v5, 4, v5", "v_lshl_add_u32 v5, v150, 10, v5",
        "v_xor_b32 v151, v151, v152", "v_mul_u32_u24 v150, 3584, v150",
        f"v_lshl_add_u32 {vWO[0]}, v151, 4, v150", "v_xor_b32 v151, 4, v151", f"v_lshl_add_u32 {vWO[1]}, v151, 4, v150",
        f"v_add_u32 {vWO[2]}, {8*3584-2048}, {vWO[0]}", f"v_add_u32 {vWO[3]}, {8*3584-2048}, {vWO[1]}",
        f"s_mul_i32 {sFB}, {sRES}, 7", f"s_add_u32 {sFB}, {sFB}, {sCG}",
        f"s_mul_i32 {sWS0}, {sW}, {16*3584}", f"s_lshl_b32 {sWC}, {sFB}, 7", f"s_add_u32 {sWS0}, {sWS0}, {sWC}", f"s_add_u32 {sWC}, {sWS0}, {64*3584}",
        "s_mov_b32 s64, s12","s_mov_b32 s65, s13","s_mov_b32 s66, 1835008","s_mov_b32 s67, 0x20000",
        "s_sub_u32 s12, s10, 1024","s_subb_u32 s13, s11, 0",f"s_mov_b32 s10, {0 if opt.nomem&2 else 1835008}",f"s_mov_b32 s14, {0 if opt.nomem&2 else 1836032}","s_mov_b32 s11, 0x20000","s_mov_b32 s15, 0x20000"]
    gf=gen_F()
    k=[i for i,x in enumerate(wo) if x.startswith("s_mov_b32 s64")][0]
    ft1=[]; ft2=[]
    if "f" in opt.order:
        ft1=[f"s_mul_i32 {sT1}, {sRB4}, 7", f"s_add_u32 {sT1}, {sT1}, {sFB}", f"s_lshl_b32 {sT1}, {sT1}, 2", f"s_add_u32 {sT1}, {sT1}, {sW}", f"s_mul_i32 {sT1}, {sT1}, 1280",
             "v_add_u32 v30, 54, v0", "v_lshrrev_b32 v30, 6, v30", f"v_lshl_add_u32 v31, v0, 7, {sT1}", "v_lshl_add_u32 v31, v30, 30, v31"]
        ft2=["s_mov_b32 s32, s6","s_mov_b32 s33, s7","s_mov_b32 s34, 1052672","s_mov_b32 s35, 0x20000","s_mov_b32 s16, s36","s_mov_b32 s17, s37","s_mov_b32 s18, 1052672","s_mov_b32 s19, 0x20000"]
    c=wo[:k]+ft1+gf[:opt.prek]+["s_waitcnt lgkmcnt(0)"]+ft2[:2]+srd_common()+wo[k:]+ft2[2:]
    dm=start_dmas()[:opt.npre]
    rest=[f"s_lshr_b32 {sOH}, {sM4K}, 1", f"s_add_u32 {sOH}, {sOH}, {C0}", f"s_lshl_b32 {sCNT}, {sFB}, 16", f"s_add_u32 {sCNT}, {sCNT}, {sM16K}", f"s_lshl_b32 {sT1}, {sRB4}, 5", f"s_add_u32 {sCNT}, {sCNT}, {sT1}"]
    c=c[:]; k0=[i for i,x in enumerate(c) if x.startswith("s_waitcnt lgkmcnt")][0]
    c=c[:k0]+rest+c[k0:]
    rest=gf[opt.prek:]+xr_addr()+(gen_H() if opt.hpre else [])
    if opt.gpre:
        gv,gsc=g_setup(); rest=rest+gv+gsc
    n1=opt.nw1*opt.sp1; n2=max(n1,len(rest)-(len(dm)-opt.nw1)*opt.sp2)
    c+=stamp("karg")+sprinkle(rest[:n2], dm[:opt.nw1], opt.sp1)+stamp("gen1")+sprinkle(rest[n2:], dm[opt.nw1:], opt.sp2)+stamp("gen")
    return c
SD="s[64:67]"
def start_dmas():
    dd=[[f"s_mov_b32 m0, {sOH}", f"s_add_u32 {sT0}, {sCNT}, {8192-1024}", f"buffer_load_dwordx4 v5, {SD}, {sCNT} offen lds ;@Wd"],
        [f"buffer_load_dwordx4 v5, {SD}, {sT0} offen offset:1024 lds ;@Wd"]]
    dm=[]
    for tok in opt.order.split("."):
        if tok[0]=="x": dm+=dma_x(XA,int(tok[1]),f"x0q{tok[1]}")
        elif tok[0]=="w": dm+=dma_w(int(tok[1]))
        elif tok=="e": dm+=[eload()]
        elif tok=="d": dm+=dd
        elif tok=="f": dm+=[[f"buffer_load_dword v30, v31, {SWR}, 0 offen ;@ft"],[f"buffer_load_dword v29, v31, s[16:19], 0 offen ;@ft"]]
    assert len(dm)==51+2*("f" in opt.order)
    assert all('@ft' not in it[-1] for it in dm[opt.npre:])
    assert all('@x0' not in it[-1] for it in dm[opt.npre:])
    return dm
def g_setup():
    c=["v_lshrrev_b32 v60, 4, v0","v_bfe_u32 v61, v0, 2, 2","v_and_b32 v62, 3, v0","v_bfe_u32 v63, v0, 3, 2", f"s_lshl_b32 {sT1}, {sP}, 1",
       "v_lshlrev_b32 v62, 3, v62", f"v_xor_b32 v63, {sT1}, v63", "v_lshl_add_u32 v62, v61, 7, v62",
       f"v_lshl_add_u32 {vWT[3]}, v60, 10, v62", "v_lshrrev_b32 v60, 5, v0", f"v_lshl_add_u32 {vWT[3]}, v63, 5, {vWT[3]}", "v_bfe_u32 v61, v0, 4, 1",
       f"v_add_u32 {vWT[0]}, {XB}, {vWT[3]}", "v_lshl_add_u32 v62, v60, 9, v62", "v_bfe_u32 v63, v0, 3, 1", f"v_xor_b32 {vWT[1]}, 32, {vWT[0]}",
       "v_lshl_add_u32 v62, v61, 5, v62", "v_lshl_add_u32 v62, v63, 6, v62",
       f"v_add_u32 {vWT[2]}, {sOH}, v62", f"v_xor_b32 {vWT[3]}, 64, {vWT[2]}",
       f"s_lshl_b32 {sLD}, {sRB4}, 1", f"s_and_b32 {sLD}, {sLD}, 24", f"s_add_u32 {sLD}, {sLD}, {sW}", f"s_mul_i32 {sLD}, {sLD}, 28", f"s_add_u32 {sLD}, {sLD}, {sFB}", f"s_lshl_b32 {sLD}, {sLD}, 1",
       f"s_lshr_b32 {sT1}, {sRB4}, 4", f"s_add_u32 {sLD}, {sLD}, {sT1}", f"s_lshl_b32 {sLD}, {sLD}, 10", f"s_add_u32 {sLD}, {sLD}, {WS_D}", f"s_add_u32 {sHS}, {sLD}, {4*57344}"]
    k=[i for i,x in enumerate(c) if x.startswith(f's_lshl_b32 {sLD}')][0]
    return c[:k], c[k:]
def g_scalars():
    c=[f"s_mov_b32 {sRR[0]}, {sRES}"]
    for r in range(1,4): c+=[f"s_add_u32 {sRR[r]}, {sRES}, {r}", f"s_and_b32 {sRR[r]}, {sRR[r]}, 3"]
    c+=[f"s_lshl_b32 {sX0}, {sW}, 9", f"s_add_u32 {sX0}, {sX0}, {sRB4}", f"s_lshl_b32 {sX0}, {sX0}, 10",
        f"s_lshl_b32 {sH0}, {sRB4}, 1", f"s_add_u32 {sH0}, {sH0}, {sP}", f"s_mul_i32 {sH0}, {sH0}, 56", f"s_add_u32 {sH0}, {sH0}, {sFB}",
        f"s_lshl_b32 {sH0}, {sH0}, 1", f"s_add_u32 {sH0}, {sH0}, {sQ}", f"s_lshl_b32 {sH0}, {sH0}, 10", f"s_add_u32 {sH0}, {sH0}, {WS_H}",
        f"s_lshl_b32 {sFH0}, {sRB4}, 1", f"s_add_u32 {sFH0}, {sFH0}, {sP}", f"s_mul_i32 {sFH0}, {sFH0}, 28", f"s_add_u32 {sFH0}, {sFH0}, {sFB}",
        f"s_lshl_b32 {sFH0}, {sFH0}, 1", f"s_add_u32 {sFH0}, {sFH0}, {sQ}", f"s_lshl_b32 {sFH0}, {sFH0}, 7", f"s_add_u32 {sFH0}, {sFH0}, {WS_FH}",
        f"s_mov_b32 {sGC1}, {f2u(-2*math.sqrt(2/math.pi)*math.log2(math.e)*0.044715)}"]
    return c
def pa_setup(t="v31"):
    return [[f"v_min_u32 {t}, 13, {vL}"],[f"v_lshl_add_u32 {vPA}, {t}, 7, {sFC}"],[f"v_lshrrev_b32 {t}, 4, {vL}"],[f"v_lshl_add_u32 {vPA}, {t}, 28, {vPA}"],
            [f"v_and_b32 {t}, 7, {vL}"],[f"s_lshr_b32 {sT1}, {sCG}, 1", f"s_lshl_b32 {sT1}, {sT1}, 2", f"s_add_u32 {sT1}, {sT1}, {sW}", f"s_lshl_b32 {sPO}, {sT1}, 7"],
            [f"s_add_u32 {sT1}, {sPO}, {WS_FR if opt.dearly else WS_FD}", f"v_lshl_add_u32 {vPA2}, {t}, 12, {sT1}"],
            [f"v_bfe_u32 {t}, {vL}, 3, 1"],[f"v_lshl_add_u32 {vPA2}, {t}, 11, {vPA2}"],[f"v_lshrrev_b32 {t}, 4, {vL}"],[f"v_lshl_add_u32 {vPA2}, {t}, 28, {vPA2}"]]
sPO="s63"
def pa_P(t): return [f"s_lshl_b32 {sT1}, {sW}, 10", f"s_add_u32 {sT1}, {sT1}, {WS_FP}", f"v_lshl_add_u32 {vPA2}, {vL}, 7, {sT1}", f"v_lshrrev_b32 {t}, 3, {vL}", f"v_lshl_add_u32 {vPA2}, {t}, 28, {vPA2}"]
def hpoll(i): return [f"s_mul_i32 {sPO}, {sCC[i]}, {14*128}", f"s_add_u32 {sPO}, {sPO}, {i*112*128}"]+poll_issue(f"ph{i}",vPA,sPO)
def hcheck(i): return poll_check(f"ph{i}",vPA,sPO,mask=0xffff)
def hflag(r): return [f"s_add_u32 {sFA}, {sFH0}, {r*112*128}", f"WAITVM h{r}", flag_store(sFA)]

def wfrag(tau,ks): return 128*tau+4*ks
def xread(ks, tag="r"): return f"ds_read_b128 {vr(XR+4*(ks%8),4)}, {vXR[ks%8]} offset:{(ks//8)*16384} ;@{tag}"
def g1_mf(rnd,ks):
    s=ACC+32*((rnd+1)%2); x=vr(XR+4*(ks%8),4) if rnd else vr(128+4*ks,4)
    return [MF32(vr(s+16*t,16), ar(wfrag(t,ks),4), x, vr(s+16*t,16) if ks else "0") for t in range(2)]
def xr_flip(): return [f"v_xor_b32 {r}, {XB}, {r}" for r in vXR]
def h_stores(rnd):
    return [[f"s_mul_i32 {sHS}, {sRR[rnd]}, 229376", f"s_add_u32 {sHS}, {sHS}, {sH0}", f"s_add_u32 {sHS2}, {sHS}, 57344"]]+\
           [[f"buffer_store_dwordx4 {vr(HP[rnd%2]+4*t,4)}, {vL16}, {SWS}, {sHS if t==0 else sHS2} offen sc1 ;@h{rnd}"] for t in range(2)]
def epilogue(rnd):
    s=ACC+32*((rnd+1)%2); c=[]
    for t in range(2):
        for hh in range(2):
            g=[s+16*t+4*hh+i for i in range(4)]; u=[x+8 for x in g]
            A=ET+8*((2*t+hh)%2); Bq=A+4
            for i in range(4): c+=[f"v_mul_f32 v{A+i}, v{g[i]}, v{g[i]}"]
            for i in range(4): c+=[f"v_fma_f32 v{A+i}, v{A+i}, {sGC1}, {vGC0}"]
            for i in range(4): c+=[f"v_mul_f32 v{A+i}, v{A+i}, v{g[i]}"]
            for i in range(4): c+=[f"v_exp_f32 v{A+i}, v{A+i}", f"v_mul_f32 v{Bq+i}, v{g[i]}, v{u[i]}"]
            for i in range(4): c+=[f"v_add_f32 v{A+i}, 1.0, v{A+i}"]
            for i in range(4): c+=[f"v_rcp_f32 v{A+i}, v{A+i}"]
            for i in range(4): c+=[f"v_mul_f32 v{Bq+i}, v{Bq+i}, v{A+i}"]
            c+=[f"v_cvt_pk_bf16_f32 v{HP[rnd%2]+4*t+2*hh}, v{Bq}, v{Bq+1}", f"v_cvt_pk_bf16_f32 v{HP[rnd%2]+4*t+2*hh+1}, v{Bq+2}, v{Bq+3}"]
    return c

def aslot(n): return ar(128*(n%2)+4*(n//2),4)
def vslot(n): return vr(160+4*n,4)
HOME={}
def _homes():
    D=[(i,n) for i in range(4) for n in range(14)]
    for k,(i,n) in enumerate(D): HOME[('D',i,n)]=vslot(k) if k<24 else aslot(k-24)
    for n in range(14):
        HOME[('H',0,n)]=aslot(32+n); HOME[('H',1,n)]=aslot(46+n)
        HOME[('H',2,n)]=vslot(n)
        HOME[('H',3,n)]=vslot(14+n) if n<10 else aslot(n-10)
_homes()
sR7=[f"s{8+i}" for i in range(7)]; sLB={'D':"s15",'H':"s51"}; sLO={'D':"s37",'H':"s55"}
def rot_scalars():
    if not opt.rot7: return [f"s_mov_b32 {sR7[i]}, {2048*i}" for i in range(7)]
    c=[f"s_lshr_b32 {sR7[0]}, {sB2}, 1", f"s_and_b32 {sR7[0]}, {sR7[0]}, 6", f"s_add_u32 {sR7[0]}, {sR7[0]}, {sCG}", f"s_lshl_b32 {sR7[0]}, {sR7[0]}, 11",
       f"s_sub_u32 {sR7[1]}, {sR7[0]}, 14336", f"s_min_u32 {sR7[0]}, {sR7[0]}, {sR7[1]}"]
    for i in range(1,7): c+=[f"s_add_u32 {sR7[i]}, {sR7[i-1]}, 2048", f"s_sub_u32 {sLB['D']}, {sR7[i]}, 14336", f"s_min_u32 {sR7[i]}, {sR7[i]}, {sLB['D']}"]
    return c
def gload(kind,i,ns,lds=None):
    base=sDB if kind=='D' else sHB; B=sLB[kind]; O=sLO[kind]
    g=[]; cur=None
    for n in ns:
        pre=[]
        if cur is None: pre=[f"s_mul_i32 {B}, {sCC[i]}, 14336", f"s_add_u32 {B}, {B}, {base}"]
        if n//2!=cur: pre+=[f"s_add_u32 {O}, {B}, {sR7[n//2]}"]
        cur=n//2
        if lds:
            if n%2==0: pre=[lds(n)]+pre
            if pre: g.append(pre)
            g.append([f"buffer_load_dwordx4 {vL16}, {SWS}, {O} offen offset:{(n%2)*1024} sc1 lds ;@pf"])
            continue
        if pre: g.append(pre)
        g.append([f"buffer_load_dwordx4 {HOME[(kind,i,n)]}, {vL16}, {SWS}, {O} offen offset:{(n%2)*1024} sc1 ;@{kind}{i}_{n}"])
    return g

def fuse(items):
    o=[]; cur=[]
    for it in items:
        cur+=it
        l=it[-1]; l=l if isinstance(l,str) else l.text
        if l.startswith("buffer"): o.append(cur); cur=[]
    if cur: o.append(cur)
    return o
def round0():
    xf=lambda ks: vr(128+4*ks,4)
    def trw(i):
        return [f"ds_read_b64_tr_b16 {ar(wfrag(t,4*i+ks)+2*u,2)}, {vWT[t]} offset:{(i%4)*16384+ks*4096+u*512} ;@t{i}" for ks in range(4) for t in range(2) for u in range(2)]
    xr=[f"ds_read_b128 {xf(ks)}, {vXR[ks%8]} offset:{(ks//8)*16384} ;@x" for ks in range(32)]
    E=lambda items,lo,hi,prio=3: Stream(items,lo,hi,eager=True,prio=prio)
    ch=lambda n: [m+f" ;need t{n}" for ks in range(4*n,4*n+4) for m in g1_mf(0,ks)]
    def grp(L):
        out=[]; cur=[]
        for x in L:
            cur.append(x)
            if not (x.startswith("s_") and sT1 in x.split(",")[0]): out.append(cur); cur=[]
        return out
    hr=h_reads(); no=nonce(); sd=start_dmas(); gs=g_scalars(); gv,gsc=g_setup()
    tp=t_pack(False); rp=r_pack(); rs=r_store(); rs[0]=rs[0][1:]
    mf=p0_mf(xf)+ch(0)+ch(1)+h_mf()+[m for n in range(2,8) for m in ch(n)]
    b01,b23,b45,b67,bx=opt.b01,43,59,75,91
    if opt.xsplit:
        c=["WAITVM x0q0,x0q1","WAITLG all","s_barrier"]+stamp("x0")+xr[:6]
        pre={8:["WAITVM x0q2,x0q3","s_barrier"]}; bXA=20
        st=[E(one(xr[6:16]),0,7),E(one(xr[16:]),8,17)]
    else:
        c=["WAITVM x0q0,x0q1,x0q2,x0q3","WAITLG all","s_barrier"]+stamp("x0")+xr[:6]
        pre={}; bXA=17
        st=[E(one(xr[6:]),0,14)]
    pre[bXA]=["WAITLG x,hw","s_barrier"]+stamp("s1")
    if b01==bXA: pre[bXA]=["WAITVM W0,W1"]+pre[bXA]
    else: pre[b01]=["WAITVM W0,W1","s_barrier"]+stamp("s3")
    pre.update({b23:["WAITLG t1,tw","WAITVM W2,W3","s_barrier"]+stamp("s5"), b45:["WAITLG t3","WAITVM W4,W5","s_barrier"]+stamp("s6"),
                b67:["WAITLG t5","WAITVM W6,W7","s_barrier"]+stamp("s8"), bx:["WAITLG t7","WAITVM x1q0","s_barrier"]+stamp("s10")})
    if opt.gpre: gv=[]; gsc=[]
    st+=[E(([] if opt.hpre else grp(gen_H(48)))+grp(gv),0,15,1), E(p0_addr()+no[8:]+one(gs[:10]),6,31,0)]
    st+=[E(one(trw(0)+trw(1)),b01,36), E(one(hr[2:3]),37,39), E(one(hr[3:4]),38,39), E(one(hr[4:]),40,42), E(one(hr[:2]),b23,b23+1,4)]
    st+=[E(one(tp[:12]),33,36,2), E([tp[12:13]],36,37), E(one(tp[13:25]),36,39,2), E([tp[25:]],39,40)]
    st+=[E(one(trw(2)+trw(3)),44,53), E(one([f"v_xor_b32 {vWT[t]}, {XB}, {vWT[t]}" for t in range(2)]),57,58,1)]
    st+=[E(one(rp[:4]+rp[5:9]),53,55,6), E([rp[4:5]],55,56), E([rp[9:]],56,57), E([r_back()],57,58)]
    st+=[Stream(one(trw(4)+trw(5)),b45,b45+12,prio=3), Stream(one(trw(6)+trw(7)),b67,b67+12,prio=3), E(one([xread(k_) for k_ in range(4)]),bx+1,bx+5)]
    dr=["WAITVM Wd"]+[f"ds_read_b64_tr_b16 {vr(128+4*i+2*u,2)}, {vWT[2+i]} offset:{u*1024} ;@dr" for i in range(2) for u in range(2)]
    ds=[f"buffer_store_dwordx4 v[128:131], {vL16}, {SWS}, {sLD} offen sc1 ;@Dst", f"buffer_store_dwordx4 v[132:135], {vL16}, {SWS}, {sHS} offen sc1 ;@Dst"]
    st+=[E([dr],opt.dsg-4,opt.dsg-3,4), Stream(rs,opt.rsg,opt.rsg+4,prio=6,pace=2), Stream(one(ds),opt.dsg,opt.dsg+4,prio=6,pace=2)]
    st+=[Stream(grp(gsc),40,opt.dsg-1), Stream(flag_R_addr(sFHS)+no[:8]+one(xr_flip()),60,88), Stream(one(gs[10:]),62,100)]
    if opt.fbar==3:
        pre[bx]=["WAITVM Rst,Dst" if opt.dearly else "WAITVM Rst"]+pre[bx]; st.append(E([[flag_store(sFHS)]],bx,bx+1,4))
    dm=[]
    for it in sd[opt.npre:]:
        if "@W4" in it[-1] and bXA not in dm: dm.append(bXA)
        dm.append(it)
    dm+=[32,set_xs(1),b23]+dma_x(XB,0,"x1q0")+dma_x(XB,1,"x1q1")+[b45]+dma_x(XB,2,"x1q2")+dma_x(XB,3,"x1q3")
    dm+=[set_xs(2),max(b67,opt.x2g)]+dma_x(XA,0,"x2")+dma_x(XA,1,"x2")+[bx]+dma_x(XA,2,"x2")+dma_x(XA,3,"x2")
    D=Stream(dm,opt.p0d,100,prio=5,pace=opt.pace0/10); D.carry=True; D.slip=4
    D.deadlines({"W0":b01-1,"W1":b01-1,"Wd":opt.dsg-5,"W2":b23-1,"W3":b23-1,"W4":b45-1,"W5":b45-1,"W6":b67-1,"W7":b67-1,"x1q0":bx-1,"x1q1":100,"x1q2":100,"x1q3":100},0); st.append(D)
    c+=schedule(mf,st,pre,report=rep)
    c+=[f"v_mov_b32 {vGC0}, {f2u(-2*math.sqrt(2/math.pi)*math.log2(math.e))}"]
    return c,D.items[D.pos:]

def dloads(a,b):
    o=[]
    for i in range(4):
        ns=[k-14*i for k in range(a,b) if 14*i<=k<14*i+14]
        if ns: o+=gload('D',i,ns)
    return o
def rounds(left):
    mf=[]; pre={}; st=[]
    for r in (1,2,3):
        o=64*(r-1)
        mf+=[m for ks in range(32) for m in g1_mf(r,ks)]
        for k4 in range(8):
            g0=o+8*k4
            if k4<7: st.append(Stream(one([xread(k) for k in range(4*k4+4,4*k4+8)]),g0,g0+4,prio=3))
            elif r<3:
                pre[g0]=["WAITLG r",f"WAITVM x{r+1}","s_barrier"]
                st.append(Stream(one(xr_flip()[:4]),o+46,o+55,prio=2))
                st.append(Stream(one([xread(k) for k in range(4)]),g0,g0+4,prio=3))
                st.append(Stream(one(xr_flip()[4:]),o+56,o+64,prio=2))
        st.append(Stream(one(epilogue(r-1)),o+2,o+{1:opt.hb1,2:opt.hb2,3:opt.hb3}[r],eager=True))
        if r>1: pre.setdefault(o,[]).extend(stamp(f"r{r-1}"))
    pre[8]=["WAITVM x1q1","s_barrier"]; pre[24]=["WAITVM x1q3","s_barrier"]
    if opt.fbar>3:
        pre[opt.fbar]=["WAITVM Rst,Dst" if opt.dearly else "WAITVM Rst"]+pre.get(opt.fbar,["s_barrier"]); st.append(Stream([[flag_store(sFHS)]],opt.fbar,opt.fbar+1,prio=4))
    if not opt.dearly:
      pre[opt.fdb]=["WAITVM Dst"]+pre.get(opt.fdb,["s_barrier"])
      st.append(Stream([[f"s_add_u32 {sT2}, {sFHS}, {WS_FD-WS_FR}",flag_store(sT2)]],opt.fdg-1,opt.fdg+1,prio=4)); assert opt.fdg>opt.fdb
    pre[opt.pdb]=stamp("pdA")+poll_check("pd",vPA2,mask=0x7f7f)+pre.get(opt.pdb,["s_barrier"])+stamp("pdB")
    for k in (40,108,150,166): pre[k]=pre.get(k,[])+stamp(f"m{k}")
    x3=[set_xs(3)]
    for kq in range(4): x3+=dma_x(XB,kq,"x3")
    n4=opt.nd4
    def mark(items,k0):
        o=[]; k=k0
        for it in items:
            if it[-1].startswith("buffer"):
                if k>=24: o.append(128+(k-24))
                k+=1
            o.append(it)
        return o
    left=list(left)
    st.append(Stream(one(cons_scalars()+rot_scalars())+pa_setup(),opt.csg,opt.csg+19,prio=2)); assert opt.pdi>=opt.csg+19
    a1,a2,a3,a4,a5=[int(x) for x in opt.nds.split(".")]
    h0=gload('H',0,range(opt.nh3))
    def markh(items):
        o=[]; k=32
        for it in items:
            if it[-1].startswith("buffer"): o.append(128+k); k+=1
            o.append(it)
        return o
    st.append(Stream([poll_issue("pd",vPA2)],opt.pdi,opt.pdi+2,prio=3))
    vm=left+([opt.pdb]+dloads(0,a1) if a1 else [])+[opt.hb1]+h_stores(0)+([opt.pdb]+dloads(a1,a2) if a2>a1 else [])+[56]+x3+[opt.pdb]+mark(dloads(a2,a3),a2)
    vm+=[64+opt.hb2]+h_stores(1)+mark(dloads(a3,a4),a3)
    if opt.nh3: vm+=[hpoll(0)]+mark(dloads(a4,a5),a4)+[hcheck(0)]+markh(h0)+[128+opt.hb3]+h_stores(2)+mark(dloads(a5,n4),a5)
    else: vm+=[128+opt.hb3]+h_stores(2)+mark(dloads(a4,a5),a4)+[hpoll(0)]+mark(dloads(a5,n4),a5)
    st.append(Stream(vm,0,192,prio=1,pace=opt.pace1/10))
    for r,gp in ((0,64+opt.f0),(1,128+opt.f1)): st.append(Stream([hflag(r)],gp-1,gp,prio=4))
    return schedule(mf,st,pre,report=rep)

sFA,sFB2="s39","s29"
A2={(0,0):64,(1,0):80,(0,1):96,(1,1):112}
FI=128; UA=[32,48]; YA=[32,144]; PK=["v[8:11]","v[24:27]","v[128:131]","v[132:135]"]; PKR=[8,24,128,132]
def gslot(js,at): return 128*((2*js+at)%2)+4*((32+2*js+at)//2)
RSL=list(range(40,46))+list(range(60,64))+list(range(46,52))
def gen_Finv():
    T=64; S=72
    c=["v_and_b32 v56, 31, v0", f"s_lshl_b32 {sT2}, {sCG}, 5", f"v_add_u32 v56, {sT2}, v56", "v_cvt_f32_u32 v56, v56", f"v_mul_f32 v56, {f2u(1/512)}, v56",
       "v_lshrrev_b32 v57, 5, v0", f"s_lshl_b32 {sT2}, {sP}, 7", f"s_add_u32 {sT2}, {sT2}, {sQ}", f"v_lshl_add_u32 v57, v57, 3, {sT2}",
       "v_and_b32 v58, 1, v0", "v_cvt_f32_u32 v58, v58", "v_fma_f32 v58, v58, -2.0, 1.0", "v_min_u32 v59, 1, v57", "v_cvt_f32_u32 v59, v59",
       "v_cvt_f32_u32 v57, v57", "v_fma_f32 v58, -v59, v58, v58", "v_mul_f32 v57, v57, v56",
       f"v_mul_f32 v59, {f2u(32.0)}, v56", "v_cos_f32 v59, v59"]
    for half in range(2):
        Cc=[32,36]; Ss=[40,44]; An=48
        for s in range(2):
            for i in range(4): c+=[f"v_fmamk_f32 v{An+i}, v56, {f2u(32*s+16*half+2*i)}, v57"]
            for i in range(4): c+=[f"v_cos_f32 v{Cc[s]+i}, v{An+i}", f"v_sin_f32 v{Ss[s]+i}, v{An+i}"]
        if half==0: c+=["v_add_f32 v59, v59, v59", f"v_add_f32 v52, v{Ss[0]}, v58"]
        for s in range(4):
            cur=s%2
            if s>=2:
                for X in (Cc,Ss):
                    for i in range(4): c+=[f"v_fma_f32 v{X[cur]+i}, v59, v{X[1-cur]+i}, -v{X[cur]+i}"]
            for ct,X in enumerate((Cc,Ss)):
                kap=4*(s//2)+2*ct+s%2
                for i in range(2):
                    lo=f"v{X[cur]+2*i}"
                    if half==0 and s==0 and ct==1 and i==0: lo="v52"
                    c+=[f"v_cvt_pk_bf16_f32 v{FI+4*kap+2*half+i}, {lo}, v{X[cur]+2*i+1}"]
    return c
def tr_pattern(dst, tmp, base):
    return [f"v_lshrrev_b32 {dst}, 5, v0", f"v_lshlrev_b32 {dst}, 9, {dst}", f"v_bfe_u32 {tmp}, v0, 2, 2", f"v_lshl_add_u32 {dst}, {tmp}, 7, {dst}",
            f"v_bfe_u32 {tmp}, v0, 4, 1", f"v_lshl_add_u32 {dst}, {tmp}, 5, {dst}", f"v_and_b32 {tmp}, 3, v0", f"v_lshl_add_u32 {dst}, {tmp}, 3, {dst}",
            f"v_bfe_u32 {tmp}, v0, 3, 1", f"v_lshl_add_u32 {dst}, {tmp}, 6, {dst}", f"v_add_u32 {dst}, {base}, {dst}"]
def xr_private():
    c=["v_and_b32 v8, 31, v0", f"v_lshl_add_u32 v8, v8, 8, {sM16K}", "v_lshrrev_b32 v9, 5, v0", "v_and_b32 v10, 15, v0", "v_xor_b32 v9, v9, v10", f"v_lshl_add_u32 {vXR[0]}, v9, 4, v8"]
    return c+[f"v_xor_b32 {vXR[i]}, {32*i}, {vXR[0]}" for i in range(1,8)]
def dma_rp():
    g=[[f"s_lshl_b32 {sHS}, {sB2}, 16", f"s_add_u32 {sHS}, {sHS}, {WS_RP}", (f"s_lshl_b32 {sHS2}, {sCG}, 10" if opt.rot7 else f"s_mov_b32 {sHS2}, 0"), f"s_and_b32 {sHS2}, {sHS2}, 6144"]]
    for i in range(16):
        if i%2==0:
            g.append(([f"s_add_u32 {sHS2}, {sHS2}, 2048", f"s_and_b32 {sHS2}, {sHS2}, 6144"] if i else [])+[f"s_add_u32 {sT0}, {sHS2}, {sM16K}"]+([f"s_add_u32 {sT0}, {sT0}, 8192"] if i>=8 else []))
            g.append([f"s_mov_b32 m0, {sT0}", f"s_add_u32 {sT0}, {sT0}, {sHS}"])
        g.append([f"buffer_load_dwordx4 {vL16}, {SWS}, {sT0} offen offset:{(i%2)*1024} sc1 lds ;@RP{i//8}"])
    return g
GH={}
def gemm2():
    mf=[]; pre={}; P={}
    def addpre(i,x): pre.setdefault(i,[]).extend(x)
    use={}
    for seg in opt.seq:
        P[seg]=len(mf)
        if seg=="v":
            for jt in range(2):
                for k in range(8):
                    d=vr(UA[jt],16); mf.append(MF32(d, aslot(RSL[8*jt+k]), vr(FI+4*k,4), d if k else "0")+f" ;need u{jt}")
            for js in range(4):
                for at in range(2):
                    d=vr(YA[at],16); mf.append(MF32(d, PK[js], ar(gslot(js,at),4), d if js else "0")+" ;need gr")
            continue
        i=int(seg)
        order=[(fb,at,dt) for at in range(2) for dt in range(2) for fb in range(7)] if seg==opt.seq[-1] else [(fb,at,dt) for fb in range(7) for at in range(2) for dt in range(2)]
        for fb,at,dt in order:
            if True:
                for t in (f"D{i}_{2*fb+dt}",f"H{i}_{2*fb+at}"): use.setdefault(t,len(mf))
                d=vr(A2[dt,at],16); mf.append(MF32(d, HOME[('D',i,2*fb+dt)], HOME[('H',i,2*fb+at)], "0" if (i==0 and fb==0) else d)+f" ;need D{i}_{2*fb+dt},H{i}_{2*fb+at}")
    N=len(mf); U0=P["v"]; Y0=U0+16
    def grp(L):
        out=[]; cur=[]
        for x in L:
            cur.append(x)
            if not x.startswith("s_"): out.append(cur); cur=[]
        return out
    ep=epilogue(3)
    dre=fuse(dloads(opt.nd4,56)); h0=fuse(gload('H',0,range(opt.nh3,14)))
    k1=opt.hk1; nd=min(len(dre),opt.hn3)
    head=ep[:k1]+([] if opt.nh3 else hcheck(0))+stamp("gh0")+sprinkle(ep[k1:],h0[:opt.f2i]+([hflag(2)] if opt.f2i<99 else [])+h0[opt.f2i:opt.p1i]+[hpoll(1)]+h0[opt.p1i:],opt.hsp)+flat(h_stores(3))+(hflag(2) if opt.f2i>=99 else [])+stamp("ghd")
    GH['h']=fuse(gload('H',0,range(14)))
    c=head+["L_g2:"]
    st=[]
    gl=[[f"s_lshl_b32 {sT0}, {sB2}, 9", f"s_add_u32 {sT0}, {sT0}, {WS_G}"],[f"buffer_load_dword {vG[0]}, v11, {SWS}, {sT0} offen sc1 ;@g"],[f"buffer_load_dword {vG[1]}, v11, {SWS}, {sT0} offen offset:256 sc1 ;@g"]]
    dleft=list(range(opt.nd4+nd+opt.dfill,56))
    def gl1(kind,i,n): return flat(gload(kind,i,[n]))
    def cls(i,last):
        ns=list(range(0,14,2))+list(range(1,14,2)) if last else list(range(14))
        dn=[k-14*i for k in dleft if k//14==i]
        if not dn: return fuse(gload('H',i,ns)),[]
        return None,(ns,dn)
    def merged(i,last):
        ns=list(range(0,14,2))+list(range(1,14,2)) if last else list(range(14))
        hs=fuse(gload('H',i,ns)); dn=sorted([k-14*i for k in dleft if k//14==i],key=lambda n: use[f'D{i}_{n}'])
        ds_=fuse(gload('D',i,dn)) if dn else []
        both=[(use[f"H{i}_{n}"],1,it) for n,it in zip(ns,hs)]+[(use[f"D{i}_{n}"],0,it) for n,it in zip(dn,ds_)]
        pre_=[it for u,k,it in both if k==0][:opt.dlead]
        return pre_,[it for u,k,it in sorted(both,key=lambda t:t[:2]) if it not in pre_]
    b0=dre[:nd]+[hcheck(1)]+merged(1,False)[1]+dre[nd:nd+opt.dfill]
    b0=b0[:opt.f3i]+[opt.f3,[f"s_add_u32 {sFA}, {sFA}, {112*128}","WAITVM h3",flag_store(sFA)]]+b0[opt.f3i:]
    blocks=[b0]; polls=[]
    for seg in opt.seq[2:]:
        if seg=="v": polls.append((poll_issue("pp",vPA2),poll_check("pp",vPA2,mask=0xff)+["s_barrier"],14)); blocks.append(dma_rp()+gl)
        else:
            i=int(seg); p_,m_=merged(i,seg==opt.seq[-1]); blocks[-1]=blocks[-1]+p_
            polls.append((hpoll(i),hcheck(i),28*(i-1))); blocks.append(m_)
    vm=[]
    for n,b in enumerate(blocks):
        if n<len(polls):
            k=max(0,len(b)-opt.plead); vm+=b[:k]+[14,polls[n][0]]+b[k:]+[polls[n][2],polls[n][1]]
        else: vm+=b
    use["RP0"]=U0-4; use["RP1"]=U0+2; use["g"]=Y0
    V=Stream(vm,0,N-4,prio=2,pace=opt.pace2/10); V.deadlines(use,opt.win); st.append(V)
    setup=xr_private()+pa_P('v9')+["v_and_b32 v11, 31, v0","v_and_b32 v10, 16, v0","v_add_u32 v11, v11, v10","v_lshlrev_b32 v11, 2, v11"]+["v_lshrrev_b32 v9, 5, v0","v_bfe_u32 v10, v0, 2, 2","v_lshl_add_u32 v9, v9, 2, v10",f"v_mul_u32_u24 {vTP}, {HS}, v9","v_bfe_u32 v9, v0, 4, 1",f"v_lshl_add_u32 {vTP}, v9, 5, {vTP}",
       "v_and_b32 v9, 3, v0",f"v_lshl_add_u32 {vTP}, v9, 3, {vTP}",f"v_add_u32 {vTP}, {L_H}, {vTP}"]
    grd=[f"ds_read_b64_tr_b16 {ar(gslot(js,at)+2*u,2)}, {vTP} offset:{(16*js+8*u)*HS+64*at} ;@gr" for js in range(4) for at in range(2) for u in range(2)]
    st.append(Stream(grp(setup),0,14,eager=True,prio=1))
    st.append(Stream(one(grd),30,44))
    st.append(Stream(grp(gen_Finv()),4,54,eager=True))
    for jt in range(2):
        rd=[f"ds_read_b128 {aslot(RSL[8*jt+k])}, {vXR[k]} offset:{jt*8192} ;@u{jt}" for k in range(8)]
        lo=U0-4+8*jt-2*jt
        st.append(Stream([[f"WAITVM RP{jt}",rd[0]]]+one(rd[1:]),lo,lo+4,eager=True,prio=3))
    for jt in range(2):
        cv=[f"v_cvt_pk_bf16_f32 v{PKR[2*jt+e//4]+e%4}, v{UA[jt]+2*e}, v{UA[jt]+2*e+1}" for e in range(8)]
        lo=U0+8*jt+10-jt
        st.append(Stream(one(cv),lo,lo+2,eager=True,prio=3))
    om=[[f"s_lshl_b32 {sT2}, {sQ}, 31"]]+one([f"v_sub_f32 {vOMG[0][at]}, 1.0, {vG[at]}" for at in range(2)]+[f"v_xor_b32 {vOMG[1][at]}, {sT2}, {vOMG[0][at]}" for at in range(2)])
    st.append(Stream(om,Y0+4,Y0+8))
    sc=[f"v_mul_f32 v{YA[at]+i}, {vG[at]}, v{YA[at]+i}" for at in range(2) for i in range(16)]
    vlast=opt.seq[-1]=="v"
    st.append(Stream(one(sc),Y0+10,Y0+16,eager=True,prio=3))
    assert not vlast
    def fin(at,dt):
        o=[]
        for q in range(4):
            a=A2[dt,at]+4*q; y=YA[at]+4*q
            o+=[f"v_fma_f32 v{a+i}, v{a+i}, {vOMG[dt][at]}, v{y+i}" for i in range(4)]
            o+=[f"ds_write_b128 {vXR[4*dt+q]}, {vr(a,4)} offset:{at*8192} ;@fw{at}"]
        return o
    fa=["v_lshrrev_b32 v136, 3, v0","v_and_b32 v137, 7, v0", f"s_lshl_b32 {sT1}, {sW}, 3", f"v_add_u32 v136, {sT1}, v136", "v_lshlrev_b32 v138, 1, v137","v_xor_b32 v138, v138, v136","v_and_b32 v138, 15, v138",
        "v_lshlrev_b32 v138, 4, v138","v_lshl_add_u32 v138, v136, 8, v138", "v_xor_b32 v139, 16, v138",
        "v_lshlrev_b32 v140, 15, v136","v_and_b32 v141, 3, v0","v_lshl_add_u32 v140, v141, 4, v140","v_bfe_u32 v141, v0, 2, 1","v_lshl_add_u32 v140, v141, 9, v140",
        "v_lshlrev_b32 v141, 31, v141","v_or_b32 v141, 1.0, v141",
        f"s_lshl_b32 {sT2}, {sB2}, 10", f"s_lshl_b32 {sT3}, {sCG}, 6", f"s_add_u32 {sT2}, {sT2}, {sT3}", f"s_add_u32 {sT3}, {sT2}, {32*32768}"]
    def frd(at,b): return [f"ds_read_b128 {vr(b+8*pw+4*e,4)}, v{138+e} offset:{pw*16384+at*8192} ;@fr" for pw in range(4) for e in range(2)]
    def fsum(at,b,pkd):
        o=[]
        if pkd:
            for i in range(4): o+=[f"v_pk_add_f32 {vr(b+2*i,2)}, {vr(b+2*i,2)}, {vr(b+16+2*i,2)}", f"v_pk_add_f32 {vr(b+8+2*i,2)}, {vr(b+8+2*i,2)}, {vr(b+24+2*i,2)}"]
        else:
            for i in range(16): o+=[f"v_add_f32 v{b+i}, v{b+i}, v{b+16+i}"]
        o+=[f"v_fmac_f32 v{b+i}, v141, v{b+8+i}" for i in range(8)]
        o+=[f"v_cvt_pk_bf16_f32 v{b+8+i}, v{b+2*i}, v{b+2*i+1}" for i in range(4)]
        return o+[f"buffer_store_dwordx4 {vr(b+8,4)}, v140, {SOUT}, {sT2 if at==0 else sT3} offen {opt.outf} ;@out"]
    st.append(Stream(grp(fa[:17])+one(fa[17:]),Y0+8,N-16))
    for n,(at,dt) in enumerate(((0,0),(0,1),(1,0))):
        lo=N-28+7*n+8
        st.append(Stream(one(fin(at,dt)),lo,min(lo+8,N),eager=True,prio=3-n))
    for k,nm in ((28,"g28"),(56,"g56"),(P[opt.seq[3]],"g84"),(P[opt.seq[4]],"g108")): addpre(k,stamp(nm))
    addpre(N-2,["WAITLG fw0","s_barrier"])
    c+=schedule(mf,st,pre,report=rep)
    c+=stamp("gend")
    f0=fsum(0,64,True); f11=fin(1,1)
    c+=frd(0,64)+f11+f0+["WAITLG fw1","s_barrier"]+stamp("red")+frd(1,32)+fsum(1,32,True)
    return c

MS=list(range(20,32))+list(range(60,64)); XS=list(range(20))+list(range(32,44))
def areg(n): return 128*(n%2)+4*(n//2)
def csv(i): return f'a{areg(32+i//4)+i%4}'
CP1,CQ,CR1,CU,CP2,CR2=[128+16*i for i in range(6)]
CX=224
ZP=96; DD=32; RAW=192
def pk(op,d,a,b,cc=None,nega=False,negb=False):
    s=f"v_pk_{op}_f32 {vr(d,2)}, {vr(a,2)}, {vr(b,2)}"+(f", {vr(cc,2)}" if cc is not None else "")
    n=3 if cc is not None else 2
    if nega or negb:
        m="["+",".join(["1" if nega else "0","1" if negb else "0","0"][:n])+"]"
        s+=f" neg_lo:{m} neg_hi:{m}"
    return s
def p2_wloads():
    sST,sBH,sCU="s16","s17","s18"
    su=[f"s_cmp_eq_u32 {sP}, 0", "s_cselect_b32 s8, s32, s36", "s_cselect_b32 s9, s33, s37", "s_mov_b32 s10, 1052672", "s_mov_b32 s11, 0x20000",
        f"s_sub_i32 {sCU}, 1984, {sB}", f"s_sub_i32 {sBH}, {1984-1024}, {sOH}", f"s_add_i32 {sT1}, {sOH}, 1024",
        f"s_cmp_eq_u32 {sQ}, 0", f"s_cselect_b32 {sCU}, {sB}, {sCU}", f"s_cselect_b32 {sBH}, {sT1}, {sBH}", f"s_cselect_b32 {sST}, 1, -1",
        f"s_mul_i32 {sCU}, {sCU}, 514", f"s_mul_i32 {sBH}, {sBH}, 514", f"s_add_u32 {sCU}, {sCU}, 2", f"s_and_b32 {sCU}, {sCU}, -4", f"s_add_u32 {sBH}, {sBH}, 2", f"s_and_b32 {sBH}, {sBH}, -4", f"s_mul_i32 {sST}, {sST}, 65792",
        "v_lshrrev_b32 v153, 5, v0", f"v_or_b32 v20, {sB}, v153", "v_min_u32 v20, 1, v20", "v_xor_b32 v20, 1, v20",
        f"v_xor_b32 v153, {sQ}, v153", "v_mul_u32_u24 v153, 32896, v153", "v_and_b32 v152, 31, v0", "v_lshl_add_u32 v152, v152, 4, v153",
        f"s_mul_i32 {sT1}, {sQ}, {1024*514}", f"v_mul_lo_u32 v153, v20, {sT1}", f"v_add_u32 v154, {sCU}, v152", "v_sub_u32 v154, v154, v153"]
    g=[[f"s_add_u32 m0, {sM16K}, {XB}", "s_nop 0", f"buffer_load_dwordx4 v154, {SWG}, 0 offen lds ;@wf"]]
    for i in range(1,16):
        g.append([f"s_add_u32 m0, {sM16K}, {XB+i*1024}", f"s_add_u32 {sCU}, {sCU}, {sST}" if i!=8 else f"s_mov_b32 {sCU}, {sBH}", f"buffer_load_dwordx4 v152, {SWG}, {sCU} offen lds ;@wf"])
    g.append(["v_and_b32 v154, 31, v0", "v_lshrrev_b32 v155, 4, v154", f"s_sub_i32 {sT1}, {sOH}, {sB}", f"v_mul_i32_i24 v155, {sT1}, v155", "v_lshl_add_u32 v154, v154, 6, v155",
              f"v_add_u32 v157, {sB}, v154", "v_sub_u32 v155, 2048, v157", "v_lshrrev_b32 v21, 11, v155", "v_lshrrev_b32 v155, v21, v155",
              "v_sub_u32 v155, v155, v157", "v_lshrrev_b32 v154, 5, v0", "v_mul_i32_i24 v155, v155, v154", "v_add_u32 v155, v155, v157",
              "v_mul_u32_u24 v155, 514, v155", f"s_lshl_b32 {sT1}, {sQ}, 9", f"buffer_load_ushort v8, v155, {SWG}, {sT1} offen ;@wf"])
    return su,g
def p2_consts():
    Cc,Ss,O=132,136,140
    c=[f"s_cmp_eq_u32 {sB}, 0", f"s_cselect_b32 {sHS2}, 1.0, 0",
       "v_and_b32 v128, 31, v0", "v_lshrrev_b32 v129, 4, v128", f"s_sub_i32 {sHS}, {sOH}, {sB}", f"v_mul_i32_i24 v130, {sHS}, v129", "v_lshl_add_u32 v130, v128, 6, v130",
       f"v_add_u32 v130, {sB}, v130",
       "v_cmp_eq_u32 vcc, 0, v130", "v_cvt_f32_u32 v130, v130", f"v_mul_f32 v130, {f2u(1/2048)}, v130",
       "v_cvt_f32_u32 v129, v129", f"v_mul_f32 v149, {sHS2}, v129", "v_sub_f32 v148, 1.0, v149", f"v_sub_f32 v150, 1.0, {sHS2}",
       "v_cndmask_b32 v151, 0, 1.0, vcc",
       "v_lshrrev_b32 v131, 5, v0", f"s_lshl_b32 {sHS}, {sW}, 3", f"v_lshl_add_u32 v129, v131, 1, {sHS}", "v_cvt_f32_u32 v129, v129", "v_mul_f32 v129, v129, v130",
       ]
    def blocks(fwd):
        o=[]; O=164 if fwd else 172
        for j in range(4):
            C,S=f"v{Cc+j}",f"v{Ss+j}"
            o+=[f"v_mul_f32 v160, v148, {C}", f"v_mul_f32 v161, v149, {C}", f"v_mul_f32 v162, v148, {S}", f"v_mul_f32 v163, v150, {C}",
                f"v_fma_f32 v161, -{S}, v150, v161", f"v_fmac_f32 v163, v149, {S}"]
            if fwd: o+=[f"v_cvt_pk_bf16_f32 v{O+j}, v160, v161", f"v_cvt_pk_bf16_f32 v{O+4+j}, v162, v163"]
            else:   o+=[f"v_cvt_pk_bf16_f32 v{O+j}, v160, v162", f"v_cvt_pk_bf16_f32 v{O+4+j}, v161, v163"]
        return o
    for j in range(4): c+=[f"v_fmamk_f32 v{Ss+j}, v130, {f2u(4*(j//2)+j%2)}, v129"]
    for j in range(4): c+=[f"v_cos_f32 v{Cc+j}, v{Ss+j}", f"v_sin_f32 v{Ss+j}, v{Ss+j}"]
    for j in range(4): c+=[f"v_add_f32 v{Ss+j}, v{Ss+j}, v151" if j%2==0 else f"v_sub_f32 v{Ss+j}, v{Ss+j}, v151"]
    c+=blocks(True)
    c+=[f"s_cmp_ge_u32 {sW}, 2", f"s_cselect_b32 {sHS}, {sOH}, {sB}", f"s_cselect_b32 {sLD}, {sHS2}, 0", f"v_mov_b32 v149, {sLD}",
        f"s_lshl_b32 {sLD}, {sW}, 9", f"s_add_i32 {sHS}, {sHS}, {sLD}", f"v_lshl_add_u32 v129, v131, 8, {sHS}",
        "v_cmp_eq_u32 vcc, 0, v129", "v_cvt_f32_u32 v129, v129", "v_cvt_f32_u32 v130, v128", f"v_mul_f32 v130, {f2u(1/2048)}, v130", "v_mul_f32 v129, v129, v130",
        "v_and_b32 v151, 1, v0", "v_cvt_f32_u32 v151, v151", "v_fma_f32 v151, v151, -2.0, 1.0", "v_cndmask_b32 v151, 0, v151, vcc",
        "v_sub_f32 v148, 1.0, v149"]+[f"v_mul_f32 v{r}, {f2u(2.0**-19)}, v{r}" for r in (148,149,150)]
    for j in range(4): c+=[f"v_fmamk_f32 v{Ss+j}, v130, {f2u(64*j)}, v129"]
    for j in range(4): c+=[f"v_cos_f32 v{Cc+j}, v{Ss+j}", f"v_sin_f32 v{Ss+j}, v{Ss+j}"]
    c+=[f"v_add_f32 v{Ss}, v{Ss}, v151"]
    c+=blocks(False)
    return c
def p2_raw(gam):
    return [f"ds_read_u16_d16_hi v{RAW+16*arr+rho}, v122 offset:{arr*16384+(8*(rho//4)+rho%4)*512+2*gam} ;@raw" for r2 in range(8) for arr in range(4) for rho in (2*r2,2*r2+1)]
def p2_coefs(gam):
    X=104; c=[]
    for r2 in range(8):
        rt,rm,it,im=[RAW+16*a+2*r2 for a in range(4)]
        c+=[pk("add",CP1+2*r2,rt,rm), pk("add",CU+2*r2,rt,rm,negb=True), pk("add",CQ+2*r2,it,im), pk("add",CR1+2*r2,it,im,negb=True)]
        if r2==0:
            c+=[f"v_fma_f32 v{CP1}, v121, v{rm}, v{rt}", f"v_fma_f32 v{CQ}, v121, v{im}, v{it}", f"v_mul_f32 v{CR1}, v121, v{CR1}", f"v_mul_f32 v{CU}, v121, v{CU}",
                f"v_fma_f32 v{X}, v121, v{rt}, v{rm}", f"v_mov_b32 v{X+1}, v{CP1+1}", f"v_fma_f32 v{X+2}, v121, v{it}, v{im}", f"v_mov_b32 v{X+3}, v{CQ+1}"]
    if gam==1:
        return c, [f"v_accvgpr_write_b32 {csv(i)}, v{128+i}" for i in range(64)]+[f"v_accvgpr_write_b32 {csv(64+i)}, v{X+i}" for i in range(4)]
    mv=lambda d,s_: f"v_mov_b64 {vr(d,2)}, {vr(s_,2)}"
    c+=[mv(CX,X),mv(CX+2,X+2),mv(CX+4,X)]+[mv(CP2+2*i,CP1+2*i) for i in range(8)]+[mv(CR2+2*i,CR1+2*i) for i in range(8)]
    lab[0]+=1; n=lab[0]
    c+=[f"s_cmp_lg_u32 {sW}, 0", f"s_cbranch_scc1 L_nr{n}"]
    NY=L_NY; NR=L_NR
    s=["v_and_b32 v100, 31, v0","v_lshlrev_b32 v100, 2, v100", f"v_add_u32 v101, {NR}, v100", f"v_add_u32 v100, {NY}, v100"]
    s+=[f"ds_read2_b32 {vr(108+2*w_,2)}, v101 offset0:{64*w_} offset1:{64*w_+32}" for w_ in range(4)]
    s+=["v_cvt_f32_u32 v96, v21","v_sub_f32 v96, 1.0, v96","s_waitcnt lgkmcnt(0)"]
    for o,(re_,im_) in enumerate(((110,114),(108,112))):
        s+=[f"v_fma_f32 v97, v96, v{re_+1}, v{re_}", f"v_fma_f32 v98, v96, v{re_}, v{re_+1}", f"v_sub_f32 v99, v{im_}, v{im_+1}", "v_mul_f32 v99, v96, v99",
            f"ds_write_b32 v100, v97 offset:{384*o}", f"ds_write_b32 v100, v99 offset:{384*o+128}", f"ds_write_b32 v100, v98 offset:{384*o+256}"]
    s+=["v_lshrrev_b32 v100, 5, v0","v_lshlrev_b32 v100, 4, v100",f"v_add_u32 v100, {NY}, v100","s_mov_b32 exec_lo, 1","s_mov_b32 exec_hi, 1"]
    for o,(P,R,Xx) in enumerate(((CP2,CR2,CX+4),(CP1,CR1,CX))):
        for q in range(4): s+=[f"ds_read_b128 {vr(P+4*q,4)}, v100 offset:{384*o+32*q}", f"ds_read_b128 {vr(R+4*q,4)}, v100 offset:{384*o+128+32*q}"]
        s+=[f"ds_read_b64 {vr(Xx,2)}, v100 offset:{384*o+256}"]
    s+=[f"v_mov_b64 {vr(x+2*i,2)}, 0" for x in (CQ,CU) for i in range(8)]+[f"v_mov_b64 {vr(CX+2,2)}, 0"]
    s+=["s_waitcnt lgkmcnt(0)","s_mov_b64 exec, -1", f"L_nr{n}:"]
    return c+s
def p2_ny():
    return [f"s_lshl_b32 {sT1}, {sW}, 8", f"s_add_u32 {sT1}, {sT1}, {L_H+64*HS}", f"v_lshl_add_u32 v100, v0, 2, {sT1}", "v_lshlrev_b32 v8, 16, v8", "v_mul_f32 v8, 0.5, v8", "ds_write_b32 v100, v8 ;@ny"]
def p2_fwd(gam, streams):
    rd=[f"ds_read_b64_tr_b16 {vr(ZP+(ks*2+ct)*4+2*u,2)}, {vWT[2+ct]} offset:{gam*8192+ks*2048+u*1024} ;@b{ks}" for ks in range(4) for ct in range(2) for u in range(2)]
    mf=[]; pre={}
    for ks in range(4):
        pre[4*ks]=[f"WAITLG b{ks}"]
        for ab in range(2):
            for ct in range(2):
                d=vr(DD+32*ab+16*ct,16)
                mf.append(MF32(d, aslot(MS[ks*4+ab]), vr(ZP+(ks*2+ct)*4,4), d if ks else "0"))
    return rd, schedule(mf,streams,pre)
def p2_point(gam):
    c=[]; T=232
    for r2 in range(8):
        r=2*r2
        ac,as_,bc,bs=[DD+16*i+r for i in range(4)]
        p1,q,r1,u=[x+r for x in (CP1,CQ,CR1,CU)]
        p2,r2_=(CP2+r,CR2+r) if gam==0 else (p1,r1)
        p1b,qb,p2b=(CX,CX+2,CX+4 if gam==0 else CX) if r2==0 else (p1,q,p2)
        o=[T+8*(r2%2)+2*i for i in range(4)]
        c+=[pk("mul",o[0],ac,p1), pk("mul",o[1],as_,p2), pk("mul",o[2],bc,p1b), pk("mul",o[3],bs,p2b),
            pk("fma",o[0],as_,q,o[0]), pk("fma",o[1],ac,q,o[1],nega=True), pk("fma",o[2],bs,qb,o[2]), pk("fma",o[3],bc,qb,o[3],nega=True),
            pk("fma",o[0],bc,r1,o[0]), pk("fma",o[1],bs,r2_,o[1]), pk("fma",o[2],ac,r1,o[2],nega=True), pk("fma",o[3],as_,r2_,o[3],nega=True),
            pk("fma",o[0],bs,u,o[0],nega=True), pk("fma",o[1],bc,u,o[1]), pk("fma",o[2],as_,u,o[2]), pk("fma",o[3],ac,u,o[3],nega=True)]
        for ct in range(2):
            for e in range(2): c+=[f"v_cvt_pk_bf16_f32 v{ZP+16*ct+r+e}, v{o[ct]+e}, v{o[2+ct]+e}"]
    return c
def p2_inv(gam, streams):
    mf=[]; st=list(streams); tiles=[(tau,ct) for tau in range(2) for ct in range(2)]
    def pack(tau,ct):
        o=[]
        for sg in range(2):
            s=DD+32*tau+16*ct+8*sg; t=248+4*sg
            o+=[f"v_cvt_pk_bf16_f32 v{t+i}, v{s+2*i}, v{s+2*i+1}" for i in range(4)]
            o+=[f"ds_write_b128 {vXR[2*ct+sg]}, {vr(t,4)} offset:{gam*8192+tau*4096} ;@ow"]
        return o
    for n,(tau,ct) in enumerate(tiles):
        d=vr(DD+32*tau+16*ct,16); k=0
        for ks in range(4):
            mf.append(MF32(d, vr(ZP+16*ct+4*ks,4), aslot(MS[ks*4+2+tau]), d if ks else "0"))
        if n<3: st.append(Stream(one(pack(tau,ct)),4*n+5,min(4*n+9,16),eager=True,prio=2))
    return schedule(mf,st),pack(1,1)
def p2_out(gam, base):
    rd=[f"ds_read_b128 {vr(base+4*i,4)}, {vXR[4+i//4]} offset:{gam*8192+i*1024} ;@or" for i in range(8)]
    stn=[[f"s_add_u32 {sT0}, s39, {gam*16384+(i%4)*524288+(i//4)*256}", f"buffer_store_dwordx4 {vr(base+4*i,4)}, {vXR[6]}, {SWS}, {sT0} offen sc1 ;@P{gam}"] for i in range(8)]
    return rd,stn
def p2():
    c=["L_p2:"]
    wo=["s_mov_b32 s34, 1052672","s_mov_b32 s35, 0x20000","s_mov_b32 s38, 1052672","s_mov_b32 s39, 0x20000", f"s_cmp_eq_u32 {sB}, 0", f"s_cselect_b32 {sOH}, -992, {sB}"]
    gf=gen_F()
    c+=gf[:opt.prek]+["s_waitcnt lgkmcnt(0)","s_mov_b32 s32, s6","s_mov_b32 s33, s7"]+srd_common()+wo
    dm=[]
    for kq in range(4): dm+=dma_x(XA,kq,f"x0q{kq}")
    su,wl=p2_wloads()
    gw=["s_mov_b32 s12, s14","s_mov_b32 s13, s15","s_mov_b32 s14, 1024","s_mov_b32 s15, 0x20000",
        f"v_add_u32 v156, {sXQ[0]}, {vL16}", "v_and_b32 v156, 1023, v156", f"s_mov_b32 m0, {L_GW}", "s_nop 0", f"buffer_load_dwordx4 v156, {SWU}, 0 offen lds ;@x0q3"]
    dm=dm[:4]+wl[:opt.q_e]+dm[4:12]+[eload(),gw]+dm[12:]+wl[opt.q_e:opt.q_np0]
    rest=su+gf[opt.prek:]+xr_addr()+gen_H()
    c+=sprinkle(rest, dm, opt.q_sp)+stamp("gen")
    xf=lambda ks: aslot(XS[ks])
    xr=[f"ds_read_b128 {xf(ks)}, {vXR[ks%8]} offset:{(ks//8)*16384} ;@x" for ks in range(32)]
    c+=["WAITVM x0q3","WAITLG all","s_barrier"]+stamp("x0")+xr[:6]
    def grp(L):
        out=[]
        for x in L:
            if x.startswith("s_cselect") and out: out[-1].append(x)
            else: out.append([x])
        return out
    hr=h_reads(); hm=h_mf(); co=grp(p2_consts())
    GS=[49,50,51,52,54,56,58]+list(range(11,20))
    ga=["v_lshrrev_b32 v22, 4, v0", "v_and_b32 v180, 15, v0", "v_xor_b32 v23, v22, v180", "v_lshlrev_b32 v23, 4, v23", "v_lshl_add_u32 v23, v180, 8, v23", f"v_add_u32 v180, {sM4K}, v23",
        "v_lshlrev_b32 v22, 4, v22", f"v_add_u32 v22, {L_GW}, v22"]+[f"v_xor_b32 v{180+i}, {64*i}, v180" for i in range(1,4)]
    gx=[f"ds_read_b128 {aslot(GS[ks])}, v{180+ks%4} offset:{(ks//4)*16384} ;@gx" for ks in range(16)]
    CO=Stream(co,12,32,eager=True); CO.carry=True
    st=[Stream(one(xr[6:]),0,14,eager=True,prio=3),Stream(one(ga)+p0_addr()+nonce(),0,24,eager=True,prio=1),Stream(one(hr[2:]),27,32,eager=True,prio=3),CO,
        Stream(one(gx[:7])+[20]+one(gx[7:]),14,27,eager=True,prio=2), Stream(wl[opt.q_np0:opt.q_npre],opt.q_wg,32,prio=2,pace=2)]
    c+=schedule(p0_mf(xf),st,{},report=rep)+stamp("p0l")
    co=flat(CO.items[CO.pos:])
    zero=[f"v_mov_b64 {vr(RAW+2*i,2)}, 0" for i in range(32)]
    ra=["v_lshrrev_b32 v120, 5, v0","v_and_b32 v121, 31, v0","v_lshlrev_b32 v121, 2, v121","v_lshl_add_u32 v120, v120, 11, v121", f"s_lshl_b32 {sT1}, {sW}, 7", f"s_add_u32 {sT1}, {sT1}, {XB}",
        f"s_and_b32 {sT0}, {sB}, 1", f"s_lshl_b32 {sT0}, {sT0}, 1", f"s_sub_u32 {sT1}, {sT1}, {sT0}", f"v_add_u32 v122, {sT1}, v120","v_cvt_f32_u32 v121, v20","v_sub_f32 v121, 1.0, v121"]
    c+=sprinkle(ra+t_pack(),wl[opt.q_npre:opt.q_n2],3)+hm[:2]+["WAITLG tw,gx","s_barrier"]+hr[:2]+zero[:16]+hm[2:]+r_pack()+r_back()+zero[16:]+flat(r_store())+stamp("p0")
    c+=[f"s_lshl_b32 {sFHS}, {sB}, 7", f"s_add_u32 {sFHS}, {sFHS}, {WS_FP}", f"s_cmp_eq_u32 {sW}, 0", f"s_cselect_b32 {sFHS}, {sFHS}, 0x40000000",
        f"buffer_store_dwordx2 v[0:1], {vFO}, {SWS}, {sFHS} offen sc1 ;@fl"]+flat(wl[opt.q_n2:])+[f"s_lshl_b32 {sT1}, {sW}, 13", f"s_add_u32 {sT1}, {sT1}, {WS_FR}", f"v_lshl_add_u32 v9, {vL}, 7, {sT1}"]
    c+=flat(flag_R_addr())+co
    c+=[f"s_lshr_b32 {sWC}, {sM4K}, 1", f"s_add_u32 {sT1}, {sWC}, {C0}", f"v_add_u32 v158, {sT1}, {vL16}", f"v_add_u32 v10, {C0}, {vL16}",
        "ds_write_b128 v158, v[164:167] ;@mw", "ds_write_b128 v158, v[168:171] offset:1024 ;@mw", f"ds_write_b128 {vTR}, v[172:175] ;@mw", f"ds_write_b128 {vTR}, v[176:179] offset:1024 ;@mw"]
    mrd=[f"ds_read_b128 {aslot(MS[n])}, v10 offset:{((n//4)*2048 if n%4<2 else 8192+((n//4)^1)*2048)+(n%2)*1024} ;@raw" for n in range(16)]
    gg=[f"ds_read_b128 {vr(128+4*(ks%8),4)}, v22 offset:{ks*64} ;@gg" for ks in range(16)]
    gm=[MF16("v[108:111]", vr(128+4*(ks%8),4), aslot(GS[ks]), "v[108:111]" if ks else "0") for ks in range(16)]
    ge=["v_and_b32 v112, 31, v0","v_lshlrev_b32 v112, 2, v112", f"s_lshl_b32 {sT1}, {sB}, 2", f"s_add_u32 {sT1}, {sT1}, {sW}", f"s_lshl_b32 {sT1}, {sT1}, 7", f"s_add_u32 {sT3}, {sT1}, {WS_G}",
        f"v_mul_f32 v108, {f2u(-math.log2(math.e))}, v108","v_exp_f32 v108, v108","v_add_f32 v108, 1.0, v108","v_rcp_f32 v108, v108"]
    cs=cons_scalars()
    c+=gg[:8]+cs[:12]+gm[:8]+gg[8:]+cs[12:]+gm[8:]+flat(pa_setup("v96"))+ge
    c+=["WAITVM Rst","WAITLG mw","s_barrier",flag_store(sT2),f"buffer_store_dword v108, v112, {SWS}, {sT3} offen sc1 ;@Gst"]+stamp("fr")+mrd+rot_scalars()
    c+=p2_ny()+["WAITVM wf","WAITLG ny","s_barrier"]+stamp("wl")
    c1,park=p2_coefs(1); r0_=p2_raw(0)
    dl=fuse(dloads(24,min(44,opt.nd4)))
    c+=p2_raw(1)+c1+sprinkle(park,[r0_[8*i:8*i+8] for i in range(8)],8)
    c+=[
        f"v_xor_b32 v96, {sB}, v0", "v_bfe_u32 v97, v0, 3, 1", "v_and_b32 v96, 3, v96", "v_lshrrev_b32 v99, 4, v0", "v_lshlrev_b32 v96, 4, v96", "v_lshrrev_b32 v98, 2, v0", "v_lshl_add_u32 v96, v97, 6, v96",
        "v_xor_b32 v98, v98, v99", "v_and_b32 v98, 1, v98", "v_lshl_add_u32 v96, v98, 12, v96", "v_lshl_add_u32 v29, v99, 16, v96",
        f"s_lshl_b32 {sHS2}, {sB}, 7", f"s_add_u32 {sHS2}, {sHS2}, {sM16K}", f"s_add_u32 {sHS2}, {sHS2}, {WS_R}"]
    late=tr_pattern(vWT[2],"v96",sM16K)+[f"v_xor_b32 {vWT[3]}, 64, {vWT[2]}"]
    late2=["v_and_b32 v232, 31, v0","v_lshrrev_b32 v233, 5, v0","v_and_b32 v234, 7, v0","v_xor_b32 v233, v233, v234","v_lshlrev_b32 v233, 4, v233",
        "v_lshl_add_u32 v233, v232, 7, v233", f"v_add_u32 {vXR[0]}, {sM16K}, v233"]+[f"v_xor_b32 {vXR[i]}, {32*i}, {vXR[0]}" for i in range(1,4)]
    sRO="s39"
    late2+=[f"s_lshl_b32 {sRO}, {sB}, 1", "v_lshrrev_b32 v235, 3, v0", f"v_xor_b32 v232, {sRO}, v0", "v_xor_b32 v232, v232, v235", "v_and_b32 v232, 7, v232", "v_lshlrev_b32 v232, 4, v232",
        "v_lshl_add_u32 v232, v235, 7, v232", f"v_add_u32 {vXR[4]}, {sM16K}, v232", f"v_xor_b32 {vXR[5]}, 16, {vXR[4]}",
        "v_lshlrev_b32 v234, 4, v234", f"v_lshl_add_u32 {vXR[6]}, v235, 16, v234",
        f"s_bfe_u32 {sT1}, {sB}, 0x10002", f"s_xor_b32 {sT1}, {sT1}, {sQ}", f"s_lshl_b32 {sT1}, {sT1}, 7", f"s_lshl_b32 {sRO}, {sP}, 15", f"s_add_u32 {sRO}, {sRO}, {sT1}",
        f"s_lshl_b32 {sT1}, {sB}, 9", f"s_add_u32 {sRO}, {sRO}, {sT1}", f"s_add_u32 {sRO}, {sRO}, {WS_RP}"]
    c0=p2_coefs(0); k=[i for i,x in enumerate(c0) if x.startswith("s_cmp_lg")][0]
    pr1=f"buffer_load_dwordx2 {vPOLL}, v9, {SWS}, 0 offen sc1 ;@pr"
    c+=([pr1] if opt.q_pe else [])+c0+stamp("prep")+([] if opt.q_pe else [pr1])
    pf=fuse(gload('D',0,range(14),lambda n: f"s_add_u32 m0, {sM16K}, {XB+n*1024}")+gload('D',1,range(2),lambda n: f"s_add_u32 m0, {sM16K}, {XB+(14+n)*1024}"))
    pf=[pf[2*i]+pf[2*i+1] for i in range(8)]
    q=pf+dl
    def take(n):
        o=q[:n]; del q[:n]; return o
    c+=[f"s_mov_b32 {sCNT}, 100000","WAITVM pr","L_prl:", f"v_cmp_ne_u64 vcc, {sNON}, {vPOLL}", "s_and_b64 exec, exec, vcc", "s_cbranch_scc0 L_prd",
        f"buffer_load_dwordx2 {vPOLL}, v9, {SWS}, 0 offen sc1 ;@skip", f"s_sub_u32 {sCNT}, {sCNT}, 1", "s_waitcnt vmcnt(0) ;@skip", "s_cbranch_scc0 L_prl",
        "L_prd:", "s_mov_b64 exec, -1"]+stamp("poll")
    rr=[[f"s_add_u32 m0, {sM16K}, {gam*8192+rg*1024}", f"s_add_u32 {sT0}, {sHS2}, {gam*8192+rg*262144}", f"buffer_load_dwordx4 v29, {SWS}, {sT0} offen sc1 lds ;@RR{gam}"] for gam in range(2) for rg in range(8)]
    c+=flat(rr[:8])+sprinkle(late,rr[8:11],4)+["WAITLG raw","s_barrier"]+stamp("con")
    t=[int(x) for x in opt.q_t.split(".")]; pt0=p2_point(0)
    rd0,f0=p2_fwd(0,[Stream(rr[11:]+take(t[5]),0,16,pace=2,prio=1),Stream(one(late2),0,16,eager=True)])
    c+=["WAITVM RR0"]+stamp("rr0")+rd0+f0+stamp("f0")+(sprinkle(pt0,take(t[0]),14,2) if opt.dearly else pt0[:opt.q_pi]+poll_issue("pd",vPA2)+pt0[opt.q_pi:]+poll_check("pd",vPA2,mask=0x7f7f)+["s_barrier"])+stamp("pt0")
    rest=[f"v_accvgpr_read_b32 v{128+i}, {csv(i)}" for i in range(64)]+[f"v_accvgpr_read_b32 v{CX+i}, {csv(64+i)}" for i in range(4)]
    o_rd,o_st=p2_out(0,192)
    i0,pk0=p2_inv(0,[Stream(one(rest[:30]),0,5,eager=True),Stream(take(t[2]),0,16,pace=2.2)])
    rd1,f1=p2_fwd(1,[Stream(one(o_rd),0,4,eager=True,prio=2),Stream(take(t[1])+[4]+o_st[:4],0,16,prio=1,pace=3),Stream(one(rest[30:]),0,16,eager=True)])
    c+=["WAITVM RR1"]+i0+rd1+pk0+stamp("i0")+f1+stamp("f1")
    c+=sprinkle(p2_point(1),o_st[4:]+take(t[3])+[hpoll(0)],15,2)+stamp("pt1")
    o_rd,o_st=p2_out(1,128)
    i1,pk1=p2_inv(1,[Stream(take(t[4]),0,16,pace=2.2)])
    c+=i1+o_rd[:4]+pk1+o_rd[4:]+flat(o_st)+stamp("main")
    c+=[f"s_add_u32 {sT1}, {sM16K}, {XB}", f"v_add_u32 v8, {sT1}, {vL16}","WAITVM pf"]
    c+=[f"ds_read_b128 {vslot(n)}, v8 offset:{n*1024} ;@D{n//14}_{n%14}" for n in range(16)]
    c+=flat(dloads(16,24) if not q else take(99))+["WAITVM P1","s_barrier ;after P1,P0,Gst",flag_store(sFHS)]+stamp("join")
    if not any('D1_9' in x for x in c if isinstance(x,str)): c+=flat(dloads(16,24))
    c+=flat(dloads(44,opt.nd4))+hcheck(0)+flat(GH['h'][:opt.p1i])+hpoll(1)+flat(GH['h'][opt.p1i:])+[f"s_mov_b32 {sFA}, 0x40000000"]+[flag_store(sFA)]*3+["WAITLG all","s_branch L_g2"]
    return c
Opt.joinvm=63

def tail():
    c=["s_cmp_lg_u32 s2, 0","s_cbranch_scc1 L_noe", f"buffer_store_dwordx2 {vNON}, {vFO}, {SWS}, 0 offen sc1", "L_noe:"]
    if opt.stamps:
        c+=["s_waitcnt vmcnt(0)",("s_memtime" if opt.stamps==1 else "s_memrealtime")+" s[98:99]","s_memrealtime s[96:97]","s_waitcnt lgkmcnt(0)",
            f"s_lshl_b32 {sT0}, s2, 2", f"s_add_u32 {sT0}, {sT0}, {sW}", f"s_lshl_b32 {sT0}, {sT0}, 7", f"s_add_u32 {sT0}, {sT0}, {WS_DBG}"]
        c+=["v_min_u32 v2, 1, v0","v_lshlrev_b32 v2, 30, v2"]
        for i in range(16): c+=[f"v_mov_b32 v8, s{70+2*i}", f"buffer_store_dword v8, {vFO}, {SWS}, {sT0} offen offset:{4*i}"]
    if opt.hold:
        c+=["s_waitcnt vmcnt(0)","L_hold:","s_memrealtime s[96:97]","s_waitcnt lgkmcnt(0)","s_sub_u32 s96, s96, s100",f"s_cmp_lt_u32 s96, {opt.hold}","s_cbranch_scc1 L_hold"]
    return c+["L_end:","s_endpgm"]

def build():
    a=prologue(); n0=nstamp[0]
    r0c,nx2=round0()
    m=g_start()+r0c+stamp("r0")+rounds(nx2)+stamp("r3")
    n1=nstamp[0]
    g2=gemm2()+tail()
    nstamp[0]=n0; inp2[0]=True
    pp=p2(); inp2[0]=False
    check_tags(a+m+g2); check_tags(a+pp)
    main,ad1=finalize(a+m+g2,opt.verbose)
    full,ad2=finalize(a+["L_mark:"]+pp)
    idx=[i for i,x in enumerate(full) if x.text=="L_mark:"][0]
    side=full[idx+1:]
    gi=[i for i,x in enumerate(main) if x.text=="L_g2:"][0]
    check_loads(full+main[gi:]); check_tags(full+main[gi:])
    check_init(main); check_init(full)
    ol,_=pad_hazards(mk(outl))
    print("nops main",ad1,"p2",ad2)
    if opt.drop:
        r0e=[i for i,x in enumerate(main) if x.text.startswith(f"v_mov_b32 {vGC0}, 0x")][0]
        x0s=[i for i,x in enumerate(main) if x.mn=="s_barrier"][0]
        def keep(i,x):
            if not (x0s<i<r0e): return True
            if 's' in opt.drop and x.mn.startswith("buffer_store_dwordx4"): return False
            if 'l' in opt.drop and x.kind=="vmem" and x.mn.startswith("buffer_load"): return False
            if 'w' in opt.drop and x.mn.startswith("ds_write"): return False
            if 't' in opt.drop and x.mn.startswith("ds_read"): return False
            if 'v' in opt.drop and x.mn=="s_waitcnt" and "vmcnt" in x.text: return False
            return True
        main=[x for i,x in enumerate(main) if keep(i,x)]
    if opt.plainst:
        main=[I(x.text.replace(" sc1",""),x.tag) if (x.mn.startswith("buffer_store") and (x.tag or "").startswith("h")) else x for x in main]
    return main+side+ol+mk(["L_codeend:","s_endpgm"])

HEAD = open("gated_mix__spectral_gfnet__glu_gated_geglu__prompt.s.ref").read().split("; Override launch")[0]
def emit(path):
    code=build()
    s=HEAD+"; @launch grid=(256,1,1) block=(256,1,1) lds=163840\n"
    s+='.amdgcn_target "amdgcn-amd-amdhsa--gfx950"\n.text\n'
    s+=f".globl {KNAME}\n.p2align 8\n.type {KNAME},@function\n{KNAME}:\n"
    for ins in code:
        t=" ".join(ins.text.split(";")[0].split())
        s+=(t if ins.kind=="label" else "    "+t)+"\n"
    s+='.section .rodata,"a"\n.p2align 6\n'
    s+=f".amdhsa_kernel {KNAME}\n  .amdhsa_next_free_vgpr 512\n  .amdhsa_next_free_sgpr 102\n  .amdhsa_accum_offset 256\n"
    s+="  .amdhsa_group_segment_fixed_size 0\n  .amdhsa_kernarg_size 88\n  .amdhsa_user_sgpr_count 2\n  .amdhsa_user_sgpr_kernarg_segment_ptr 1\n"
    s+="  .amdhsa_system_sgpr_workgroup_id_x 1\n  .amdhsa_float_denorm_mode_32 3\n.end_amdhsa_kernel\n"
    open(path,"w").write(s)
    return code
if __name__=="__main__":
    out=sys.argv[1]
    for a in sys.argv[2:]:
        k,v=a.split("=")
        cur=getattr(opt,k)
        setattr(opt,k, (v=="1") if isinstance(cur,bool) else (int(v) if isinstance(cur,int) else v))
    code=emit(out)
    from collections import Counter
    print(len(code), dict(Counter(i.kind for i in code)))
    if opt.verbose:
        for r in rep: print(len(r), sum(r), "".join("%x"%min(x,15) for x in r))
```

```python
import sys, struct, math
from asmlib import *

KNAME = "gated_mix__spectral_gfnet__glu_gated_geglu__prompt_kernel"
def f2u(x): return "0x%08x" % struct.unpack("<I", struct.pack("<f", x))[0]

WS_G   = 0x10000
WS_FP  = 0x4000
WS_FR  = 0x8000
WS_FD  = 0x18000
WS_FH  = 0x80000
WS_R   = 0x100000
WS_RP  = 0x300000
WS_H   = 0x500000
WS_D   = 0xC00000
WS_DBG = 0xF00000
WS_SIZE = 0x10000000
XA, XB, C0, C1 = 0, 65536, 131072, 147456
L_T, L_H = C0+8192, C1
HS=136
L_NR=L_H+64*HS; L_GW=L_NR+1024; L_NY=L_GW+1024
SX,SWG,SWU,SWD,SWS,SOUT,SGW,SWR,SWI = [f"s[{i}:{i+3}]" for i in (4,8,12,16,20,24,28,32,36)]
sNON="s[40:41]"
sW,sB,sCG,sRES,sRB4,sFB,sP,sQ = "s42","s43","s44","s45","s46","s47","s48","s49"
sXS,sWS0,sM4K,sHS,sFHS,sLD,sM16K,sROT = "s50","s51","s52","s53","s54","s55","s56","s57"
sT0,sT1,sT2,sT3 = "s58","s59","s60","s61"
sGC1,sSWP="s62","s63"
sPM="s[64:65]"; sPT="s[66:67]"; sCNT="s68"; sOH="s69"
sB2="s57"; sFC="s69"; sCC=["s64","s65","s66","s67"]
sRR=["s16","s17","s18","s19"]; sXQ=["s28","s29","s30","s31"]
sDB,sHB,sH0,sFH0,sX0,sHS2,sWC = "s32","s33","s34","s35","s36","s47","s38"
vL, vL16, vFO = "v0","v1","v2"
vG = ["v3","v4"]; vPA="v5"; vNON="v[6:7]"
vXO=[f"v{8+i}" for i in range(4)]
vXR=[f"v{12+i}" for i in range(8)]
vWO=[f"v{20+i}" for i in range(4)]
vWT=[f"v{24+i}" for i in range(4)]
vOMG=[["v20","v21"],["v22","v23"]]
vPA2="v28"; vTP="v29"; vPOLL="v[30:31]"
def vr(a,n): return f"v[{a}:{a+n-1}]"
def ar(a,n): return f"a[{a}:{a+n-1}]"
ACC=32; XR=96; ET=128; HP=[144,152]; vGC0='v24'

class Opt:
    stamps=0; hold=0; probe=''; inp2=False; outf="nt"; cpf=True; verbose=False
    sel='start,x0/qx0,p0/qp0,r0/qprep,r2/qpoll,r3/qmain,g28,g56,g84,g108,gend'
    slp=4; nomem=0; nopoll=''; plainst=0; drop=''
    rot7=0; fmode=0; dropp=0; q_pe=1; rotm=2; cmode=1; hnb=14; warm=1; pg0=2900; wna=4; q_h1=0; q_h2=0; tsp=1; done=0; q_hf=1; q_dum=3; ov=0; epe=36; f2g=4; s3i=14; nhb=14; q_slp=0; q_t='2.10.7.6'; q_nh=10; q_e=3; q_npre=11; q_sp=10; pdi=4; nd1=9; nd2=17; nd3=33; nd4=41; hb=46; fhg=40; seq='012v3'; hk1=8; hsp=5; hn1=3; hn2=10; p1g=60; p1c=70; ppg=36; ppc=48; pace2=15; win=11; dlead=4; f2i=0; p1i=6; dfill=4; id2=0; map2=0; f0=24; f1=24; f3=14; f3i=9; hn3=1; nh3=0; hb1=44; hb2=44; hb3=38; nds='4.9.14.33.33'; plead=9; hmode=1; p0g=58; fbar=1; rsg=-1; dsg=16; xsplit=1; hpre=1; gpre=0; nth='011224'; x2g=100; prek=4; npre=23; p0d=0; pace0=30; pace1=21; b01=20; order='x0.e.x1.x2.x3.z.d.w0.w1.w2.w3'; pdb=24; nw1=11; sp1=8; sp2=8; st2=60
opt=Opt()
nstamp=[0]; inp2=[False]; rep=[]
def stamp(name):
    if inp2[0]: name="q"+name
    if opt.probe==name: return ["s_memrealtime s[100:101]","s_waitcnt lgkmcnt(0)"]
    if not opt.stamps: return []
    idx=None
    for i,grp in enumerate(opt.sel.split(",")):
        if name in grp.split("/"): idx=i
    if idx is None: return []
    assert idx<13
    return [f"{'s_memtime' if opt.stamps==1 else 's_memrealtime'} s[{70+2*idx}:{71+2*idx}]","s_waitcnt lgkmcnt(0)"]
def MF32(d,a,b,c): return f"v_mfma_f32_32x32x16_bf16 {d}, {a}, {b}, {c}"
def MF16(d,a,b,c): return f"v_mfma_f32_16x16x32_bf16 {d}, {a}, {b}, {c}"
def flat(g): return [i for x in g for i in (x if isinstance(x,list) else [x])]
def one(L): return [[x] for x in L]
def sprinkle(main, items, every, start=0):
    out=[]; items=list(items); main=mk(main); due=0
    for n,ins in enumerate(main):
        if n>=start and (n-start)%every==0: due+=1
        if items and due and not ins.mn.startswith(("s_cselect","s_subb","s_addc","s_cbranch")):
            out+=mk(items.pop(0)); due-=1
        out.append(ins)
    for it in items: out+=mk(it)
    return out

lab=[0]; outl=[]
def poll_issue(tag, pa=vPA, so="0"):
    if opt.dropp and tag in opt.nopoll.split(","): return [f"buffer_load_dwordx2 {vPOLL}, off, {SWS}, 0 sc1 ;@{tag}"]
    return [f"buffer_load_dwordx2 {vPOLL}, {pa}, {SWS}, {so} offen sc1 ;@{tag}"]
def poll_check(tag, pa=vPA, so="0", mask=0x3fff):
    if tag in opt.nopoll.split(","): mask=0
    lab[0]+=1; n=lab[0]
    chk=[f"v_cmp_ne_u64 vcc, {sNON}, {vPOLL}", f"s_and_b32 {sCNT}, vcc_lo, {mask}"]
    outl.extend([f"L_pr{n}:", f"s_mov_b32 s3, 100000", f"L_pl{n}:", f"s_sleep {opt.slp}",
           f"buffer_load_dwordx2 {vPOLL}, {pa}, {SWS}, {so} offen sc1 ;@skip", f"s_sub_u32 s3, s3, 1", f"s_cbranch_scc1 L_pd{n}", "s_waitcnt vmcnt(0) ;@skip"]+chk+
           [f"s_cbranch_scc1 L_pl{n}", f"s_branch L_pd{n}"])
    return [f"WAITVM {tag}"]+chk+[f"s_cbranch_scc1 L_pr{n}", f"L_pd{n}:"]
def flag_store(soff): return f"buffer_store_dwordx2 {vNON}, {vFO}, {SWS}, {soff} offen sc1 ;@fl"

def dma4(vo, srds, tag, setup):
    g=[setup+[f"buffer_load_dwordx4 {vo[0]}, {srds[0]}, {sT0} offen lds ;@{tag}"]]
    for j in range(1,4): g.append([f"buffer_load_dwordx4 {vo[j]}, {srds[j]}, {sT0} offen offset:{j*1024} lds ;@{tag}"])
    return g
def dma_x(slot,kq,tag):
    return dma4(vXO,[SX]*4,tag,[f"s_add_u32 m0, {sM4K}, {slot+kq*16384}", f"s_add_u32 {sT0}, {sXS}, {sXQ[kq]}"])
def set_xs(r): return [f"s_lshl_b32 {sXS}, {sRR[r]}, 10", f"s_add_u32 {sXS}, {sXS}, {sX0}"]
def wslot(n): return (XB if n<4 else XA)+(n%4)*16384
def dma_w(i):
    su=[f"s_mul_i32 {sT0}, {sXQ[i//2]}, 1792", f"s_add_u32 m0, {sM4K}, {wslot(i)}", f"s_add_u32 {sT0}, {sT0}, {sWS0 if i%2==0 else sWC}"]
    return dma4(vWO,[SWG,SWU,SWG,SWU],f"W{i}",su)

def prologue():
    c=["s_cmp_ge_u32 s2, 256","s_cbranch_scc1 L_end"]
    if opt.stamps or opt.hold: c+=["s_memrealtime s[100:101]"]
    c+=stamp("start")
    c+=["s_load_dwordx4 s[4:7], s[0:1], 0",
        "s_load_dwordx8 s[8:15], s[0:1], 32",
        "s_load_dwordx2 s[20:21], s[0:1], 80",
        "s_load_dwordx2 s[36:37], s[0:1], 16",
        "s_load_dwordx2 s[24:25], s[0:1], 64"]
    c+=[f"s_lshr_b32 {sT1}, s2, 3"]
    if opt.cpf:
        c+=["s_getpc_b64 s[66:67]","L_pc:",f"s_lshl_b32 {sT0}, {sT1}, 11",f"v_lshl_add_u32 v8, v0, 7, {sT0}",
            "v_cmp_gt_u32 vcc, 16, v0","s_mov_b64 s[64:65], vcc","v_cmp_gt_u32 vcc, L_codeend-L_pc, v8","s_and_b64 vcc, vcc, s[64:65]",
            "v_mov_b32 v9, s67","s_and_saveexec_b64 s[64:65], vcc","s_cbranch_execz L_nopf",
            "v_add_co_u32 v8, vcc, s66, v8","v_addc_co_u32 v9, vcc, 0, v9, vcc","global_load_dword v255, v[8:9], off ;@skip","L_nopf:","s_mov_b64 exec, s[64:65]"]
    c+=["v_lshrrev_b32 v5, 6, v0","v_and_b32 v0, 63, v0",f"v_readfirstlane_b32 {sW}, v5",
        f"v_lshlrev_b32 {vL16}, 4, {vL}",
        f"s_and_b32 {sRES}, s2, 3", f"s_and_b32 {sT0}, s2, 4"]+([f"s_lshr_b32 {sCG}, {sT1}, 3", f"s_add_u32 {sCG}, {sCG}, {sT0}", f"s_and_b32 {sT1}, {sT1}, 7", f"s_lshl_b32 {sRB4}, {sT1}, 2"] if opt.map2 else
        [f"s_lshr_b32 {sCG}, {sT1}, 2", f"s_and_b32 {sT1}, {sT1}, 3", f"s_add_u32 {sRB4}, {sT0}, {sT1}", f"s_lshl_b32 {sRB4}, {sRB4}, 2"])+[ f"s_add_u32 {sB}, {sRB4}, {sRES}",
        (f"s_add_u32 {sROT}, {sT1}, {sCG}" if opt.rotm==0 else (f"s_mov_b32 {sROT}, {sCG}" if opt.rotm==1 else f"s_lshl_b32 {sROT}, {sT1}, 1")), (f"s_add_u32 {sROT}, {sROT}, {sCG}" if opt.rotm==2 else "s_nop 0"), f"s_and_b32 {sROT}, {sROT}, 3",
        f"s_lshr_b32 {sP}, {sW}, 1", f"s_and_b32 {sQ}, {sW}, 1", f"s_lshl_b32 {sM4K}, {sW}, 12", f"s_lshl_b32 {sM16K}, {sW}, 14",
        f"s_lshl_b32 {sXS}, {sW}, 19", f"s_lshl_b32 {sT0}, {sB}, 10", f"s_add_u32 {sXS}, {sXS}, {sT0}", f"s_lshl_b32 {sXQ[0]}, {sROT}, 8"]
    for kq in range(1,4): c+=[f"s_add_u32 {sXQ[kq]}, {sXQ[kq-1]}, 256", f"s_and_b32 {sXQ[kq]}, {sXQ[kq]}, 1023"]
    c+=["v_lshrrev_b32 v128, 4, v0", "v_and_b32 v129, 15, v0", "v_xor_b32 v131, v129, v128", "v_lshlrev_b32 v131, 4, v131", f"v_lshl_add_u32 {vXO[0]}, v128, 15, v131"]
    for j in range(1,4):
        c+=[f"v_xor_b32 v130, {64*j}, {vXO[0]}", f"v_add_u32 {vXO[j]}, {4*j*32768-j*1024}, v130"]
    c+=[f"s_cmp_eq_u32 {sCG}, 7","s_cbranch_scc1 L_p2"]
    return c
def srd_common():
    return [f"s_mov_b32 s6, {0 if opt.nomem&1 else 0x200000}","s_mov_b32 s7, 0x20000", f"s_mov_b32 s22, {WS_SIZE}","s_mov_b32 s23, 0x20000",
            "s_mov_b32 s26, 0x200000","s_mov_b32 s27, 0x20000"]
def cons_scalars():
    if opt.id2: c=[f"s_and_b32 {sB2}, s2, 7", f"s_lshl_b32 {sB2}, {sB2}, 2", f"s_bfe_u32 {sCC[0]}, s2, 0x20003", f"s_add_u32 {sB2}, {sB2}, {sCC[0]}"]
    elif opt.map2==1: c=[f"s_and_b32 {sB2}, s2, 4", f"s_bfe_u32 {sCC[0]}, s2, 0x20003", f"s_add_u32 {sB2}, {sB2}, {sCC[0]}", f"s_lshl_b32 {sB2}, {sB2}, 2", f"s_add_u32 {sB2}, {sB2}, {sRES}", f"s_mov_b32 {sCC[0]}, {sRES}"]
    else: c=[f"s_mov_b32 {sB2}, {sB}", f"s_mov_b32 {sCC[0]}, {sRES}"]
    if opt.map2==1: c+=[f"s_lshr_b32 {sCG}, s2, 5"]
    for i in range(1,4): c+=[f"s_sub_u32 {sCC[i]}, {sCC[0]}, {i}", f"s_and_b32 {sCC[i]}, {sCC[i]}, 3"]
    c+=[f"s_lshl_b32 {sDB}, {sCG}, 2", f"s_add_u32 {sDB}, {sDB}, {sW}", f"s_mul_i32 {sDB}, {sDB}, 57344", f"s_add_u32 {sDB}, {sDB}, {WS_D}",
        f"s_lshl_b32 {sHB}, {sB2}, 2", f"s_add_u32 {sHB}, {sHB}, {sW}", f"s_mul_i32 {sHB}, {sHB}, 57344", f"s_add_u32 {sHB}, {sHB}, {WS_H}",
        f"s_and_b32 {sFC}, {sB2}, 28", f"s_mul_i32 {sFC}, {sFC}, {28*128}", f"s_add_u32 {sFC}, {sFC}, {WS_FH}"]
    return c

FF=64
vHA,vHB,vTW,vTR,vBW="v28","v29","v3","v4","v30"
def gen_F():
    c=["v_and_b32 v128, 3, v0", "v_bfe_u32 v129, v0, 3, 2", "v_lshl_add_u32 v128, v129, 2, v128", "v_bfe_u32 v129, v0, 2, 1", "v_lshl_add_u32 v128, v129, 4, v128",
       f"s_lshr_b32 {sT3}, {sCG}, 1", f"s_lshl_b32 {sT3}, {sT3}, 6", f"s_and_b32 {sT2}, {sCG}, 1", f"s_add_u32 {sT2}, {sT2}, {sT3}", f"v_lshl_add_u32 v128, v128, 1, {sT2}",
       f"v_cvt_f32_u32 v129, {sP}", f"v_mul_f32 v129, {f2u(-0.25)}, v129",
       f"s_lshl_b32 {sT3}, {sP}, 8", f"v_mov_b32 v130, {sT3}",
       "v_cmp_eq_u32 vcc, 0, v128", "v_lshrrev_b32 v131, 5, v0", f"s_lshl_b32 {sT3}, {sROT}, 7",
       "v_cndmask_b32 v128, v128, v130, vcc", "v_cndmask_b32 v129, v129, 0, vcc",
       "v_cvt_f32_u32 v128, v128", f"v_mul_f32 v128, {f2u(1/512)}, v128",
       f"v_lshl_add_u32 v131, v131, 3, {sT3}", "v_cvt_f32_u32 v131, v131", "v_fmac_f32 v129, v131, v128",
       f"v_mul_f32 v130, {f2u(16.0)}, v128"]
    S0,S1=132,140
    c+=[f"v_mov_b32 v{S0}, v129", f"v_add_f32 v{S1}, v130, v129", "v_cos_f32 v130, v130"]
    for j in range(1,8): c+=[f"v_add_f32 v{S0+j}, v128, v{S0+j-1}", f"v_add_f32 v{S1+j}, v128, v{S1+j-1}"]
    c+=["v_add_f32 v130, v130, v130","v_mov_b32 v131, v130"]
    for j in range(16): c+=[f"v_cos_f32 v{S0+j}, v{S0+j}"]
    for j in range(8): c+=[f"v_cvt_pk_bf16_f32 v{FF+j}, v{S0+2*j}, v{S0+2*j+1}"]
    for ks in range(2,16):
        P,Cu=(S0,S1) if ks%2==0 else (S1,S0)
        for j in range(4): c+=[f"v_pk_fma_f32 {vr(P+2*j,2)}, v[130:131], {vr(Cu+2*j,2)}, {vr(P+2*j,2)} neg_lo:[0,0,1] neg_hi:[0,0,1]"]
        for j in range(4): c+=[f"v_cvt_pk_bf16_f32 v{FF+4*ks+j}, v{P+2*j}, v{P+2*j+1}"]
    return c
def gen_H(B=128):
    r,cf,ad,t=[f"v{B+i}" for i in range(4)]; V=B+4
    c=[f"v_and_b32 {r}, 15, v0", f"s_lshl_b32 {sT1}, {sW}, 4", f"v_add_u32 {r}, {sT1}, {r}", f"v_and_b32 {t}, 1, v0", f"v_lshrrev_b32 {cf}, 1, {r}",
       f"v_cvt_f32_u32 {t}, {t}", f"v_cvt_f32_u32 {cf}, {cf}", f"v_cmp_eq_u32 vcc, 1, {r}", f"v_mul_f32 {t}, {f2u(-0.25)}, {t}", f"v_mul_f32 {cf}, {f2u(1/64)}, {cf}",
       f"v_and_b32 {ad}, 48, v0", f"v_cndmask_b32 {t}, {t}, 0, vcc", f"v_cndmask_b32 {cf}, {cf}, 0.5, vcc", f"v_cvt_f32_u32 v{V}, {ad}", f"v_mul_u32_u24 {r}, {HS}, {r}",
       f"v_fmac_f32 {t}, v{V}, {cf}", f"v_lshl_add_u32 {ad}, {ad}, 1, {r}", f"v_add_u32 {ad}, {L_H}, {ad}"]
    for hf in range(2):
        c+=[f"v_fmamk_f32 v{V+j}, {cf}, {f2u(8*hf+j)}, {t}" for j in range(8)]
        c+=[f"v_cos_f32 v{V+j}, v{V+j}" for j in range(8)]
        c+=[f"v_cvt_pk_bf16_f32 v{V+j}, v{V+2*j}, v{V+2*j+1}" for j in range(4)]
        c+=[f"ds_write2_b64 {ad}, {vr(V,2)}, {vr(V+2,2)} offset0:{2*hf} offset1:{2*hf+1} ;@hw"]
    return c
def xr_addr():
    c=["v_and_b32 v128, 15, v0","v_and_b32 v130, 31, v0", f"s_lshl_b32 {sT2}, {sQ}, 13", f"v_lshl_add_u32 v130, v130, 8, {sT2}", "v_lshrrev_b32 v131, 5, v0",
       "v_xor_b32 v131, v131, v128", f"v_lshl_add_u32 {vXR[0]}, v131, 4, v130"]
    return c+[f"v_xor_b32 {vXR[i]}, {32*i}, {vXR[0]}" for i in range(1,8)]
def p0_addr():
    return [["v_lshrrev_b32 v2, 4, v0"],["v_lshlrev_b32 v2, 28, v2"],["v_lshl_add_u32 v2, v0, 3, v2"],
        ["v_and_b32 v31, 31, v0"],[f"v_mul_u32_u24 {vHA}, {HS}, v31"],
        [f"s_xor_b32 {sT1}, {sW}, 1", f"s_lshl_b32 {sT1}, {sT1}, 11", f"s_add_u32 {sT1}, {sT1}, {L_T}", f"v_lshl_add_u32 {vBW}, v31, 6, {sT1}", f"v_add_u32 {vTR}, {sT1}, {vL16}"],
        [f"v_xor_b32 {vTW}, 2048, {vTR}"],
        ["v_lshrrev_b32 v31, 5, v0"],[f"v_lshl_add_u32 {vHA}, v31, 3, {vHA}"],[f"v_lshl_add_u32 {vBW}, v31, 5, {vBW}"],
        [f"s_mul_i32 {sT1}, {sQ}, {32*HS-64}", f"s_add_u32 {sT1}, {sT1}, {L_H+64}", f"v_add_u32 {vHB}, {sT1}, {vHA}"],
        [f"s_mul_i32 {sT1}, {sQ}, {32*HS+64}", f"s_add_u32 {sT1}, {sT1}, {L_H}", f"v_add_u32 {vHA}, {sT1}, {vHA}"],
        ["v_bfe_u32 v31, v0, 1, 2"],["v_lshlrev_b32 v31, 4, v31"],[f"v_xor_b32 {vBW}, v31, {vBW}"],[f"v_xor_b32 v31, 16, {vBW}"]]
def eload(): return [f"buffer_load_dwordx2 {vNON}, off, {SWS}, 0 sc1 ;@E"]

TA=32; TPK=96; TOT=104; HFA=232; D2=32; RPK=48; RBK=56
def nonce():
    return [["WAITVM E","v_readfirstlane_b32 s40, v6"],["v_readfirstlane_b32 s41, v7"],["s_mul_i32 s40, s40, 0x9E3779B1"],["s_add_u32 s40, s40, 0x7F4A7C15"],
           ["s_mul_i32 s41, s41, 0x85EBCA6D"],["s_add_u32 s41, s41, 0xC2B2AE35"],["v_mov_b32 v6, s40"],["v_mov_b32 v7, s41"],
           [f"s_and_b32 {sT3}, {sCG}, 1"],[f"s_lshl_b32 {sT3}, {sT3}, 31"],[f"s_or_b32 {sT3}, {sT3}, 0x3f800000"],
           [f"s_lshl_b32 {sT2}, {sB}, 3"],[f"s_add_u32 {sT2}, {sT2}, {sCG}"],[f"s_lshl_b32 {sT2}, {sT2}, 2"],[f"s_add_u32 {sT2}, {sT2}, {sW}"],
           [f"s_lshl_b32 {sT2}, {sT2}, 11"],[f"s_add_u32 {sT2}, {sT2}, {WS_R}"]]
def p0_mf(xf):
    return [MF32(vr(TA+16*(ks//16),16), xf(ks), vr(FF+4*(ks%16),4), vr(TA+16*(ks//16),16) if ks%16 else "0") for ks in range(32)]
def x0_reads(xf,kq): return [f"ds_read_b128 {xf(ks)}, {vXR[ks%8]} offset:{kq*16384} ;@r" for ks in range(8*kq,8*kq+8)]
def t_pack():
    c=[]
    for sg in range(2):
        c+=[f"v_pk_fma_f32 {vr(TA+8*sg+2*i,2)}, {vr(TA+16+8*sg+2*i,2)}, s[60:61], {vr(TA+8*sg+2*i,2)} op_sel:[0,1,0] op_sel_hi:[1,1,1]" for i in range(4)]
        c+=[f"v_cvt_pk_bf16_f32 v{TPK+4*sg+i}, v{TA+8*sg+2*i}, v{TA+8*sg+2*i+1}" for i in range(4)]
        c+=[f"ds_write_b128 {vTW}, {vr(TPK+4*sg,4)} offset:{1024*sg} ;@tw"]
    return c
def h_reads():
    return [f"ds_read_b128 {vr(TOT+4*sg,4)}, {vTR} offset:{1024*sg} ;@hr" for sg in range(2)]+\
           [f"ds_read2_b64 {ar(HFA+8*o+4*sg,4)}, {vHA if o==0 else vHB} offset0:{4*sg} offset1:{4*sg+2} ;@hr" for o in range(2) for sg in range(2)]
def h_mf(): return [MF32(vr(D2,16), vr(TPK+4*n,4), ar(HFA+4*n,4), vr(D2,16) if n else "0") for n in range(4)]
def r_pack():
    c=[]
    for e in range(2):
        c+=[f"v_cvt_pk_bf16_f32 v{RPK+4*e+i}, v{D2+8*e+2*i}, v{D2+8*e+2*i+1}" for i in range(4)]
        c+=[f"ds_write_b128 {vBW if e==0 else 'v31'}, {vr(RPK+4*e,4)} ;@bw"]
    return c
def r_back(): return [f"ds_read_b128 {vr(RBK+4*e,4)}, {vTR} offset:{1024*e} ;@br" for e in range(2)]
def r_store():
    return [["WAITLG br", f"buffer_store_dwordx4 {vr(RBK,4)}, {vL16}, {SWS}, {sT2} offen sc1 ;@Rst"],
            [f"buffer_store_dwordx4 {vr(RBK+4,4)}, {vL16}, {SWS}, {sT2} offen offset:1024 sc1 ;@Rst"]]
def flag_R_addr(sT2=sT2):
    return [[f"s_lshl_b32 {sT2}, {sCG}, 5", f"s_add_u32 {sT2}, {sT2}, {sB}"],[f"s_lshl_b32 {sT2}, {sT2}, 7", f"s_add_u32 {sT2}, {sT2}, {WS_FR}"],
            [f"s_cmp_eq_u32 {sW}, 0", f"s_cselect_b32 {sT2}, {sT2}, 0x40000000"]]

def g_start():
    wo=["v_lshrrev_b32 v150, 3, v0", "v_and_b32 v151, 7, v0", "v_and_b32 v152, 2, v150", "v_lshlrev_b32 v5, 1, v152", "v_xor_b32 v5, v5, v151", "v_lshlrev_b32 v5, 4, v5", "v_lshl_add_u32 v5, v150, 10, v5",
        "v_xor_b32 v151, v151, v152", "v_mul_u32_u24 v150, 3584, v150",
        f"v_lshl_add_u32 {vWO[0]}, v151, 4, v150", "v_xor_b32 v151, 4, v151", f"v_lshl_add_u32 {vWO[1]}, v151, 4, v150",
        f"v_add_u32 {vWO[2]}, {8*3584-2048}, {vWO[0]}", f"v_add_u32 {vWO[3]}, {8*3584-2048}, {vWO[1]}",
        f"s_mul_i32 {sFB}, {sRES}, 7", f"s_add_u32 {sFB}, {sFB}, {sCG}",
        f"s_mul_i32 {sWS0}, {sW}, {16*3584}", f"s_lshl_b32 {sWC}, {sFB}, 7", f"s_add_u32 {sWS0}, {sWS0}, {sWC}", f"s_add_u32 {sWC}, {sWS0}, {64*3584}",
        "s_mov_b32 s64, s12","s_mov_b32 s65, s13","s_mov_b32 s66, 1835008","s_mov_b32 s67, 0x20000",
        "s_sub_u32 s12, s10, 1024","s_subb_u32 s13, s11, 0",f"s_mov_b32 s10, {0 if opt.nomem&2 else 1835008}",f"s_mov_b32 s14, {0 if opt.nomem&2 else 1836032}","s_mov_b32 s11, 0x20000","s_mov_b32 s15, 0x20000"]
    gf=gen_F()
    k=[i for i,x in enumerate(wo) if x.startswith("s_mov_b32 s64")][0]
    c=wo[:k]+gf[:opt.prek]+["s_waitcnt lgkmcnt(0)"]+srd_common()+wo[k:]
    dm=start_dmas()[:opt.npre]
    rest=[f"s_lshr_b32 {sOH}, {sM4K}, 1", f"s_add_u32 {sOH}, {sOH}, {C0}", f"s_lshl_b32 {sCNT}, {sFB}, 16", f"s_add_u32 {sCNT}, {sCNT}, {sM16K}", f"s_lshl_b32 {sT1}, {sRB4}, 5", f"s_add_u32 {sCNT}, {sCNT}, {sT1}"]
    c=c[:]; k0=[i for i,x in enumerate(c) if x.startswith("s_waitcnt lgkmcnt")][0]
    c=c[:k0]+rest+c[k0:]
    rest=gf[opt.prek:]+xr_addr()+(gen_H() if opt.hpre else [])
    if "z" in opt.order:
        gs=g_scalars(); k1=[i for i,x in enumerate(gs) if x.startswith(f"s_lshl_b32 {sFH0}")][0]
        rest=["v_lshrrev_b32 v2, 4, v0","v_and_b32 v29, 15, v0",f"v_mul_u32_u24 v28, {28*128}, v2","v_lshlrev_b32 v2, 28, v2","v_lshl_add_u32 v28, v29, 3, v28","v_lshl_add_u32 v2, v0, 3, v2"]+gs[k1:k1+6]+flat(flag_R_addr(sFHS))+rest
    if opt.gpre:
        gv,gsc=g_setup(); rest=rest+gv+gsc
    n1=opt.nw1*opt.sp1; n2=max(n1,len(rest)-(len(dm)-opt.nw1)*opt.sp2)
    c+=stamp("karg")+sprinkle(rest[:n2], dm[:opt.nw1], opt.sp1)+stamp("gen1")+sprinkle(rest[n2:], dm[opt.nw1:], opt.sp2)+stamp("gen")
    return c
SD="s[64:67]"
def start_dmas():
    dd=[[f"s_mov_b32 m0, {sOH}", f"s_add_u32 {sT0}, {sCNT}, {8192-1024}", f"buffer_load_dwordx4 v5, {SD}, {sCNT} offen lds ;@Wd"],
        [f"buffer_load_dwordx4 v5, {SD}, {sT0} offen offset:1024 lds ;@Wd"]]
    dm=[]
    for tok in opt.order.split("."):
        if tok[0]=="x": dm+=dma_x(XA,int(tok[1]),f"x0q{tok[1]}")
        elif tok[0]=="w": dm+=dma_w(int(tok[1]))
        elif tok=="e": dm+=[eload()]
        elif tok=="d": dm+=dd
        elif tok=="z": dm+=[[f"buffer_store_dwordx2 v[0:1], v28, {SWS}, {sFH0} offen sc1 ;@fz"],[f"buffer_store_dwordx2 v[0:1], v2, {SWS}, {sFHS} offen sc1 ;@fz"]]
    assert len(dm)==35+2*('z' in opt.order)
    assert all('@fz' not in it[-1] for it in dm[opt.npre:])
    assert all('@x0' not in it[-1] for it in dm[opt.npre:])
    for i in range(4,8): dm+=dma_w(i)
    return dm
def g_setup():
    c=["v_lshrrev_b32 v60, 4, v0","v_bfe_u32 v61, v0, 2, 2","v_and_b32 v62, 3, v0","v_bfe_u32 v63, v0, 3, 2", f"s_lshl_b32 {sT1}, {sP}, 1",
       "v_lshlrev_b32 v62, 3, v62", f"v_xor_b32 v63, {sT1}, v63", "v_lshl_add_u32 v62, v61, 7, v62",
       f"v_lshl_add_u32 {vWT[3]}, v60, 10, v62", "v_lshrrev_b32 v60, 5, v0", f"v_lshl_add_u32 {vWT[3]}, v63, 5, {vWT[3]}", "v_bfe_u32 v61, v0, 4, 1",
       f"v_add_u32 {vWT[0]}, {XB}, {vWT[3]}", "v_lshl_add_u32 v62, v60, 9, v62", "v_bfe_u32 v63, v0, 3, 1", f"v_xor_b32 {vWT[1]}, 32, {vWT[0]}",
       "v_lshl_add_u32 v62, v61, 5, v62", "v_lshl_add_u32 v62, v63, 6, v62",
       f"v_add_u32 {vWT[2]}, {sOH}, v62", f"v_xor_b32 {vWT[3]}, 64, {vWT[2]}",
       f"s_lshl_b32 {sLD}, {sRB4}, 1", f"s_and_b32 {sLD}, {sLD}, 24", f"s_add_u32 {sLD}, {sLD}, {sW}", f"s_mul_i32 {sLD}, {sLD}, 28", f"s_add_u32 {sLD}, {sLD}, {sFB}", f"s_lshl_b32 {sLD}, {sLD}, 1",
       f"s_lshr_b32 {sT1}, {sRB4}, 4", f"s_add_u32 {sLD}, {sLD}, {sT1}", f"s_lshl_b32 {sLD}, {sLD}, 10", f"s_add_u32 {sLD}, {sLD}, {WS_D}", f"s_add_u32 {sHS}, {sLD}, {4*57344}"]
    k=[i for i,x in enumerate(c) if x.startswith(f's_lshl_b32 {sLD}')][0]
    return c[:k], c[k:]
def g_scalars():
    c=[f"s_mov_b32 {sRR[0]}, {sRES}"]
    for r in range(1,4): c+=[f"s_add_u32 {sRR[r]}, {sRES}, {r}", f"s_and_b32 {sRR[r]}, {sRR[r]}, 3"]
    c+=[f"s_lshl_b32 {sX0}, {sW}, 9", f"s_add_u32 {sX0}, {sX0}, {sRB4}", f"s_lshl_b32 {sX0}, {sX0}, 10",
        f"s_lshl_b32 {sH0}, {sRB4}, 1", f"s_add_u32 {sH0}, {sH0}, {sP}", f"s_mul_i32 {sH0}, {sH0}, 56", f"s_add_u32 {sH0}, {sH0}, {sFB}",
        f"s_lshl_b32 {sH0}, {sH0}, 1", f"s_add_u32 {sH0}, {sH0}, {sQ}", f"s_lshl_b32 {sH0}, {sH0}, 10", f"s_add_u32 {sH0}, {sH0}, {WS_H}",
        f"s_lshl_b32 {sFH0}, {sW}, 17", f"s_add_u32 {sFH0}, {sFH0}, {sRB4}", f"s_mul_i32 {sFH0}, {sFH0}, 28", f"s_add_u32 {sFH0}, {sFH0}, {sFB}",
        f"s_lshl_b32 {sFH0}, {sFH0}, 7", f"s_add_u32 {sFH0}, {sFH0}, {WS_FH}",
        f"s_mov_b32 {sGC1}, {f2u(-2*math.sqrt(2/math.pi)*math.log2(math.e)*0.044715)}"]
    return c
def pa_setup(t="v31"):
    a=[[f"s_lshl_b32 {sT1}, {sW}, 1", f"v_add_u32 {t}, {sT1}, {vL}"],[f"v_min_u32 {t}, 6, {t}"]] if opt.cmode else [[f"v_min_u32 {t}, 6, {vL}"]]
    return a+[[f"v_lshl_add_u32 {vPA}, {t}, 7, {sFC}"],[f"v_lshrrev_b32 {t}, {1 if opt.cmode else 3}, {vL}"],[f"v_min_u32 {t}, 1, {t}"],[f"v_lshl_add_u32 {vPA}, {t}, 30, {vPA}"],
            [f"v_and_b32 {t}, 7, {vL}"],[f"s_lshr_b32 {sT1}, {sCG}, 1", f"s_lshl_b32 {sT1}, {sT1}, 2", f"s_add_u32 {sT1}, {sT1}, {sW}", f"s_lshl_b32 {sPO}, {sT1}, 7"],
            [f"s_add_u32 {sT1}, {sPO}, {WS_FR if opt.done else WS_FD}", f"v_lshl_add_u32 {vPA2}, {t}, 12, {sT1}"],
            [f"v_bfe_u32 {t}, {vL}, 3, 1"],[f"v_lshl_add_u32 {vPA2}, {t}, 11, {vPA2}"],[f"v_lshrrev_b32 {t}, 4, {vL}"],[f"v_lshl_add_u32 {vPA2}, {t}, 28, {vPA2}"]]
sPO="s63"
def pa_P(t): return [f"s_lshl_b32 {sT1}, {sW}, 10", f"s_add_u32 {sT1}, {sT1}, {WS_FP}", f"v_lshl_add_u32 {vPA2}, {vL}, 7, {sT1}", f"v_lshrrev_b32 {t}, 3, {vL}", f"v_lshl_add_u32 {vPA2}, {t}, 28, {vPA2}"]
def hpoll(i): return [f"s_mul_i32 {sPO}, {sCC[i]}, {7*128}", f"s_add_u32 {sPO}, {sPO}, {i*28*128}"]+poll_issue(f"ph{i}",vPA,sPO)
def hcheck(i): return (poll_check(f"ph{i}",vPA,sPO,mask=3)+["s_barrier"] if opt.cmode else poll_check(f"ph{i}",vPA,sPO,mask=0xff))
def hflag(r): return [f"s_add_u32 {sFA}, {sFH0}, {r*28*128}", f"WAITVM h{r}", "s_barrier", flag_store(sFA)]

def wfrag(tau,ks): return 128*tau+4*ks
def xread(ks, tag="r"): return f"ds_read_b128 {vr(XR+4*(ks%8),4)}, {vXR[ks%8]} offset:{(ks//8)*16384} ;@{tag}"
def g1_mf(rnd,ks):
    s=ACC+32*((rnd+1)%2); x=vr(XR+4*(ks%8),4) if rnd else vr(128+4*ks,4)
    return [MF32(vr(s+16*t,16), ar(wfrag(t,ks),4), x, vr(s+16*t,16) if ks else "0") for t in range(2)]
def xr_flip(): return [f"v_xor_b32 {r}, {XB}, {r}" for r in vXR]
def h_stores(rnd):
    return [[f"s_mul_i32 {sHS}, {sRR[rnd]}, 229376", f"s_add_u32 {sHS}, {sHS}, {sH0}", f"s_add_u32 {sHS2}, {sHS}, 57344"]]+\
           [[f"buffer_store_dwordx4 {vr(HP[rnd%2]+4*t,4)}, {vL16}, {SWS}, {sHS if t==0 else sHS2} offen sc1 ;@h{rnd}"] for t in range(2)]
def epilogue(rnd):
    s=ACC+32*((rnd+1)%2); c=[]
    for t in range(2):
        for hh in range(2):
            g=[s+16*t+4*hh+i for i in range(4)]; u=[x+8 for x in g]
            A=ET+8*((2*t+hh)%2); Bq=A+4
            for i in range(4): c+=[f"v_mul_f32 v{A+i}, v{g[i]}, v{g[i]}"]
            for i in range(4): c+=[f"v_fma_f32 v{A+i}, v{A+i}, {sGC1}, {vGC0}"]
            for i in range(4): c+=[f"v_mul_f32 v{A+i}, v{A+i}, v{g[i]}"]
            for i in range(4): c+=[f"v_exp_f32 v{A+i}, v{A+i}", f"v_mul_f32 v{Bq+i}, v{g[i]}, v{u[i]}"]
            for i in range(4): c+=[f"v_add_f32 v{A+i}, 1.0, v{A+i}"]
            for i in range(4): c+=[f"v_rcp_f32 v{A+i}, v{A+i}"]
            for i in range(4): c+=[f"v_mul_f32 v{Bq+i}, v{Bq+i}, v{A+i}"]
            c+=[f"v_cvt_pk_bf16_f32 v{HP[rnd%2]+4*t+2*hh}, v{Bq}, v{Bq+1}", f"v_cvt_pk_bf16_f32 v{HP[rnd%2]+4*t+2*hh+1}, v{Bq+2}, v{Bq+3}"]
    return c

def areg(n): return 4*n if opt.tsp else 128*(n%2)+4*(n//2)
def aslot(n): return ar(areg(n),4)
def vslot(n): return vr(160+4*n,4)
HOME={}
SLOT={}
def _homes():
    for n in range(14):
        for key,sl in ((('D',0,n),('v',n)), (('D',1,n),('v',14+n) if n<10 else ('a',n-10)), (('H',0,n),('a',4+n)), (('D',2,n),('a',18+n)), (('D',3,n),('a',32+n)),
                       (('H',1,n),('a',46+n)), (('H',2,n),('v',n)), (('H',3,n),('v',14+n) if n<10 else ('a',n-10))):
            HOME[key]=vslot(sl[1]) if sl[0]=='v' else aslot(sl[1]); SLOT[f"{key[0]}{key[1]}_{n}"]=sl
sR7=[f"s{8+i}" for i in range(7)]; sLB={'D':"s15",'H':"s51"}; sLO={'D':"s37",'H':"s55"}
def rot_scalars():
    if not opt.rot7: return [f"s_mov_b32 {sR7[i]}, {2048*i}" for i in range(7)]
    c=[f"s_lshr_b32 {sR7[0]}, {sB2}, 1", f"s_and_b32 {sR7[0]}, {sR7[0]}, 6", f"s_add_u32 {sR7[0]}, {sR7[0]}, {sCG}", f"s_lshl_b32 {sR7[0]}, {sR7[0]}, 11",
       f"s_sub_u32 {sR7[1]}, {sR7[0]}, 14336", f"s_min_u32 {sR7[0]}, {sR7[0]}, {sR7[1]}"]
    for i in range(1,7): c+=[f"s_add_u32 {sR7[i]}, {sR7[i-1]}, 2048", f"s_sub_u32 {sLB['D']}, {sR7[i]}, 14336", f"s_min_u32 {sR7[i]}, {sR7[i]}, {sLB['D']}"]
    return c
def gload(kind,i,ns,lds=None):
    base=sDB if kind=='D' else sHB; B=sLB[kind]; O=sLO[kind]
    g=[]; cur=None
    for n in ns:
        pre=[]
        if cur is None: pre=[f"s_mul_i32 {B}, {sCC[i]}, 14336", f"s_add_u32 {B}, {B}, {base}"]
        if n//2!=cur: pre+=[f"s_add_u32 {O}, {B}, {sR7[n//2]}"]
        cur=n//2
        if lds:
            if n%2==0: pre=[lds(n)]+pre
            if pre: g.append(pre)
            g.append([f"buffer_load_dwordx4 {vL16}, {SWS}, {O} offen offset:{(n%2)*1024} sc1 lds ;@pf"])
            continue
        if pre: g.append(pre)
        g.append([f"buffer_load_dwordx4 {HOME[(kind,i,n)]}, {vL16}, {SWS}, {O} offen offset:{(n%2)*1024} sc1 ;@{kind}{i}_{n}"])
    return g

def fuse(items):
    o=[]; cur=[]
    for it in items:
        cur+=it
        l=it[-1]; l=l if isinstance(l,str) else l.text
        if l.startswith("buffer"): o.append(cur); cur=[]
    if cur: o.append(cur)
    return o
def round0():
    xf=lambda ks: vr(128+4*ks,4)
    def trw(i):
        return [f"ds_read_b64_tr_b16 {ar(wfrag(t,4*i+ks)+2*u,2)}, {vWT[t]} offset:{(i%4)*16384+ks*4096+u*512} ;@t{i}" for ks in range(4) for t in range(2) for u in range(2)]
    xr=[f"ds_read_b128 {xf(ks)}, {vXR[ks%8]} offset:{(ks//8)*16384} ;@x" for ks in range(32)]
    E=lambda items,lo,hi,prio=3: Stream(items,lo,hi,eager=True,prio=prio)
    ch=lambda n: [m+f" ;need t{n}" for ks in range(4*n,4*n+4) for m in g1_mf(0,ks)]
    hr=h_reads(); no=nonce(); sd=start_dmas()
    if opt.xsplit:
        c=["L_WARM_A:","WAITVM x0q0,x0q1","WAITLG all","s_barrier"]+stamp("x0")+xr[:6]
        pre={8:["WAITVM x0q2,x0q3","s_barrier"],20:["WAITLG x,hw","s_barrier"]+stamp("s1")}; bXA=20
        st=[E(one(xr[6:16]),0,7),E(one(xr[16:]),8,17)]
    else:
        c=["WAITVM x0q0,x0q1,x0q2,x0q3","WAITLG all","s_barrier"]+stamp("x0")+xr[:6]
        pre={17:["WAITLG x,hw","s_barrier"]+stamp("s1")}; bXA=17
        st=[E(one(xr[6:]),0,14)]
    def grp(L):
        out=[]; cur=[]
        for x in L:
            cur.append(x)
            if not (x.startswith("s_") and sT1 in x.split(",")[0]): out.append(cur); cur=[]
        return out
    gv,gsc=g_setup()
    if opt.gpre: gv=[]; gsc=[]
    st+=[E(([] if opt.hpre else grp(gen_H(48)))+grp(gv),0,15,1), E(grp(gsc),4,opt.dsg+2,1), E(p0_addr()+no[8:],8,27,0), E(one(hr[2:]),28,32)]
    dr=["WAITVM Wd"]+[f"ds_read_b64_tr_b16 {ar(248+4*i+2*u,2)}, {vWT[2+i]} offset:{u*1024} ;@dr" for i in range(2) for u in range(2)]
    ds=[f"buffer_store_dwordx4 a[248:251], {vL16}, {SWS}, {sLD} offen sc1 ;@Dst", f"buffer_store_dwordx4 a[252:255], {vL16}, {SWS}, {sHS} offen sc1 ;@Dst"]
    if not opt.done: st+=[E([dr],opt.dsg,opt.dsg+1,4), Stream(one(ds),opt.dsg+3,opt.dsg+7,prio=4,pace=3)]
    else: ds=[x.replace('@Dst','@Rst') for x in ds]
    D=Stream(sd[opt.npre:-16]+[bXA]+sd[-16:],opt.p0d,32,prio=2,pace=opt.pace0/10); D.carry=True; st.append(D)
    c+=schedule(p0_mf(xf),st,pre,report=rep)+stamp("s3")
    dm=fuse(D.items[D.pos:])
    def take(n):
        o=dm[:n]; del dm[:n]; return flat(o)
    k=[int(x) for x in opt.nth]
    rs=r_store(); rs[0]=rs[0][1:]
    hm=h_mf(); gs=g_scalars()
    c+=gs[:7]+take(k[0])+t_pack()+hm[:2]+take(k[1])+["WAITLG tw","s_barrier"]+hr[:2]+flat(no[:8])+take(k[2])+hm[2:]+xr_flip()+gs[7:10]+take(k[3])+r_pack()+r_back()+flat(flag_R_addr(sFHS))+take(k[4])
    late=opt.rsg>=0
    if opt.done==1: c+=dr
    if not late: c+=flat(rs)
    if opt.done==1: c+=ds
    if opt.done==0: c+=stamp("s4")+["L_WARM_B:",f"s_add_u32 {sLD}, {sFHS}, {WS_FD-WS_FR}","WAITVM W0,W1,Dst","s_barrier"]+trw(0)+[flag_store(sLD)]+take(k[5])
    elif opt.done==1: c+=stamp("s4")+["WAITVM W0,W1","s_barrier"]+trw(0)+take(k[5])
    else: c+=stamp("s4")+["WAITVM W0,W1","s_barrier"]+dr+trw(0)+ds+take(k[5])
    mf=[m for n in range(8) for m in ch(n)]
    b23,b45,b67,bx=7,23,39,55
    pre={0:stamp("s5"), b23:["WAITLG t1","WAITVM W2,W3","s_barrier"], b45:["WAITLG t3","WAITVM W4,W5","s_barrier"]+stamp("s6"),
         b67:["WAITLG t5","WAITVM W6,W7","s_barrier"]+stamp("s8"), bx:["WAITLG t7","WAITVM x1q0","s_barrier"]+stamp("s10")}
    st=[E(one(trw(1)),0,4)]
    for n,b in ((2,b23),(4,b45),(6,b67)): st+=[E(one(trw(n)),b,b+5), Stream(one(trw(n+1)),b+5,b+13,prio=3)]
    st+=[E(one([f"v_xor_b32 {vWT[t]}, {XB}, {vWT[t]}" for t in range(2)]),b23+13,b23+15,1), E(one([xread(k_) for k_ in range(4)]),bx+1,bx+5)]
    st.append(Stream(one(cons_scalars())+pa_setup(),8,58)); st.append(Stream(one(gs[10:]),8,60))
    if opt.fbar<8:
        fb=(b23,b45,b67,bx)[opt.fbar]
        pre[fb]=["WAITVM Rst"]+pre[fb]; st.append(E([[flag_store(sFHS)]],fb,fb+1,4))
    if late: st.append(Stream(rs,opt.rsg,opt.rsg+10,prio=4,pace=2))
    dm=dm+[set_xs(1),b23]+dma_x(XB,0,"x1q0")+dma_x(XB,1,"x1q1")+[b45]+dma_x(XB,2,"x1q2")+dma_x(XB,3,"x1q3")
    dm+=[set_xs(2),max(b67,opt.x2g)]+dma_x(XA,0,"x2")+dma_x(XA,1,"x2")+[bx]+dma_x(XA,2,"x2")+dma_x(XA,3,"x2")
    D=Stream(dm,0,64,prio=2,pace=opt.pace0/10); D.carry=True
    D.deadlines({"W2":b23-1,"W3":b23-1,"W4":b45-1,"W5":b45-1,"W6":b67-1,"W7":b67-1,"x1q0":bx-1,"x1q1":64,"x1q2":64,"x1q3":64},0); st.append(D)
    c+=schedule(mf,st,pre,report=rep)
    if opt.fmode==1: c+=[f"s_mov_b32 {sFH0}, 0x40000000"]
    if opt.fmode==2: c+=[f"s_cmp_eq_u32 {sW}, 0", f"s_cselect_b32 {sFH0}, {sFH0}, 0x40000000"]
    c+=[f"v_mov_b32 {vGC0}, {f2u(-2*math.sqrt(2/math.pi)*math.log2(math.e))}"]
    return c,D.items[D.pos:]

def dloads(a,b):
    o=[]
    for i in range(4):
        ns=[k-14*i for k in range(a,b) if 14*i<=k<14*i+14]
        if ns: o+=gload('D',i,ns)
    return o
def rounds(left):
    mf=[]; pre={}; st=[]
    for r in (1,2,3):
        o=64*(r-1)
        if r==3 and opt.tsp:
            mf+=[g1_mf(r,ks)[t] for t in range(2) for ks in range(32)]
            for k4 in range(15): st.append(Stream(one([xread(k%32) for k in range(4*k4+4,4*k4+8)]),o+4*k4,o+4*k4+2,eager=True,prio=3))
            ep3=epilogue(3); st.append(Stream(one(epilogue(2)),o+2,o+opt.hb3,eager=True)); st.append(Stream(one(ep3[:len(ep3)//2]),o+opt.hb3,o+64,eager=True))
            pre.setdefault(o,[]).extend(stamp(f"r{r-1}"))
            continue
        mf+=[m for ks in range(32) for m in g1_mf(r,ks)]
        for k4 in range(8):
            g0=o+8*k4
            if k4<7: st.append(Stream(one([xread(k) for k in range(4*k4+4,4*k4+8)]),g0,g0+4,prio=3))
            elif r<3:
                pre[g0]=["WAITLG r",f"WAITVM x{r+1}","s_barrier"]
                st.append(Stream(one(xr_flip()[:4]),o+46,o+55,prio=2))
                st.append(Stream(one([xread(k) for k in range(4)]),g0,g0+4,prio=3))
                st.append(Stream(one(xr_flip()[4:]),o+56,o+64,prio=2))
        st.append(Stream(one(epilogue(r-1)),o+2,o+{1:opt.hb1,2:opt.hb2,3:opt.hb3}[r],eager=True))
        if r>1: pre.setdefault(o,[]).extend(stamp(f"r{r-1}"))
    pre[8]=["WAITVM x1q1"]+(["WAITVM Rst"] if opt.fbar==8 else [])+["s_barrier"]
    pre[24]=["WAITVM x1q3"]+(["WAITVM Rst"] if opt.fbar==24 else [])+["s_barrier"]
    if opt.fbar in (8,24): st.append(Stream([[flag_store(sFHS)]],opt.fbar,opt.fbar+1,prio=4))
    pre[opt.pdb]=poll_check("pd",vPA2,mask=0x7f7f)+pre.get(opt.pdb,["s_barrier"])
    x3=[set_xs(3)]
    for kq in range(4): x3+=dma_x(XB,kq,"x3")
    n4=opt.nd4
    def mark(items,k0=0):
        o=[]
        for it in items:
            if it[-1].startswith("buffer"):
                sl=SLOT[it[-1].split("@")[1]]
                if sl[0]=='a': o.append(128+sl[1])
            o.append(it)
        return o
    left=list(left)
    st.append(Stream(one(rot_scalars()),0,28,prio=2))
    a1,a2,a3,a4,a5=[int(x) for x in opt.nds.split(".")]
    h0=gload('H',0,range(opt.nh3))
    vm=left[:opt.pdi]+[poll_issue("pd",vPA2)]+left[opt.pdi:]+[max(28,opt.pdb)]+dloads(0,a1)+[opt.hb1]+h_stores(0)+dloads(a1,a2)+[56]+x3+mark(dloads(a2,a3),a2)
    vm+=[64+opt.hb2]+h_stores(1)+mark(dloads(a3,a4),a3)
    if opt.nh3:
        k=[i for i,it in enumerate(h0) if it[-1].startswith("buffer")]; k=k[opt.nhb] if opt.nhb<len(k) else len(h0)
        vm+=[hpoll(0)]+mark(dloads(a4,a5))+[hcheck(0)]+mark(h0[:k])+[128+opt.hb3]+h_stores(2)+mark(h0[k:])+mark(dloads(a5,n4))+([128+opt.p1g,hpoll(1)] if opt.ov else [])
    else: vm+=[128+opt.hb3]+h_stores(2)+mark(dloads(a4,a5))+[hpoll(0)]+mark(dloads(a5,n4))
    st.append(Stream(vm,0,192,prio=1,pace=opt.pace1/10))
    for r,gp in ((0,64+opt.f0),(1,128+opt.f1)):
        hf=hflag(r); pre[gp]=hf[:3]+pre.get(gp,[]); st.append(Stream([hf[3:]],gp,gp+1,prio=4))
    return schedule(mf,st,pre,report=rep)

sFA,sFB2="s39","s29"
A2={(0,0):64,(1,0):80,(0,1):96,(1,1):112}
FI=128; UA=[32,48]; YA=[32,144]; PK=["v[8:11]","v[24:27]","v[128:131]","v[132:135]"]; PKR=[8,24,128,132]
def gslot(js,at): return areg(4+2*js+at)
RSL=list(range(12,18))+list(range(60,64))+list(range(46,52))
def gen_Finv():
    T=64; S=72
    c=["v_and_b32 v56, 31, v0", f"s_lshl_b32 {sT2}, {sCG}, 5", f"v_add_u32 v56, {sT2}, v56", "v_cvt_f32_u32 v56, v56", f"v_mul_f32 v56, {f2u(1/512)}, v56",
       "v_lshrrev_b32 v57, 5, v0", f"s_lshl_b32 {sT2}, {sP}, 7", f"s_add_u32 {sT2}, {sT2}, {sQ}", f"v_lshl_add_u32 v57, v57, 3, {sT2}",
       "v_and_b32 v58, 1, v0", "v_cvt_f32_u32 v58, v58", "v_fma_f32 v58, v58, -2.0, 1.0", "v_min_u32 v59, 1, v57", "v_cvt_f32_u32 v59, v59",
       "v_cvt_f32_u32 v57, v57", "v_fma_f32 v58, -v59, v58, v58", "v_mul_f32 v57, v57, v56",
       f"v_mul_f32 v59, {f2u(32.0)}, v56", "v_cos_f32 v59, v59"]
    for half in range(2):
        Cc=[32,36]; Ss=[40,44]; An=48
        for s in range(2):
            for i in range(4): c+=[f"v_fmamk_f32 v{An+i}, v56, {f2u(32*s+16*half+2*i)}, v57"]
            for i in range(4): c+=[f"v_cos_f32 v{Cc[s]+i}, v{An+i}", f"v_sin_f32 v{Ss[s]+i}, v{An+i}"]
        if half==0: c+=["v_add_f32 v59, v59, v59", f"v_add_f32 v52, v{Ss[0]}, v58"]
        for s in range(4):
            cur=s%2
            if s>=2:
                for X in (Cc,Ss):
                    for i in range(4): c+=[f"v_fma_f32 v{X[cur]+i}, v59, v{X[1-cur]+i}, -v{X[cur]+i}"]
            for ct,X in enumerate((Cc,Ss)):
                kap=4*(s//2)+2*ct+s%2
                for i in range(2):
                    lo=f"v{X[cur]+2*i}"
                    if half==0 and s==0 and ct==1 and i==0: lo="v52"
                    c+=[f"v_cvt_pk_bf16_f32 v{FI+4*kap+2*half+i}, {lo}, v{X[cur]+2*i+1}"]
    return c
def tr_pattern(dst, tmp, base):
    return [f"v_lshrrev_b32 {dst}, 5, v0", f"v_lshlrev_b32 {dst}, 9, {dst}", f"v_bfe_u32 {tmp}, v0, 2, 2", f"v_lshl_add_u32 {dst}, {tmp}, 7, {dst}",
            f"v_bfe_u32 {tmp}, v0, 4, 1", f"v_lshl_add_u32 {dst}, {tmp}, 5, {dst}", f"v_and_b32 {tmp}, 3, v0", f"v_lshl_add_u32 {dst}, {tmp}, 3, {dst}",
            f"v_bfe_u32 {tmp}, v0, 3, 1", f"v_lshl_add_u32 {dst}, {tmp}, 6, {dst}", f"v_add_u32 {dst}, {base}, {dst}"]
def xr_private():
    c=["v_and_b32 v8, 31, v0", f"v_lshl_add_u32 v8, v8, 8, {sM16K}", "v_lshrrev_b32 v9, 5, v0", "v_and_b32 v10, 15, v0", "v_xor_b32 v9, v9, v10", f"v_lshl_add_u32 {vXR[0]}, v9, 4, v8"]
    return c+[f"v_xor_b32 {vXR[i]}, {32*i}, {vXR[0]}" for i in range(1,8)]
def dma_rp():
    g=[[f"s_lshl_b32 {sHS}, {sB2}, 16", f"s_add_u32 {sHS}, {sHS}, {WS_RP}", (f"s_lshl_b32 {sHS2}, {sCG}, 10" if opt.rot7 else f"s_mov_b32 {sHS2}, 0"), f"s_and_b32 {sHS2}, {sHS2}, 6144"]]
    for i in range(16):
        if i%2==0:
            g.append(([f"s_add_u32 {sHS2}, {sHS2}, 2048", f"s_and_b32 {sHS2}, {sHS2}, 6144"] if i else [])+[f"s_add_u32 {sT0}, {sHS2}, {sM16K}"]+([f"s_add_u32 {sT0}, {sT0}, 8192"] if i>=8 else []))
            g.append([f"s_mov_b32 m0, {sT0}", f"s_add_u32 {sT0}, {sT0}, {sHS}"])
        g.append([f"buffer_load_dwordx4 {vL16}, {SWS}, {sT0} offen offset:{(i%2)*1024} sc1 lds ;@RP{i//8}"])
    return g
GH={}
def gemm2():
    mf=[]; pre={}; P={}
    def addpre(i,x): pre.setdefault(i,[]).extend(x)
    use={}
    for seg in opt.seq:
        P[seg]=len(mf)
        if seg=="v":
            for jt in range(2):
                for k in range(8):
                    d=vr(UA[jt],16); mf.append(MF32(d, aslot(RSL[8*jt+k]), vr(FI+4*k,4), d if k else "0")+f" ;need u{jt}")
            for js in range(4):
                for at in range(2):
                    d=vr(YA[at],16); mf.append(MF32(d, PK[js], ar(gslot(js,at),4), d if js else "0")+" ;need gr")
            continue
        i=int(seg)
        order=[(fb,at,dt) for at in range(2) for dt in range(2) for fb in range(7)] if seg==opt.seq[-1] else [(fb,at,dt) for fb in range(7) for at in range(2) for dt in range(2)]
        for fb,at,dt in order:
            if True:
                for t in (f"D{i}_{2*fb+dt}",f"H{i}_{2*fb+at}"): use.setdefault(t,len(mf))
                d=vr(A2[dt,at],16); mf.append(MF32(d, HOME[('D',i,2*fb+dt)], HOME[('H',i,2*fb+at)], "0" if (i==0 and fb==0) else d)+f" ;need D{i}_{2*fb+dt},H{i}_{2*fb+at}")
    N=len(mf); U0=P["v"]; Y0=U0+16
    def grp(L):
        out=[]; cur=[]
        for x in L:
            cur.append(x)
            if not x.startswith("s_"): out.append(cur); cur=[]
        return out
    ep=epilogue(3)
    if opt.tsp: ep=ep[len(ep)//2:]
    dre=fuse(dloads(opt.nd4,56)); h0=fuse(gload('H',0,range(opt.nh3,14)))
    k1=opt.hk1; nd=min(len(dre),opt.hn3)
    head=ep[:k1]+([] if opt.nh3 else hcheck(0))+stamp("gh0")+sprinkle(ep[k1:],h0[:opt.f2i]+([hflag(2)] if opt.f2i<99 else [])+h0[opt.f2i:opt.p1i]+[hpoll(1)]+h0[opt.p1i:opt.hnb],opt.hsp)+flat(h_stores(3))+flat(h0[opt.hnb:])+(hflag(2) if opt.f2i>=99 else [])+stamp("ghd")
    GH['h']=fuse(gload('H',0,range(14)))
    c=(head if not opt.ov else [])+["L_g2:"]
    st=[]
    gl=[[f"s_lshl_b32 {sT0}, {sB2}, 9", f"s_add_u32 {sT0}, {sT0}, {WS_G}"],[f"buffer_load_dword {vG[0]}, v11, {SWS}, {sT0} offen sc1 ;@g"],[f"buffer_load_dword {vG[1]}, v11, {SWS}, {sT0} offen offset:256 sc1 ;@g"]]
    dleft=list(range(opt.nd4+nd+opt.dfill,56))
    def gl1(kind,i,n): return flat(gload(kind,i,[n]))
    def cls(i,last):
        ns=list(range(0,14,2))+list(range(1,14,2)) if last else list(range(14))
        dn=[k-14*i for k in dleft if k//14==i]
        if not dn: return fuse(gload('H',i,ns)),[]
        return None,(ns,dn)
    def merged(i,last):
        ns=list(range(0,14,2))+list(range(1,14,2)) if last else list(range(14))
        hs=fuse(gload('H',i,ns)); dn=sorted([k-14*i for k in dleft if k//14==i],key=lambda n: use[f'D{i}_{n}'])
        ds_=fuse(gload('D',i,dn)) if dn else []
        both=[(use[f"H{i}_{n}"],1,it) for n,it in zip(ns,hs)]+[(use[f"D{i}_{n}"],0,it) for n,it in zip(dn,ds_)]
        pre_=[it for u,k,it in both if k==0][:opt.dlead]
        return pre_,[it for u,k,it in sorted(both,key=lambda t:t[:2]) if it not in pre_]
    b0=dre[:nd]+[hcheck(1)]+merged(1,False)[1]+dre[nd:nd+opt.dfill]
    if opt.ov:
        assert opt.nh3==14
        st.append(Stream(one(ep),1,opt.epe,eager=True,prio=1))
        st.append(Stream([hflag(2)],opt.f2g,opt.f2g+1,prio=4))
        st.append(Stream(h_stores(3),opt.epe,opt.epe+4,prio=5,pace=2)); st.append(Stream([hflag(3)],opt.f3,opt.f3+1,prio=5))
    else: b0=b0[:opt.f3i]+[opt.f3,[f"s_add_u32 {sFA}, {sFA}, {28*128}","WAITVM h3","s_barrier",flag_store(sFA)]]+b0[opt.f3i:]
    blocks=[b0]; polls=[]
    for seg in opt.seq[2:]:
        if seg=="v": polls.append((poll_issue("pp",vPA2),poll_check("pp",vPA2,mask=0xff)+["s_barrier"],14)); blocks.append(dma_rp()+gl)
        else:
            i=int(seg); p_,m_=merged(i,seg==opt.seq[-1]); blocks[-1]=blocks[-1]+p_
            polls.append((hpoll(i),hcheck(i),28*(i-1))); blocks.append(m_)
    vm=[]
    for n,b in enumerate(blocks):
        if n<len(polls):
            k=max(0,len(b)-opt.plead); vm+=b[:k]+[(opt.epe+10 if opt.ov else 14) if 'pp' in polls[n][0][-1] else 0,polls[n][0]]+b[k:]+[polls[n][2],polls[n][1]]
        else: vm+=b
    use["RP0"]=U0-4; use["RP1"]=U0+2; use["g"]=Y0
    V=Stream(vm,0,N-4,prio=2,pace=opt.pace2/10); V.deadlines(use,opt.win); st.append(V)
    setup=xr_private()+pa_P('v9')+["v_and_b32 v11, 31, v0","v_and_b32 v10, 16, v0","v_add_u32 v11, v11, v10","v_lshlrev_b32 v11, 2, v11"]+["v_lshrrev_b32 v9, 5, v0","v_bfe_u32 v10, v0, 2, 2","v_lshl_add_u32 v9, v9, 2, v10",f"v_mul_u32_u24 {vTP}, {HS}, v9","v_bfe_u32 v9, v0, 4, 1",f"v_lshl_add_u32 {vTP}, v9, 5, {vTP}",
       "v_and_b32 v9, 3, v0",f"v_lshl_add_u32 {vTP}, v9, 3, {vTP}",f"v_add_u32 {vTP}, {L_H}, {vTP}"]
    grd=[f"ds_read_b64_tr_b16 {ar(gslot(js,at)+2*u,2)}, {vTP} offset:{(16*js+8*u)*HS+64*at} ;@gr" for js in range(4) for at in range(2) for u in range(2)]
    st.append(Stream(grp(setup),opt.epe if opt.ov else 0,opt.epe+10 if opt.ov else 14,eager=True,prio=1))
    st.append(Stream(one(grd),56,70))
    st.append(Stream(grp(gen_Finv()),opt.epe+4 if opt.ov else 4,U0-2 if opt.ov else 54,eager=True))
    for jt in range(2):
        rd=[f"ds_read_b128 {aslot(RSL[8*jt+k])}, {vXR[k]} offset:{jt*8192} ;@u{jt}" for k in range(8)]
        lo=U0-4+8*jt-2*jt
        st.append(Stream([[f"WAITVM RP{jt}",rd[0]]]+one(rd[1:]),lo,lo+4,eager=True,prio=3))
    for jt in range(2):
        cv=[f"v_cvt_pk_bf16_f32 v{PKR[2*jt+e//4]+e%4}, v{UA[jt]+2*e}, v{UA[jt]+2*e+1}" for e in range(8)]
        lo=U0+8*jt+10-jt
        st.append(Stream(one(cv),lo,lo+2,eager=True,prio=3))
    om=[[f"s_lshl_b32 {sT2}, {sQ}, 31"]]+one([f"v_sub_f32 {vOMG[0][at]}, 1.0, {vG[at]}" for at in range(2)]+[f"v_xor_b32 {vOMG[1][at]}, {sT2}, {vOMG[0][at]}" for at in range(2)])
    st.append(Stream(om,Y0+4,Y0+8))
    sc=[f"v_mul_f32 v{YA[at]+i}, {vG[at]}, v{YA[at]+i}" for at in range(2) for i in range(16)]
    vlast=opt.seq[-1]=="v"
    st.append(Stream(one(sc),Y0+10,Y0+16,eager=True,prio=3))
    assert not vlast
    def fin(at,dt):
        o=[]
        for q in range(4):
            a=A2[dt,at]+4*q; y=YA[at]+4*q
            o+=[f"v_fma_f32 v{a+i}, v{a+i}, {vOMG[dt][at]}, v{y+i}" for i in range(4)]
            o+=[f"ds_write_b128 {vXR[4*dt+q]}, {vr(a,4)} offset:{at*8192} ;@fw{at}"]
        return o
    fa=["v_lshrrev_b32 v136, 3, v0","v_and_b32 v137, 7, v0", f"s_lshl_b32 {sT1}, {sW}, 3", f"v_add_u32 v136, {sT1}, v136", "v_lshlrev_b32 v138, 1, v137","v_xor_b32 v138, v138, v136","v_and_b32 v138, 15, v138",
        "v_lshlrev_b32 v138, 4, v138","v_lshl_add_u32 v138, v136, 8, v138", "v_xor_b32 v139, 16, v138",
        "v_lshlrev_b32 v140, 15, v136","v_and_b32 v141, 3, v0","v_lshl_add_u32 v140, v141, 4, v140","v_bfe_u32 v141, v0, 2, 1","v_lshl_add_u32 v140, v141, 9, v140",
        "v_lshlrev_b32 v141, 31, v141","v_or_b32 v141, 1.0, v141",
        f"s_lshl_b32 {sT2}, {sB2}, 10", f"s_lshl_b32 {sT3}, {sCG}, 6", f"s_add_u32 {sT2}, {sT2}, {sT3}", f"s_add_u32 {sT3}, {sT2}, {32*32768}"]
    def frd(at,b): return [f"ds_read_b128 {vr(b+8*pw+4*e,4)}, v{138+e} offset:{pw*16384+at*8192} ;@fr" for pw in range(4) for e in range(2)]
    def fsum(at,b,pkd):
        o=[]
        if pkd:
            for i in range(4): o+=[f"v_pk_add_f32 {vr(b+2*i,2)}, {vr(b+2*i,2)}, {vr(b+16+2*i,2)}", f"v_pk_add_f32 {vr(b+8+2*i,2)}, {vr(b+8+2*i,2)}, {vr(b+24+2*i,2)}"]
        else:
            for i in range(16): o+=[f"v_add_f32 v{b+i}, v{b+i}, v{b+16+i}"]
        o+=[f"v_fmac_f32 v{b+i}, v141, v{b+8+i}" for i in range(8)]
        o+=[f"v_cvt_pk_bf16_f32 v{b+8+i}, v{b+2*i}, v{b+2*i+1}" for i in range(4)]
        return o+[f"buffer_store_dwordx4 {vr(b+8,4)}, v140, {SOUT}, {sT2 if at==0 else sT3} offen {opt.outf} ;@out"]
    st.append(Stream(grp(fa[:17])+one(fa[17:]),Y0+8,N-16))
    for n,(at,dt) in enumerate(((0,0),(0,1),(1,0))):
        lo=N-28+7*n+8
        st.append(Stream(one(fin(at,dt)),lo,min(lo+8,N),eager=True,prio=3-n))
    for k,nm in ((28,"g28"),(56,"g56"),(P[opt.seq[3]],"g84"),(P[opt.seq[4]],"g108")): addpre(k,stamp(nm))
    addpre(N-2,["WAITLG fw0","s_barrier"])
    c+=schedule(mf,st,pre,report=rep)
    c+=stamp("gend")
    f0=fsum(0,64,True); f11=fin(1,1)
    c+=frd(0,64)+f11+f0+["WAITLG fw1","s_barrier"]+stamp("red")+frd(1,32)+fsum(1,32,True)
    return c

MS=list(range(34,46))+list(range(60,64)); XS=list(range(32)); CS=list(range(46,60))+[31,32,33]
def csv(i): return f'a{areg(CS[i//4])+i%4}'
CP1,CQ,CR1,CU,CP2,CR2=[128+16*i for i in range(6)]
CX=224
ZP=96; DD=32; RAW=192
def pk(op,d,a,b,cc=None,nega=False,negb=False):
    s=f"v_pk_{op}_f32 {vr(d,2)}, {vr(a,2)}, {vr(b,2)}"+(f", {vr(cc,2)}" if cc is not None else "")
    n=3 if cc is not None else 2
    if nega or negb:
        m="["+",".join(["1" if nega else "0","1" if negb else "0","0"][:n])+"]"
        s+=f" neg_lo:{m} neg_hi:{m}"
    return s
def p2_wloads():
    sST,sBH,sCU="s16","s17","s18"
    su=[f"s_cmp_eq_u32 {sP}, 0", "s_cselect_b32 s8, s32, s36", "s_cselect_b32 s9, s33, s37", "s_mov_b32 s10, 1052672", "s_mov_b32 s11, 0x20000",
        f"s_sub_i32 {sCU}, 1984, {sB}", f"s_sub_i32 {sBH}, {1984-1024}, {sOH}", f"s_add_i32 {sT1}, {sOH}, 1024",
        f"s_cmp_eq_u32 {sQ}, 0", f"s_cselect_b32 {sCU}, {sB}, {sCU}", f"s_cselect_b32 {sBH}, {sT1}, {sBH}", f"s_cselect_b32 {sST}, 1, -1",
        f"s_mul_i32 {sCU}, {sCU}, 514", f"s_mul_i32 {sBH}, {sBH}, 514", f"s_add_u32 {sCU}, {sCU}, 2", f"s_and_b32 {sCU}, {sCU}, -4", f"s_add_u32 {sBH}, {sBH}, 2", f"s_and_b32 {sBH}, {sBH}, -4", f"s_mul_i32 {sST}, {sST}, 65792",
        "v_lshrrev_b32 v153, 5, v0", f"v_or_b32 v20, {sB}, v153", "v_min_u32 v20, 1, v20", "v_xor_b32 v20, 1, v20",
        f"v_xor_b32 v153, {sQ}, v153", "v_mul_u32_u24 v153, 32896, v153", "v_and_b32 v152, 31, v0", "v_lshl_add_u32 v152, v152, 4, v153",
        f"s_mul_i32 {sT1}, {sQ}, {1024*514}", f"v_mul_lo_u32 v153, v20, {sT1}", f"v_add_u32 v154, {sCU}, v152", "v_sub_u32 v154, v154, v153"]
    g=[[f"s_add_u32 m0, {sM16K}, {XB}", "s_nop 0", f"buffer_load_dwordx4 v154, {SWG}, 0 offen lds ;@wf"]]
    for i in range(1,16):
        g.append([f"s_add_u32 m0, {sM16K}, {XB+i*1024}", f"s_add_u32 {sCU}, {sCU}, {sST}" if i!=8 else f"s_mov_b32 {sCU}, {sBH}", f"buffer_load_dwordx4 v152, {SWG}, {sCU} offen lds ;@wf"])
    g.append(["v_and_b32 v154, 31, v0", "v_lshrrev_b32 v155, 4, v154", f"s_sub_i32 {sT1}, {sOH}, {sB}", f"v_mul_i32_i24 v155, {sT1}, v155", "v_lshl_add_u32 v154, v154, 6, v155",
              f"v_add_u32 v157, {sB}, v154", "v_sub_u32 v155, 2048, v157", "v_lshrrev_b32 v21, 11, v155", "v_lshrrev_b32 v155, v21, v155",
              "v_sub_u32 v155, v155, v157", "v_lshrrev_b32 v154, 5, v0", "v_mul_i32_i24 v155, v155, v154", "v_add_u32 v155, v155, v157",
              "v_mul_u32_u24 v155, 514, v155", f"s_lshl_b32 {sT1}, {sQ}, 9", f"buffer_load_ushort v8, v155, {SWG}, {sT1} offen ;@wf"])
    return su,g
def p2_consts():
    Cc,Ss,O=132,136,140
    c=[f"s_cmp_eq_u32 {sB}, 0", f"s_cselect_b32 {sHS2}, 1.0, 0",
       "v_and_b32 v128, 31, v0", "v_lshrrev_b32 v129, 4, v128", f"s_sub_i32 {sHS}, {sOH}, {sB}", f"v_mul_i32_i24 v130, {sHS}, v129", "v_lshl_add_u32 v130, v128, 6, v130",
       f"v_add_u32 v130, {sB}, v130",
       "v_cmp_eq_u32 vcc, 0, v130", "v_cvt_f32_u32 v130, v130", f"v_mul_f32 v130, {f2u(1/2048)}, v130",
       "v_cvt_f32_u32 v129, v129", f"v_mul_f32 v149, {sHS2}, v129", "v_sub_f32 v148, 1.0, v149", f"v_sub_f32 v150, 1.0, {sHS2}",
       "v_cndmask_b32 v151, 0, 1.0, vcc",
       "v_lshrrev_b32 v131, 5, v0", f"s_lshl_b32 {sHS}, {sW}, 3", f"v_lshl_add_u32 v129, v131, 1, {sHS}", "v_cvt_f32_u32 v129, v129", "v_mul_f32 v129, v129, v130",
       ]
    def blocks(fwd):
        o=[]; O=164 if fwd else 172
        for j in range(4):
            C,S=f"v{Cc+j}",f"v{Ss+j}"
            o+=[f"v_mul_f32 v160, v148, {C}", f"v_mul_f32 v161, v149, {C}", f"v_mul_f32 v162, v148, {S}", f"v_mul_f32 v163, v150, {C}",
                f"v_fma_f32 v161, -{S}, v150, v161", f"v_fmac_f32 v163, v149, {S}"]
            if fwd: o+=[f"v_cvt_pk_bf16_f32 v{O+j}, v160, v161", f"v_cvt_pk_bf16_f32 v{O+4+j}, v162, v163"]
            else:   o+=[f"v_cvt_pk_bf16_f32 v{O+j}, v160, v162", f"v_cvt_pk_bf16_f32 v{O+4+j}, v161, v163"]
        return o
    for j in range(4): c+=[f"v_fmamk_f32 v{Ss+j}, v130, {f2u(4*(j//2)+j%2)}, v129"]
    for j in range(4): c+=[f"v_cos_f32 v{Cc+j}, v{Ss+j}", f"v_sin_f32 v{Ss+j}, v{Ss+j}"]
    for j in range(4): c+=[f"v_add_f32 v{Ss+j}, v{Ss+j}, v151" if j%2==0 else f"v_sub_f32 v{Ss+j}, v{Ss+j}, v151"]
    c+=blocks(True)
    c+=[f"s_cmp_ge_u32 {sW}, 2", f"s_cselect_b32 {sHS}, {sOH}, {sB}", f"s_cselect_b32 {sLD}, {sHS2}, 0", f"v_mov_b32 v149, {sLD}",
        f"s_lshl_b32 {sLD}, {sW}, 9", f"s_add_i32 {sHS}, {sHS}, {sLD}", f"v_lshl_add_u32 v129, v131, 8, {sHS}",
        "v_cmp_eq_u32 vcc, 0, v129", "v_cvt_f32_u32 v129, v129", "v_cvt_f32_u32 v130, v128", f"v_mul_f32 v130, {f2u(1/2048)}, v130", "v_mul_f32 v129, v129, v130",
        "v_and_b32 v151, 1, v0", "v_cvt_f32_u32 v151, v151", "v_fma_f32 v151, v151, -2.0, 1.0", "v_cndmask_b32 v151, 0, v151, vcc",
        "v_sub_f32 v148, 1.0, v149"]+[f"v_mul_f32 v{r}, {f2u(2.0**-19)}, v{r}" for r in (148,149,150)]
    for j in range(4): c+=[f"v_fmamk_f32 v{Ss+j}, v130, {f2u(64*j)}, v129"]
    for j in range(4): c+=[f"v_cos_f32 v{Cc+j}, v{Ss+j}", f"v_sin_f32 v{Ss+j}, v{Ss+j}"]
    c+=[f"v_add_f32 v{Ss}, v{Ss}, v151"]
    c+=blocks(False)
    return c
def p2_raw(gam):
    return [f"ds_read_u16_d16_hi v{RAW+16*arr+rho}, v122 offset:{arr*16384+(8*(rho//4)+rho%4)*512+2*gam} ;@raw" for r2 in range(8) for arr in range(4) for rho in (2*r2,2*r2+1)]
def p2_coefs(gam):
    X=104; c=[]
    for r2 in range(8):
        rt,rm,it,im=[RAW+16*a+2*r2 for a in range(4)]
        c+=[pk("add",CP1+2*r2,rt,rm), pk("add",CU+2*r2,rt,rm,negb=True), pk("add",CQ+2*r2,it,im), pk("add",CR1+2*r2,it,im,negb=True)]
        if r2==0:
            c+=[f"v_fma_f32 v{CP1}, v121, v{rm}, v{rt}", f"v_fma_f32 v{CQ}, v121, v{im}, v{it}", f"v_mul_f32 v{CR1}, v121, v{CR1}", f"v_mul_f32 v{CU}, v121, v{CU}",
                f"v_fma_f32 v{X}, v121, v{rt}, v{rm}", f"v_mov_b32 v{X+1}, v{CP1+1}", f"v_fma_f32 v{X+2}, v121, v{it}, v{im}", f"v_mov_b32 v{X+3}, v{CQ+1}"]
    if gam==1:
        return c, [f"v_accvgpr_write_b32 {csv(i)}, v{128+i}" for i in range(64)]+[f"v_accvgpr_write_b32 {csv(64+i)}, v{X+i}" for i in range(4)]
    mv=lambda d,s_: f"v_mov_b64 {vr(d,2)}, {vr(s_,2)}"
    c+=[mv(CX,X),mv(CX+2,X+2),mv(CX+4,X)]+[mv(CP2+2*i,CP1+2*i) for i in range(8)]+[mv(CR2+2*i,CR1+2*i) for i in range(8)]
    lab[0]+=1; n=lab[0]
    c+=[f"s_cmp_lg_u32 {sW}, 0", f"s_cbranch_scc1 L_nr{n}"]
    NY=L_NY; NR=L_NR
    s=["v_and_b32 v100, 31, v0","v_lshlrev_b32 v100, 2, v100", f"v_add_u32 v101, {NR}, v100", f"v_add_u32 v100, {NY}, v100"]
    s+=[f"ds_read2_b32 {vr(108+2*w_,2)}, v101 offset0:{64*w_} offset1:{64*w_+32}" for w_ in range(4)]
    s+=["v_cvt_f32_u32 v96, v21","v_sub_f32 v96, 1.0, v96","s_waitcnt lgkmcnt(0)"]
    for o,(re_,im_) in enumerate(((110,114),(108,112))):
        s+=[f"v_fma_f32 v97, v96, v{re_+1}, v{re_}", f"v_fma_f32 v98, v96, v{re_}, v{re_+1}", f"v_sub_f32 v99, v{im_}, v{im_+1}", "v_mul_f32 v99, v96, v99",
            f"ds_write_b32 v100, v97 offset:{384*o}", f"ds_write_b32 v100, v99 offset:{384*o+128}", f"ds_write_b32 v100, v98 offset:{384*o+256}"]
    s+=["v_lshrrev_b32 v100, 5, v0","v_lshlrev_b32 v100, 4, v100",f"v_add_u32 v100, {NY}, v100","s_mov_b32 exec_lo, 1","s_mov_b32 exec_hi, 1"]
    for o,(P,R,Xx) in enumerate(((CP2,CR2,CX+4),(CP1,CR1,CX))):
        for q in range(4): s+=[f"ds_read_b128 {vr(P+4*q,4)}, v100 offset:{384*o+32*q}", f"ds_read_b128 {vr(R+4*q,4)}, v100 offset:{384*o+128+32*q}"]
        s+=[f"ds_read_b64 {vr(Xx,2)}, v100 offset:{384*o+256}"]
    s+=[f"v_mov_b64 {vr(x+2*i,2)}, 0" for x in (CQ,CU) for i in range(8)]+[f"v_mov_b64 {vr(CX+2,2)}, 0"]
    s+=["s_waitcnt lgkmcnt(0)","s_mov_b64 exec, -1", f"L_nr{n}:"]
    return c+s
def p2_ny():
    return [f"s_lshl_b32 {sT1}, {sW}, 8", f"s_add_u32 {sT1}, {sT1}, {L_H+64*HS}", f"v_lshl_add_u32 v100, v0, 2, {sT1}", "v_lshlrev_b32 v8, 16, v8", "v_mul_f32 v8, 0.5, v8", "ds_write_b32 v100, v8 ;@ny"]
def p2_fwd(gam, streams):
    rd=[f"ds_read_b64_tr_b16 {vr(ZP+(ks*2+ct)*4+2*u,2)}, {vWT[2+ct]} offset:{gam*8192+ks*2048+u*1024} ;@b{ks}" for ks in range(4) for ct in range(2) for u in range(2)]
    mf=[]; pre={}
    for ks in range(4):
        pre[4*ks]=[f"WAITLG b{ks}"]
        for ab in range(2):
            for ct in range(2):
                d=vr(DD+32*ab+16*ct,16)
                mf.append(MF32(d, aslot(MS[ks*4+ab]), vr(ZP+(ks*2+ct)*4,4), d if ks else "0"))
    return rd, schedule(mf,streams,pre)
def p2_point(gam):
    c=[]; T=232
    for r2 in range(8):
        r=2*r2
        ac,as_,bc,bs=[DD+16*i+r for i in range(4)]
        p1,q,r1,u=[x+r for x in (CP1,CQ,CR1,CU)]
        p2,r2_=(CP2+r,CR2+r) if gam==0 else (p1,r1)
        p1b,qb,p2b=(CX,CX+2,CX+4 if gam==0 else CX) if r2==0 else (p1,q,p2)
        o=[T+8*(r2%2)+2*i for i in range(4)]
        c+=[pk("mul",o[0],ac,p1), pk("mul",o[1],as_,p2), pk("mul",o[2],bc,p1b), pk("mul",o[3],bs,p2b),
            pk("fma",o[0],as_,q,o[0]), pk("fma",o[1],ac,q,o[1],nega=True), pk("fma",o[2],bs,qb,o[2]), pk("fma",o[3],bc,qb,o[3],nega=True),
            pk("fma",o[0],bc,r1,o[0]), pk("fma",o[1],bs,r2_,o[1]), pk("fma",o[2],ac,r1,o[2],nega=True), pk("fma",o[3],as_,r2_,o[3],nega=True),
            pk("fma",o[0],bs,u,o[0],nega=True), pk("fma",o[1],bc,u,o[1]), pk("fma",o[2],as_,u,o[2]), pk("fma",o[3],ac,u,o[3],nega=True)]
        for ct in range(2):
            for e in range(2): c+=[f"v_cvt_pk_bf16_f32 v{ZP+16*ct+r+e}, v{o[ct]+e}, v{o[2+ct]+e}"]
    return c
def p2_inv(gam, streams):
    mf=[]; st=list(streams); tiles=[(tau,ct) for tau in range(2) for ct in range(2)]
    def pack(tau,ct):
        o=[]
        for sg in range(2):
            s=DD+32*tau+16*ct+8*sg; t=248+4*sg
            o+=[f"v_cvt_pk_bf16_f32 v{t+i}, v{s+2*i}, v{s+2*i+1}" for i in range(4)]
            o+=[f"ds_write_b128 {vXR[2*ct+sg]}, {vr(t,4)} offset:{gam*8192+tau*4096} ;@ow"]
        return o
    for n,(tau,ct) in enumerate(tiles):
        d=vr(DD+32*tau+16*ct,16); k=0
        for ks in range(4):
            mf.append(MF32(d, vr(ZP+16*ct+4*ks,4), aslot(MS[ks*4+2+tau]), d if ks else "0"))
        if n<3: st.append(Stream(one(pack(tau,ct)),4*n+5,min(4*n+9,16),eager=True,prio=2))
    return schedule(mf,st),pack(1,1)
def p2_out(gam, base):
    rd=[f"ds_read_b128 {vr(base+4*i,4)}, {vXR[4+i//4]} offset:{gam*8192+i*1024} ;@or" for i in range(8)]
    stn=[[f"s_add_u32 {sT0}, s39, {gam*16384+(i%4)*524288+(i//4)*256}", f"buffer_store_dwordx4 {vr(base+4*i,4)}, {vXR[6]}, {SWS}, {sT0} offen sc1 ;@P{gam}"] for i in range(8)]
    return rd,stn
def p2():
    c=["L_p2:"]
    wo=["s_mov_b32 s34, 1052672","s_mov_b32 s35, 0x20000","s_mov_b32 s38, 1052672","s_mov_b32 s39, 0x20000", f"s_cmp_eq_u32 {sB}, 0", f"s_cselect_b32 {sOH}, -992, {sB}"]
    gf=gen_F()
    c+=gf[:opt.prek]+["s_waitcnt lgkmcnt(0)","s_mov_b32 s32, s6","s_mov_b32 s33, s7"]+srd_common()+wo
    dm=[]
    for kq in range(4): dm+=dma_x(XA,kq,f"x0q{kq}")
    su,wl=p2_wloads()
    gw=["s_mov_b32 s12, s14","s_mov_b32 s13, s15","s_mov_b32 s14, 1024","s_mov_b32 s15, 0x20000",
        f"v_add_u32 v156, {sXQ[0]}, {vL16}", "v_and_b32 v156, 1023, v156", f"s_mov_b32 m0, {L_GW}", "s_nop 0", f"buffer_load_dwordx4 v156, {SWU}, 0 offen lds ;@x0q3"]
    dm=dm[:4]+wl[:opt.q_e]+dm[4:12]+[eload(),gw]+dm[12:]+wl[opt.q_e:opt.q_npre]
    rest=su+gf[opt.prek:]+xr_addr()+gen_H()
    c+=sprinkle(rest, dm, opt.q_sp)+stamp("gen")
    xf=lambda ks: aslot(XS[ks])
    xr=[f"ds_read_b128 {xf(ks)}, {vXR[ks%8]} offset:{(ks//8)*16384} ;@x" for ks in range(32)]
    c+=["L_WARM_P:","WAITVM x0q3","WAITLG all","s_barrier"]+stamp("x0")+xr[:6]
    def grp(L):
        out=[]
        for x in L:
            if x.startswith("s_cselect") and out: out[-1].append(x)
            else: out.append([x])
        return out
    hr=h_reads(); hm=h_mf(); co=grp(p2_consts())
    GS=list(range(32,48))
    ga=["v_lshrrev_b32 v22, 4, v0", "v_and_b32 v180, 15, v0", "v_xor_b32 v23, v22, v180", "v_lshlrev_b32 v23, 4, v23", "v_lshl_add_u32 v23, v180, 8, v23", f"v_add_u32 v180, {sM4K}, v23",
        "v_lshlrev_b32 v22, 4, v22", f"v_add_u32 v22, {L_GW}, v22"]+[f"v_xor_b32 v{180+i}, {64*i}, v180" for i in range(1,4)]
    gx=[f"ds_read_b128 {aslot(GS[ks])}, v{180+ks%4} offset:{(ks//4)*16384} ;@gx" for ks in range(16)]
    CO=Stream(co,12,32,eager=True); CO.carry=True
    st=[Stream(one(xr[6:]),0,14,eager=True,prio=3),Stream(one(ga)+p0_addr()+nonce(),0,24,eager=True,prio=1),Stream(one(hr[2:]),27,32,eager=True,prio=3),CO,
        Stream(one(gx),14,27,eager=True,prio=2)]
    c+=schedule(p0_mf(xf),st,{},report=rep)+stamp("p0l")
    co=flat(CO.items[CO.pos:])
    zero=[f"v_mov_b64 {vr(RAW+2*i,2)}, 0" for i in range(32)]
    ra=["v_lshrrev_b32 v120, 5, v0","v_and_b32 v121, 31, v0","v_lshlrev_b32 v121, 2, v121","v_lshl_add_u32 v120, v120, 11, v121", f"s_lshl_b32 {sT1}, {sW}, 7", f"s_add_u32 {sT1}, {sT1}, {XB}",
        f"s_and_b32 {sT0}, {sB}, 1", f"s_lshl_b32 {sT0}, {sT0}, 1", f"s_sub_u32 {sT1}, {sT1}, {sT0}", f"v_add_u32 v122, {sT1}, v120","v_cvt_f32_u32 v121, v20","v_sub_f32 v121, 1.0, v121"]
    c+=ra+t_pack()+hm[:2]+["WAITLG tw,gx","s_barrier"]+hr[:2]+zero[:16]+hm[2:]+r_pack()+r_back()+zero[16:]+flat(r_store())+stamp("p0")
    c+=[f"s_lshl_b32 {sFHS}, {sB}, 7", f"s_add_u32 {sFHS}, {sFHS}, {WS_FP}", f"s_cmp_eq_u32 {sW}, 0", f"s_cselect_b32 {sFHS}, {sFHS}, 0x40000000",
        f"buffer_store_dwordx2 v[0:1], {vFO}, {SWS}, {sFHS} offen sc1 ;@fl"]+flat(wl[opt.q_npre:])+[f"s_lshl_b32 {sT1}, {sW}, 13", f"s_add_u32 {sT1}, {sT1}, {WS_FR}", f"v_lshl_add_u32 v9, {vL}, 7, {sT1}"]
    c+=flat(flag_R_addr())+co
    c+=[f"s_lshr_b32 {sWC}, {sM4K}, 1", f"s_add_u32 {sT1}, {sWC}, {C0}", f"v_add_u32 v158, {sT1}, {vL16}", f"v_add_u32 v10, {C0}, {vL16}",
        "ds_write_b128 v158, v[164:167] ;@mw", "ds_write_b128 v158, v[168:171] offset:1024 ;@mw", f"ds_write_b128 {vTR}, v[172:175] ;@mw", f"ds_write_b128 {vTR}, v[176:179] offset:1024 ;@mw"]
    mrd=[f"ds_read_b128 {aslot(MS[n])}, v10 offset:{((n//4)*2048 if n%4<2 else 8192+((n//4)^1)*2048)+(n%2)*1024} ;@raw" for n in range(16)]
    gg=[f"ds_read_b128 {vr(128+4*(ks%8),4)}, v22 offset:{ks*64} ;@gg" for ks in range(16)]
    gm=[MF16("v[108:111]", vr(128+4*(ks%8),4), aslot(GS[ks]), "v[108:111]" if ks else "0") for ks in range(16)]
    ge=["v_and_b32 v112, 31, v0","v_lshlrev_b32 v112, 2, v112", f"s_lshl_b32 {sT1}, {sB}, 2", f"s_add_u32 {sT1}, {sT1}, {sW}", f"s_lshl_b32 {sT1}, {sT1}, 7", f"s_add_u32 {sT3}, {sT1}, {WS_G}",
        f"v_mul_f32 v108, {f2u(-math.log2(math.e))}, v108","v_exp_f32 v108, v108","v_add_f32 v108, 1.0, v108","v_rcp_f32 v108, v108"]
    cs=cons_scalars()
    c+=gg[:8]+cs[:12]+gm[:8]+gg[8:]+cs[12:]+gm[8:]+flat(pa_setup("v96"))+ge
    c+=["L_WARM_Q:","WAITVM Rst","WAITLG mw","s_barrier",flag_store(sT2),f"buffer_store_dword v108, v112, {SWS}, {sT3} offen sc1 ;@Gst"]+stamp("fr")+mrd+rot_scalars()
    c+=p2_ny()+["WAITVM wf","WAITLG ny","s_barrier"]+stamp("wl")
    c1,park=p2_coefs(1); r0_=p2_raw(0)
    dl=fuse(dloads(24,min(41,opt.nd4)))
    c+=p2_raw(1)+c1+sprinkle(park,[r0_[8*i:8*i+8] for i in range(8)],8)
    c+=[
        f"v_xor_b32 v96, {sB}, v0", "v_bfe_u32 v97, v0, 3, 1", "v_and_b32 v96, 3, v96", "v_lshrrev_b32 v99, 4, v0", "v_lshlrev_b32 v96, 4, v96", "v_lshrrev_b32 v98, 2, v0", "v_lshl_add_u32 v96, v97, 6, v96",
        "v_xor_b32 v98, v98, v99", "v_and_b32 v98, 1, v98", "v_lshl_add_u32 v96, v98, 12, v96", "v_lshl_add_u32 v29, v99, 16, v96",
        f"s_lshl_b32 {sHS2}, {sB}, 7", f"s_add_u32 {sHS2}, {sHS2}, {sM16K}", f"s_add_u32 {sHS2}, {sHS2}, {WS_R}"]
    late=tr_pattern(vWT[2],"v96",sM16K)+[f"v_xor_b32 {vWT[3]}, 64, {vWT[2]}"]
    late2=["v_and_b32 v232, 31, v0","v_lshrrev_b32 v233, 5, v0","v_and_b32 v234, 7, v0","v_xor_b32 v233, v233, v234","v_lshlrev_b32 v233, 4, v233",
        "v_lshl_add_u32 v233, v232, 7, v233", f"v_add_u32 {vXR[0]}, {sM16K}, v233"]+[f"v_xor_b32 {vXR[i]}, {32*i}, {vXR[0]}" for i in range(1,4)]
    sRO="s39"
    late2+=[f"s_lshl_b32 {sRO}, {sB}, 1", "v_lshrrev_b32 v235, 3, v0", f"v_xor_b32 v232, {sRO}, v0", "v_xor_b32 v232, v232, v235", "v_and_b32 v232, 7, v232", "v_lshlrev_b32 v232, 4, v232",
        "v_lshl_add_u32 v232, v235, 7, v232", f"v_add_u32 {vXR[4]}, {sM16K}, v232", f"v_xor_b32 {vXR[5]}, 16, {vXR[4]}",
        "v_lshlrev_b32 v234, 4, v234", f"v_lshl_add_u32 {vXR[6]}, v235, 16, v234",
        f"s_bfe_u32 {sT1}, {sB}, 0x10002", f"s_xor_b32 {sT1}, {sT1}, {sQ}", f"s_lshl_b32 {sT1}, {sT1}, 7", f"s_lshl_b32 {sRO}, {sP}, 15", f"s_add_u32 {sRO}, {sRO}, {sT1}",
        f"s_lshl_b32 {sT1}, {sB}, 9", f"s_add_u32 {sRO}, {sRO}, {sT1}", f"s_add_u32 {sRO}, {sRO}, {WS_RP}"]
    c0=p2_coefs(0); k=[i for i,x in enumerate(c0) if x.startswith("s_cmp_lg")][0]
    pr1=f"buffer_load_dwordx2 {vPOLL}, v9, {SWS}, 0 offen sc1 ;@pr"
    c+=([pr1] if opt.q_pe else [])+c0+stamp("prep")+([] if opt.q_pe else [pr1])
    pf=fuse(gload('D',0,range(14),lambda n: f"s_add_u32 m0, {sM16K}, {XB+n*1024}")+gload('D',1,range(2),lambda n: f"s_add_u32 m0, {sM16K}, {XB+(14+n)*1024}"))
    pf=[pf[2*i]+pf[2*i+1] for i in range(8)]
    q=pf+dl
    def take(n):
        o=q[:n]; del q[:n]; return o
    c+=[f"s_mov_b32 {sCNT}, 100000","WAITVM pr","L_prl:", f"v_cmp_ne_u64 vcc, {sNON}, {vPOLL}", "s_and_b64 exec, exec, vcc", "s_cbranch_scc0 L_prd",
        f"s_sleep {opt.q_slp}", f"buffer_load_dwordx2 {vPOLL}, v9, {SWS}, 0 offen sc1 ;@skip", f"s_sub_u32 {sCNT}, {sCNT}, 1", "s_waitcnt vmcnt(0) ;@skip", "s_cbranch_scc0 L_prl",
        "L_prd:", "s_mov_b64 exec, -1"]+stamp("poll")
    rr=[[f"s_add_u32 m0, {sM16K}, {gam*8192+rg*1024}", f"s_add_u32 {sT0}, {sHS2}, {gam*8192+rg*262144}", f"buffer_load_dwordx4 v29, {SWS}, {sT0} offen sc1 lds ;@RR{gam}"] for gam in range(2) for rg in range(8)]
    c+=flat(rr[:8])+sprinkle(late,rr[8:11],4)+["WAITLG raw","s_barrier"]+stamp("con")
    t=[int(x) for x in opt.q_t.split(".")]
    rd0,f0=p2_fwd(0,[Stream(rr[11:]+take(t[0]),0,16,pace=2,prio=1),Stream(one(late2),0,16,eager=True)])
    c+=["WAITVM RR0"]+stamp("rr0")+rd0+f0+stamp("f0")+sprinkle(p2_point(0),take(t[1]),14,2)+stamp("pt0")
    rest=[f"v_accvgpr_read_b32 v{128+i}, {csv(i)}" for i in range(64)]+[f"v_accvgpr_read_b32 v{CX+i}, {csv(64+i)}" for i in range(4)]
    o_rd,o_st=p2_out(0,192)
    i0,pk0=p2_inv(0,[Stream(one(rest[:30]),0,5,eager=True),Stream(take(t[2]),0,16,pace=2.2)])
    rd1,f1=p2_fwd(1,[Stream(one(o_rd),0,4,eager=True,prio=2),Stream(o_st[:4],4,16,prio=1,pace=3),Stream(one(rest[30:]),0,16,eager=True)])
    c+=["WAITVM RR1"]+i0+(hpoll(0) if opt.q_h2 else [])+rd1+pk0+stamp("i0")+f1+stamp("f1")
    h=GH['h']; e1,e2=opt.q_h1,opt.q_h2; pt1=p2_point(1)
    if e2: c+=sprinkle(pt1[:70],o_st[4:],16,2)+hcheck(0)+sprinkle(pt1[70:],h[:e1],12)+stamp("pt1")
    else: c+=sprinkle(pt1,o_st[4:]+take(t[3])+[hpoll(0)],15,2)+stamp("pt1")
    o_rd,o_st=p2_out(1,128)
    i1,pk1=p2_inv(1,[Stream(h[e1:e2],0,16,pace=2)] if e2 else [])
    c+=i1+o_rd[:4]+pk1+o_rd[4:]+flat(o_st)+stamp("main")
    c+=[f"s_add_u32 {sT1}, {sM16K}, {XB}", f"v_add_u32 v8, {sT1}, {vL16}","WAITVM pf"]
    c+=[f"ds_read_b128 {vslot(n)}, v8 offset:{n*1024} ;@D{n//14}_{n%14}" for n in range(16)]
    rest_=q[:]+fuse(dloads(16,24))+fuse(dloads(41,opt.nd4)); h=GH['h']; nh=opt.q_nh
    oob=[f"s_mov_b32 {sFA}, 0x40000000", f"s_mov_b32 {sH0}, 0x40000000", f"s_mov_b32 {sFH0}, 0x40000000", f"s_mov_b32 {sRR[3]}, 0"]
    fl=["WAITVM P1","s_barrier ;after P1,P0,Gst",flag_store(sFHS)]+stamp("join")
    if e2:
        rest_=h[e2:]+rest_; c+=flat(rest_[:nh])+fl+hpoll(1)+flat(rest_[nh:])
    elif opt.q_hf: c+=hcheck(0)+flat(h[:nh])+fl+hpoll(1)+flat(h[nh:])+flat(rest_)
    else: c+=flat(rest_[:nh])+fl+flat(rest_[nh:])+hcheck(0)+flat(h[:opt.p1i])+hpoll(1)+flat(h[opt.p1i:])
    c+=oob+[flag_store(sFA)]*opt.q_dum+["WAITLG all",f"s_waitcnt vmcnt({opt.joinvm})","s_branch L_g2"]
    return c
Opt.joinvm=63

def tail():
    c=["s_cmp_lg_u32 s2, 0","s_cbranch_scc1 L_noe", f"buffer_store_dwordx2 {vNON}, {vFO}, {SWS}, 0 offen sc1", "L_noe:"]
    if opt.stamps:
        c+=["s_waitcnt vmcnt(0)",("s_memtime" if opt.stamps==1 else "s_memrealtime")+" s[98:99]","s_memrealtime s[96:97]","s_waitcnt lgkmcnt(0)",
            f"s_lshl_b32 {sT0}, s2, 2", f"s_add_u32 {sT0}, {sT0}, {sW}", f"s_lshl_b32 {sT0}, {sT0}, 7", f"s_add_u32 {sT0}, {sT0}, {WS_DBG}"]
        c+=["v_min_u32 v2, 1, v0","v_lshlrev_b32 v2, 30, v2"]
        for i in range(16): c+=[f"v_mov_b32 v8, s{70+2*i}", f"buffer_store_dword v8, {vFO}, {SWS}, {sT0} offen offset:{4*i}"]
    if opt.hold:
        c+=["s_waitcnt vmcnt(0)","L_hold:","s_memrealtime s[96:97]","s_waitcnt lgkmcnt(0)","s_sub_u32 s96, s96, s100",f"s_cmp_lt_u32 s96, {opt.hold}","s_cbranch_scc1 L_hold"]
    return c+["L_end:","s_endpgm"]

def sizes(code):
    import subprocess, re as _re
    t='.amdgcn_target "amdgcn-amd-amdhsa--gfx950"\n.text\n'+"".join(" ".join(i.text.split(";")[0].split())+"\n" for i in code)
    open("_pg.s","w").write(t)
    subprocess.run(["clang","-x","assembler","-target","amdgcn-amd-amdhsa","-mcpu=gfx950","-c","_pg.s","-o","_pg.o"],check=True)
    o=subprocess.run(["llvm-objdump","-d","--mcpu=gfx950","_pg.o"],capture_output=True,text=True).stdout
    sz=[4*len(m.group(1).split()) for m in _re.finditer(r"// [0-9A-F]+: ([0-9A-F ]+?)(?: <|$)",o,_re.M)]
    it=iter(sz); r=[0 if i.kind=="label" else next(it) for i in code]
    assert next(it,None) is None
    return r
def paginate(main,side,ol):
    end=mk(["L_codeend:","s_endpgm"])
    if not opt.warm: return [x for x in main+side+ol+end if not x.text.startswith("L_WARM")]
    sz=sizes(main+side+ol+end); pages=[]
    def cut(code,sz,first,name):
        out=[]; start=0; lim=first; n=0
        while True:
            acc=0; e=start
            while e<len(code) and acc+sz[e]+(40 if code[e].text.startswith("L_WARM") else 0)<=lim: acc+=sz[e]+(40 if code[e].text.startswith("L_WARM") else 0); e+=1
            if e==len(code): out+=code[start:]; return out
            best=None; back=0
            for p in range(e,start,-1):
                back+=sz[p-1]
                if back>700: break
                if code[p-1].kind=="mfma":
                    q=p; ld=0
                    while q<len(code) and code[q].kind!="mfma" and q-p<12: ld+=icost(code[q])+(6 if code[q].mn=="s_barrier" else 0); q+=1
                    if best is None or ld<best[0]: best=(ld,p)
            p=best[1] if best and best[0]<=4 else e
            n+=1; nm=f"{name}{n}"; pages.append((nm,p))
            out+=code[start:p]+mk([f"s_branch L_ld_{nm}",".p2align 12",f"L_st_{nm}:",f"STUB {nm}",f"L_ld_{nm}:"]); start=p; lim=4096-16
    m2=cut(main,sz[:len(main)],opt.pg0,"m"); mp=list(pages); pages.clear()
    s2=cut(side+ol,sz[len(main):len(main)+len(side)+len(ol)],4096-16,"p"); sp=list(pages)
    gi=[i for i,x in enumerate(main) if x.text=="L_g2:"][0]
    wb=[i for i,x in enumerate(main) if x.text=="L_WARM_B:"][0]; wq=[i for i,x in enumerate(side) if x.text=="L_WARM_Q:"][0]
    wa=[i for i,x in enumerate(main) if x.text=="L_WARM_A:"][0]; wp=[i for i,x in enumerate(side) if x.text=="L_WARM_P:"][0]
    sets={"A":[n for n,p in mp if p>wa][:opt.wna], "P":[n for n,p in sp if p>wp][:4]}
    sets["B"]=[n for n,p in mp if p>wb and n not in sets["A"]]
    g2p=[n for k,(n,p) in enumerate(mp) if p>gi]
    sets["Q"]=[n for n,p in sp if p>wq and n not in sets["P"]]+g2p
    stub={}; calls={}
    for k,L in sets.items():
        ch=[L[w::4] for w in range(4)]; c=[]
        for w in range(4):
            for j,n in enumerate(ch[w]): stub.setdefault(n,[]).append((f"L_w{k}_{n}", f"L_w{k}_{ch[w][j+1]}" if j+1<len(ch[w]) else f"L_ret{k}"))
            if ch[w]: c+=[f"s_cmp_eq_u32 {sW}, {w}", f"s_cbranch_scc1 L_w{k}_{ch[w][0]}"]
        calls[k]=c+[f"L_ret{k}:"]
    out=[]
    for x in m2+mk([".p2align 12"])+s2+end:
        if x.text.startswith("L_WARM_"): out+=mk(calls[x.text[7]])
        elif x.mn=="STUB":
            for a,b in stub.get(x.ops[0],[]): out+=mk([a+":",f"s_branch {b}"])
        else: out.append(x)
    print("pages",mp,sp,sets)
    return out
def build():
    _homes()
    a=prologue(); n0=nstamp[0]
    r0c,nx2=round0()
    m=g_start()+r0c+stamp("r0")+rounds(nx2)+stamp("r3")
    n1=nstamp[0]
    g2=gemm2()+tail()
    nstamp[0]=n0; inp2[0]=True
    pp=p2(); inp2[0]=False
    check_tags(a+m+g2); check_tags(a+pp)
    main,ad1=finalize(a+m+g2,opt.verbose)
    full,ad2=finalize(a+["L_mark:"]+pp)
    idx=[i for i,x in enumerate(full) if x.text=="L_mark:"][0]
    side=full[idx+1:]
    gi=[i for i,x in enumerate(main) if x.text=="L_g2:"][0]
    check_loads(full+main[gi:]); check_tags(full+main[gi:])
    check_init(main); check_init(full)
    ol,_=pad_hazards(mk(outl))
    print("nops main",ad1,"p2",ad2)
    if opt.drop:
        r0e=[i for i,x in enumerate(main) if x.text.startswith(f"v_mov_b32 {vGC0}, 0x")][0]
        x0s=[i for i,x in enumerate(main) if x.mn=="s_barrier"][0]
        def keep(i,x):
            if not (x0s<i<r0e): return True
            if 's' in opt.drop and x.mn.startswith("buffer_store_dwordx4"): return False
            if 'l' in opt.drop and x.kind=="vmem" and x.mn.startswith("buffer_load"): return False
            if 'w' in opt.drop and x.mn.startswith("ds_write"): return False
            if 't' in opt.drop and x.mn.startswith("ds_read"): return False
            if 'v' in opt.drop and x.mn=="s_waitcnt" and "vmcnt" in x.text: return False
            return True
        main=[x for i,x in enumerate(main) if keep(i,x)]
    if opt.plainst:
        main=[I(x.text.replace(" sc1",""),x.tag) if (x.mn.startswith("buffer_store") and (x.tag or "").startswith("h")) else x for x in main]
    return paginate(main,side,ol)

HEAD = open("gated_mix__spectral_gfnet__glu_gated_geglu__prompt.s.ref").read().split("; Override launch")[0]
def emit(path):
    code=build()
    s=HEAD+"; @launch grid=(256,1,1) block=(256,1,1) lds=163840\n"
    s+='.amdgcn_target "amdgcn-amd-amdhsa--gfx950"\n.text\n'
    s+=f".globl {KNAME}\n.p2align 8\n.type {KNAME},@function\n{KNAME}:\n"
    for ins in code:
        t=" ".join(ins.text.split(";")[0].split())
        s+=(t if ins.kind=="label" else "    "+t)+"\n"
    s+='.section .rodata,"a"\n.p2align 6\n'
    s+=f".amdhsa_kernel {KNAME}\n  .amdhsa_next_free_vgpr 512\n  .amdhsa_next_free_sgpr 102\n  .amdhsa_accum_offset 256\n"
    s+="  .amdhsa_group_segment_fixed_size 0\n  .amdhsa_kernarg_size 88\n  .amdhsa_user_sgpr_count 2\n  .amdhsa_user_sgpr_kernarg_segment_ptr 1\n"
    s+="  .amdhsa_system_sgpr_workgroup_id_x 1\n  .amdhsa_float_denorm_mode_32 3\n.end_amdhsa_kernel\n"
    open(path,"w").write(s)
    return code
if __name__=="__main__":
    out=sys.argv[1]
    for a in sys.argv[2:]:
        k,v=a.split("=")
        cur=getattr(opt,k)
        setattr(opt,k, (v=="1") if isinstance(cur,bool) else (int(v) if isinstance(cur,int) else v))
    code=emit(out)
    from collections import Counter
    print(len(code), dict(Counter(i.kind for i in code)))
    if opt.verbose:
        for r in rep: print(len(r), sum(r), "".join("%x"%min(x,15) for x in r))
```
